```python
import torch

def _softmax(x, axis=-1):
    return torch.softmax(x, dim=axis)

def _gelu(x):
    return torch.nn.functional.gelu(x, approximate='tanh')

def _silu(x):
    return torch.nn.functional.silu(x)

def _sigmoid(x):
    return torch.sigmoid(x)

def _layernorm(x, axis=-1, eps=1e-05):
    m = x.mean(dim=axis, keepdim=True)
    v = x.var(dim=axis, keepdim=True, unbiased=False)
    return (x - m) / torch.sqrt(v + eps)

def _scatter_add(tgt, idx, src, axis=0):
    return tgt.clone().index_add_(axis, idx, src)

def _segment_sum(src, seg, n):
    out = torch.zeros((n,) + src.shape[1:], dtype=src.dtype)
    return out.index_add_(0, seg, src)

def _pad(x, pw):
    flat = tuple((v for pair in reversed(pw) for v in pair))
    return torch.nn.functional.pad(x, flat)
kernel_name = 'standalone__tensor_product_equiv_mace__graph'

def setup_inputs():

    _w = lambda a: (lambda t: t.to(torch.bfloat16) if t.is_floating_point() else t)(torch.as_tensor(a))
    N, deg = (25000, 32)
    Lmax, C, De = (1, 64, 16)
    M = (Lmax + 1) ** 2
    E = N * deg
    src = (lambda lo, hi, *s: torch.randint(lo, hi, s))(0, N, E).to(torch.int64)
    dst = (lambda lo, hi, *s: torch.randint(lo, hi, s))(0, N, E).to(torch.int64)
    r = (lambda *s: torch.randn(*s, dtype=torch.bfloat16) * 0.05)(E, 3).to(float)
    r = r / (torch.linalg.norm(r, dim=-1, keepdim=True).to(float) + 1e-06)
    rx, ry, rz = (r[:, 0].clone(), r[:, 1].clone(), r[:, 2].clone())
    x2, y2, z2 = (rx * rx, ry * ry, rz * rz)
    sh_list = [torch.ones_like(rx), rx, ry, rz, rx * ry, ry * rz, 2.0 * z2 - x2 - y2, rx * rz, x2 - y2, ry * (3.0 * x2 - y2), rx * ry * rz, ry * (4.0 * z2 - x2 - y2), rz * (2.0 * z2 - 3.0 * x2 - 3.0 * y2), rx * (4.0 * z2 - x2 - y2), rz * (x2 - y2), rx * (x2 - 3.0 * y2)]
    sh16 = torch.stack(sh_list, dim=-1).to(float)
    pad = max(0, M - 16)
    sh_full = torch.cat([sh16, torch.zeros((E, pad), dtype=float)], dim=-1)[:, :M]
    cg = ((lambda *s: torch.randn(*s, dtype=torch.bfloat16) * 0.05)(M, M, M) * (1.0 / float(M))).to(float)
    return {'x': _w(((lambda *s: torch.randn(*s, dtype=torch.bfloat16) * 0.05)(N, M, C) * 0.3).to(float)), 'src': _w(src), 'dst': _w(dst), 'sh': _w(sh_full.to(float)), 'edge_attr': _w(((lambda *s: torch.randn(*s, dtype=torch.bfloat16) * 0.05)(E, De) * 0.3).to(float)), 'cg': _w(cg), 'w_r': _w(((lambda *s: torch.randn(*s, dtype=torch.bfloat16) * 0.05)(De, C) * (1.0 / float(De) ** 0.5)).to(float)), 'w_out': _w(((lambda *s: torch.randn(*s, dtype=torch.bfloat16) * 0.05)(C, C) * (1.0 / float(C) ** 0.5)).to(float))}

def reference(x, src, dst, sh, edge_attr, cg, w_r, w_out):
    N = x.shape[0]
    M = x.shape[1]
    C = x.shape[2]
    h = x[src]
    tp = torch.einsum('uvw,euc,ev->ewc', cg, h, sh)
    rw = edge_attr @ w_r
    msg = tp * rw[:, None, :]
    msg2 = msg.reshape(-1, M * C)
    agg = _segment_sum(msg2, dst, N).reshape(N, M, C)
    out = torch.einsum('nmc,cd->nmd', agg, w_out)
    return out
```

```python
import sys
OPT = dict(safe=0, stamps=0, ntl=1, nts="", pf=1, fma="pk", ksld="", eald="", outst="", xfl="")
for a in sys.argv[2:]:
    k, v = a.split("=")
    OPT[k] = int(v) if v.lstrip("-").isdigit() else v
for k in ("nts","ksld","eald","outst","xfl"):
    OPT[k] = "" if OPT[k] in (0,"") else str(OPT[k]).replace("+"," ")

NN, NE = 25000, 800000
CH, NCH = 3200, 250
NPB = 98
MAGIC, MSH = 42800, 22
assert all((d*MAGIC) >> MSH == d//NPB for d in range(NN))
WS_TAB, WS_CONST, WS_KS, WS_EA, WS_STAMP = 0, 0x40000, 0x100000, 0xB00000, 128 << 20
CAP, NB = 3520, 10

L = []
def a(s):
    for ln in s.split("\n"):
        L.append(ln)
def nop(n):
    a(f"s_nop {n-1}")
NT = " nt" if OPT["ntl"] else ""
def fl(x): return (" " + x) if x else ""

def stamp(i):
    if OPT["stamps"]:
        a(f"s_memrealtime s[{64+2*i}:{65+2*i}]")
def stamp_out(k, n, sws, swave):
    if not OPT["stamps"]: return
    a(f"s_cmp_lg_u32 s{swave}, {OPT['stamps']-1}")
    a(f"s_cbranch_scc1 Lnostamp{k}")
    a("s_waitcnt lgkmcnt(0)")
    a("s_mov_b64 exec, 1")
    a(f"s_lshl_b32 s62, s2, 6\ns_add_u32 s62, s62, {WS_STAMP + k*256*64}")
    a("v_mov_b32 v1, s62")
    for i in range(n):
        a(f"v_mov_b32 v2, s{64+2*i}")
        a(f"global_store_dword v1, v2, s[{sws}:{sws+1}] offset:{4*i}")
    a(f"Lnostamp{k}:")

def scan(c, s1, s2, x, tot):
    a(f"v_add_u32 v{s1}, v{c}, v{c+1}")
    a(f"v_add_u32 v{s2}, v{s1}, v{c+2}")
    a(f"v_add_u32 v{tot}, v{s2}, v{c+3}")
    a(f"v_mov_b32 v{x}, v{tot}")
    for d in ("row_shr:1", "row_shr:2", "row_shr:4", "row_shr:8"):
        nop(2)
        a(f"v_add_u32_dpp v{x}, v{x}, v{x} {d} row_mask:0xf bank_mask:0xf")
    nop(2)
    a(f"v_add_u32_dpp v{x}, v{x}, v{x} row_bcast:15 row_mask:0xa bank_mask:0xf")
    nop(2)
    a(f"v_add_u32_dpp v{x}, v{x}, v{x} row_bcast:31 row_mask:0xc bank_mask:0xf")

def kd(name, vg, sg=96):
    return f""".amdhsa_kernel {name}
  .amdhsa_next_free_vgpr {vg}
  .amdhsa_next_free_sgpr {sg}
  .amdhsa_accum_offset {vg}
  .amdhsa_group_segment_fixed_size 0
  .amdhsa_kernarg_size 88
  .amdhsa_user_sgpr_count 2
  .amdhsa_user_sgpr_kernarg_segment_ptr 1
  .amdhsa_system_sgpr_workgroup_id_x 1
  .amdhsa_float_denorm_mode_32 3
.end_amdhsa_kernel
"""

K1_HIST, K1_BASE, K1_INV, K1_KS, K1_EA, K1_LDS = 0, 1024, 2048, 14848, 53248, 155648
def k1():
    a(".globl mace_bin_kernel\n.p2align 8\n.type mace_bin_kernel,@function\nmace_bin_kernel:")
    stamp(0)
    a(f"s_cmp_gt_u32 s2, {NCH}")
    a("s_cbranch_scc1 Lk1_end")
    a(f"s_cmp_eq_u32 s2, {NCH}")
    a("s_cbranch_scc1 Lk1_prep")
    a("s_load_dwordx4 s[4:7], s[0:1], 8")
    a("s_load_dwordx4 s[8:11], s[0:1], 24")
    a("s_load_dwordx2 s[12:13], s[0:1], 80")
    a("v_lshrrev_b32 v1, 6, v0")
    a("v_and_b32 v2, 63, v0")
    a("v_readfirstlane_b32 s14, v1")
    a("v_lshlrev_b32 v3, 2, v0")
    a("v_mov_b32 v4, 0")
    a("ds_write_b32 v3, v4")
    a("v_lshlrev_b32 v3, 2, v2")
    a("v_lshlrev_b32 v4, 3, v2")
    a("v_lshlrev_b32 v5, 4, v2")
    a(f"s_mul_i32 s15, s2, {CH}")
    a("s_mul_i32 s16, s14, 320")
    a("s_add_u32 s15, s15, s16")
    a("s_lshl_b32 s17, s15, 2")
    a("s_lshl_b32 s18, s15, 3")
    a("s_lshl_b32 s19, s15, 5")
    a("s_waitcnt lgkmcnt(0)")
    a("s_add_u32 s6, s6, s17\ns_addc_u32 s7, s7, 0")
    for k in range(5):
        a(f"global_load_dword v{10+k}, v3, s[6:7] offset:{k*256}{NT}")
    a("s_add_u32 s4, s4, s17\ns_addc_u32 s5, s5, 0")
    for k in range(5):
        a(f"global_load_dword v{15+k}, v3, s[4:5] offset:{k*256}{NT}")
    a("s_add_u32 s8, s8, s18\ns_addc_u32 s9, s9, 0")
    for k in range(5):
        a(f"global_load_dwordx2 v[{20+2*k}:{21+2*k}], v4, s[8:9] offset:{k*512}{NT}")
    a("s_add_u32 s10, s10, s19\ns_addc_u32 s11, s11, 0")
    a("s_lshl_b32 s20, s16, 5")
    a(f"s_add_u32 s20, s20, {K1_EA}")
    for i in range(10):
        if i % 4 == 0:
            a(f"s_add_u32 m0, s20, {i*1024}")
            a(f"v_add_u32 v6, {i*1024}, v5")
        a(f"global_load_lds_dwordx4 v6, s[10:11] offset:{(i%4)*1024}{NT}")
    a("s_barrier")
    a(f"s_mov_b32 s21, {MAGIC}")
    a(f"s_mov_b32 s22, {-NPB}")
    a("v_mov_b32 v7, 1")
    a("s_waitcnt vmcnt(20)")
    stamp(1)
    for k in range(5):
        a(f"v_mul_u32_u24 v{30+k}, s21, v{10+k}")
        a(f"v_lshrrev_b32 v{30+k}, {MSH}, v{30+k}")
        a(f"v_mad_i32_i24 v{10+k}, v{30+k}, s22, v{10+k}")
        a(f"v_lshlrev_b32 v{30+k}, 2, v{30+k}")
        a(f"ds_add_rtn_u32 v{35+k}, v{30+k}, v7 offset:{K1_HIST}")
    a("s_waitcnt lgkmcnt(0)")
    a("s_barrier")
    a(f"ds_read_b128 v[40:43], v5 offset:{K1_HIST}")
    a("s_mul_i32 s23, s14, 26")
    a("v_add_u32 v48, s23, v2")
    a("v_cmp_gt_u32 s[24:25], 26, v2")
    a("v_cmp_gt_u32 vcc, 0x100, v48")
    a("s_and_b64 s[24:25], s[24:25], vcc")
    a("v_and_b32 v48, 0xff, v48")
    a("v_lshlrev_b32 v49, 2, v48")
    a("v_lshlrev_b32 v48, 10, v48")
    a("s_lshl_b32 s23, s2, 2")
    a("v_add_u32 v48, s23, v48")
    a("s_waitcnt lgkmcnt(0)")
    scan(40, 44, 45, 46, 47)
    a("v_sub_u32 v46, v46, v47")
    a("v_add_u32 v41, v46, v40")
    a("v_add_u32 v42, v46, v44")
    a("v_add_u32 v43, v46, v45")
    a("v_mov_b32 v40, v46")
    a(f"ds_write_b128 v5, v[40:43] offset:{K1_BASE}")
    for k in range(5):
        a(f"ds_read_b32 v{30+k}, v{30+k} offset:{K1_BASE}")
    a(f"ds_read_b32 v50, v49 offset:{K1_BASE}")
    a(f"ds_read_b32 v51, v49 offset:{K1_HIST}")
    a("s_waitcnt vmcnt(10)")
    for k in range(5):
        a(f"v_and_b32 v52, 15, v{10+k}")
        a(f"v_lshrrev_b32 v{10+k}, 4, v{10+k}")
        a(f"v_lshlrev_b32 v52, 24, v52")
        a(f"v_lshl_or_b32 v52, v{10+k}, 2, v52")
        a(f"v_lshl_or_b32 v{15+k}, v{15+k}, 9, v52")
    a("v_lshl_add_u32 v53, v2, 5, s20")
    a("s_waitcnt lgkmcnt(0)")
    a("v_lshl_or_b32 v50, v51, 16, v50")
    a("s_mov_b64 exec, s[24:25]")
    a(f"global_store_dword v48, v50, s[12:13]")
    a("s_mov_b64 exec, -1")
    for k in range(5):
        a(f"v_add_u32 v{30+k}, v{30+k}, v{35+k}")
        a(f"v_lshlrev_b32 v{35+k}, 2, v{30+k}")
        a(f"v_mul_u32_u24 v{30+k}, 12, v{30+k}")
        if k: a(f"v_add_u32 v{53+k}, {k*2048}, v53")
        a(f"ds_write_b32 v{35+k}, v{53+k} offset:{K1_INV}")
        a(f"v_add_u32 v{30+k}, {K1_KS}, v{30+k}")
        a(f"ds_write_b32 v{30+k}, v{15+k}")
        a(f"ds_write2_b32 v{30+k}, v{20+2*k}, v{21+2*k} offset0:1 offset1:2")
    a("s_waitcnt lgkmcnt(0)")
    a("s_barrier")
    stamp(2)
    a("s_mul_i32 s23, s14, 3840")
    a("v_add_u32 v8, s23, v5")
    for i in range(4):
        a(f"ds_read_b128 v[{12+4*i}:{15+4*i}], v8 offset:{K1_KS+i*1024}")
    a("v_lshrrev_b32 v9, 1, v2")
    a("v_add_u32 v9, s16, v9")
    a("v_lshlrev_b32 v9, 2, v9")
    for i in range(10):
        a(f"ds_read_b32 v{30+i}, v9 offset:{K1_INV+i*128}")
    a(f"s_mul_i32 s23, s2, {CH*12}")
    a(f"s_add_u32 s23, s23, {WS_KS}")
    a("s_add_u32 s26, s12, s23\ns_addc_u32 s27, s13, 0")
    a(f"s_add_u32 s19, s19, {WS_EA}")
    a("s_add_u32 s28, s12, s19\ns_addc_u32 s29, s13, 0")
    a("v_and_b32 v10, 1, v2")
    a("v_lshlrev_b32 v10, 4, v10")
    a("s_waitcnt lgkmcnt(10)")
    for i in range(4):
        if i == 3: a("s_mov_b32 exec_hi, 0xffff")
        a(f"global_store_dwordx4 v8, v[{12+4*i}:{15+4*i}], s[26:27] offset:{i*1024}{fl(OPT['nts'])}")
    a("s_mov_b64 exec, -1")
    a("s_waitcnt lgkmcnt(0)")
    for i in range(10):
        a(f"v_add_u32 v{30+i}, v{30+i}, v10")
    a("s_waitcnt vmcnt(5)")
    a("s_barrier")
    stamp(3)
    for i in range(10):
        a(f"ds_read_b128 v[{40+4*i}:{43+4*i}], v{30+i}")
    a("v_add_u32 v6, 4096, v5")
    a("v_add_u32 v7, 8192, v5")
    for i in range(10):
        a(f"s_waitcnt lgkmcnt({9-i})")
        a(f"global_store_dwordx4 v{5+i//4}, v[{40+4*i}:{43+4*i}], s[28:29] offset:{(i%4)*1024}{fl(OPT['nts'])}")
    if OPT["stamps"]:
        stamp(4)
        a("s_waitcnt vmcnt(0)")
        stamp(5)
        stamp_out(0, 6, 12, 14)
    a("Lk1_end:")
    a("s_endpgm")
    a("Lk1_prep:")
    a("s_load_dwordx4 s[4:7], s[0:1], 40")
    a("s_load_dwordx2 s[8:9], s[0:1], 56")
    a("s_load_dwordx2 s[12:13], s[0:1], 80")
    a("v_lshrrev_b32 v1, 6, v0")
    a("v_and_b32 v2, 63, v0")
    a("v_readfirstlane_b32 s14, v1")
    a("v_lshlrev_b32 v5, 4, v2")
    a("s_waitcnt lgkmcnt(0)")
    a(f"s_add_u32 s12, s12, {WS_CONST}\ns_addc_u32 s13, s13, 0")
    def gather8(base, offs, dstoff_s):
        for k in range(8):
            a(f"global_load_ushort v{10+k}, v3, s[{base}:{base+1}] offset:{offs[k]}")
        a("s_waitcnt vmcnt(0)")
        for k in range(4):
            a(f"v_lshl_or_b32 v{20+k}, v{11+2*k}, 16, v{10+2*k}")
        a(f"v_add_u32 v6, s{dstoff_s}, v5")
        a("global_store_dwordx4 v6, v[20:23], s[12:13]")
        a("s_waitcnt vmcnt(0)")
    a("s_cmp_ge_u32 s14, 8")
    a("s_cbranch_scc1 Lk1_prep2")
    a("s_lshr_b32 s15, s14, 1")
    a("s_and_b32 s16, s14, 1")
    a("s_lshl_b32 s15, s15, 11")
    a("s_lshl_b32 s16, s16, 1")
    a("s_add_u32 s15, s15, s16")
    a("v_lshrrev_b32 v3, 5, v2")
    a("v_lshlrev_b32 v3, 10, v3")
    a("v_and_b32 v4, 31, v2")
    a("v_lshl_add_u32 v3, v4, 2, v3")
    a("v_add_u32 v3, s15, v3")
    a("s_lshl_b32 s17, s14, 10")
    a("s_add_u32 s17, s17, 4096")
    gather8(8, [k*128 for k in range(8)], 17)
    a("s_endpgm")
    a("Lk1_prep2:")
    a("s_sub_u32 s14, s14, 8")
    a("s_lshl_b32 s17, s14, 10")
    a("v_lshl_add_u32 v3, v2, 1, s17")
    gather8(6, [k*128 for k in range(8)], 17)
    a("s_lshl_b32 s15, s14, 4")
    a("v_and_b32 v3, 3, v2")
    a("v_lshl_add_u32 v3, v3, 1, s15")
    a("s_add_u32 s17, s17, 2048")
    gather8(4, [(k//2)*32 + (k%2)*8 for k in range(8)], 17)
    a("s_endpgm")

RING, HIST, BASE, EA0, K2_LDS = 0, 49152, 50176, 51200, 163840
S0, SHS = 0, CAP*4
vLs, vT, vEa, vShf, vK, vP, vSH, vAdr, vTmp = 1, [2,3,4], 5, 6, 7, 8, 9, 10, 11
vA, vB, vLane, vTmp2 = 12, 14, 18, 19
vWr, vCg, vEaA, vD, vRw, vPr, vSr, vPos, vG, ACC = 20, 28, 36, 44, 52, 68, 78, 88, 92, 96
sX, sOut, sKS, sEA, sC, sWs = 4, 6, 8, 10, 12, 14
sTab, sOsrd = 16, 20
sWave, sBin, sTot, sBase, sL, sN, sStart, sCnt, sG, sGw, sGmax, sErr, sBlk = 24,25,26,27,28,29,30,31,32,33,34,35,36
sM0 = [37,38,39]
sI = 40
sMk = 48
sEx = 56
sT0, sT1, sT2, sT3 = 58, 59, 60, 61

def k2():
    a(".globl mace_main_kernel\n.p2align 8\n.type mace_main_kernel,@function\nmace_main_kernel:")
    stamp(0)
    a("s_cmp_ge_u32 s2, 256")
    a("s_cbranch_scc1 Lk2_end")
    a(f"s_load_dwordx2 s[{sWs}:{sWs+1}], s[0:1], 80")
    a(f"s_load_dwordx2 s[{sX}:{sX+1}], s[0:1], 0")
    a(f"s_load_dwordx2 s[{sOut}:{sOut+1}], s[0:1], 64")
    a(f"v_lshrrev_b32 v{vTmp}, 6, v0")
    a(f"v_and_b32 v{vLane}, 63, v0")
    a(f"v_readfirstlane_b32 s{sWave}, v{vTmp}")
    a(f"s_and_b32 s{sBin}, s2, 7")
    a(f"s_lshl_b32 s{sBin}, s{sBin}, 5")
    a(f"s_lshr_b32 s{sT0}, s2, 3")
    a(f"s_add_u32 s{sBin}, s{sBin}, s{sT0}")
    a(f"s_lshl_b32 s{sT0}, s{sBin}, 10")
    a(f"v_lshlrev_b32 v{vTmp2}, 4, v{vLane}")
    a(f"s_mov_b32 s{sTab+2}, {NCH*4}")
    a(f"s_mov_b32 s{sTab+3}, 0x20000")
    a("s_waitcnt lgkmcnt(0)")
    a(f"s_add_u32 s{sTab}, s{sWs}, s{sT0}")
    a(f"s_addc_u32 s{sTab+1}, s{sWs+1}, 0")
    a(f"buffer_load_dwordx4 v[36:39], v{vTmp2}, s[{sTab}:{sTab+3}], 0 offen")
    a(f"s_add_u32 s{sC}, s{sWs}, {WS_CONST}\ns_addc_u32 s{sC+1}, s{sWs+1}, 0")
    for i in range(4):
        a(f"global_load_dwordx4 v[{vWr+4*i}:{vWr+4*i+3}], v{vTmp2}, s[{sC}:{sC+1}] offset:{i*1024}")
    npre = 4
    if OPT["pf"]:
        a(f"s_min_u32 s{sT0}, s2, 249")
        a(f"s_lshl_b32 s{sT0}, s{sT0}, 4")
        a(f"s_add_u32 s{sT0}, s{sT0}, s{sWave}")
        a(f"s_mul_i32 s{sT0}, s{sT0}, 3200")
        a(f"v_min_u32 v{vTmp}, 24, v{vLane}")
        a(f"v_lshl_add_u32 v{vTmp}, v{vTmp}, 7, s{sT0}")
        a(f"global_load_dword v{vAdr}, v{vTmp}, s[{sX}:{sX+1}]")
        npre += 1
    a(f"s_add_u32 s{sKS}, s{sWs}, {WS_KS}\ns_addc_u32 s{sKS+1}, s{sWs+1}, 0")
    a(f"s_add_u32 s{sEA}, s{sWs}, {WS_EA}\ns_addc_u32 s{sEA+1}, s{sWs+1}, 0")
    a(f"s_mov_b32 s{sOsrd}, s{sOut}\ns_mov_b32 s{sOsrd+1}, s{sOut+1}\ns_mov_b32 s{sOsrd+2}, {NN*512}\ns_mov_b32 s{sOsrd+3}, 0x20000")
    a(f"s_mov_b32 s{sBase}, 0\ns_mov_b32 s{sL}, {CAP}")
    a(f"s_mov_b32 s{sEx}, 0x0f0f0f0f\ns_mov_b32 s{sEx+1}, 0xf0f0f0f0")
    for i in range(32):
        a(f"v_mov_b32 v{ACC+i}, 0")
    a(f"v_bfe_u32 v40, v{vLane}, 2, 2")
    a(f"v_and_b32 v41, 3, v{vLane}")
    a(f"v_lshrrev_b32 v42, 5, v{vLane}")
    a(f"v_lshlrev_b32 v{vLs}, 7, v40")
    a(f"v_lshl_add_u32 v{vLs}, v42, 6, v{vLs}")
    a(f"v_lshl_add_u32 v{vLs}, v41, 4, v{vLs}")
    a(f"v_lshlrev_b32 v{vShf}, 3, v41")
    a(f"s_waitcnt vmcnt({npre})")
    a("s_branch Lk2_havetab")
    a("Lk2_round:")
    a(f"v_lshlrev_b32 v{vTmp2}, 4, v{vLane}")
    a(f"buffer_load_dwordx4 v[36:39], v{vTmp2}, s[{sTab}:{sTab+3}], 0 offen")
    a("s_waitcnt vmcnt(0)")
    a("Lk2_havetab:")
    stamp(1)
    a(f"v_and_b32 v60, 0xff, v0")
    a(f"v_lshlrev_b32 v60, 2, v60")
    a(f"v_mov_b32 v61, 0")
    a(f"ds_write_b32 v60, v61 offset:{HIST}")
    a(f"v_mul_u32_u24 v52, {4*CH}, v{vLane}")
    for j in range(4):
        a(f"v_lshrrev_b32 v{40+j}, 16, v{36+j}")
        a(f"v_and_b32 v{44+j}, 0xffff, v{36+j}")
        if j: a(f"v_add_u32 v52, {CH}, v52")
        a(f"v_add_u32 v{44+j}, v{44+j}, v52")
    scan(40, 53, 54, 55, 56)
    a("v_sub_u32 v48, v55, v56")
    a(f"v_readlane_b32 s{sTot}, v55, 63")
    a("v_add_u32 v49, v48, v40")
    a("v_add_u32 v50, v48, v53")
    a("v_add_u32 v51, v48, v54")
    a(f"s_sub_u32 s{sN}, s{sTot}, s{sBase}")
    a(f"s_min_u32 s{sN}, s{sN}, s{sL}")
    a(f"s_cmp_eq_u32 s{sN}, s{sTot}")
    a("s_cbranch_scc1 Lk2_noclip")
    a(f"s_add_u32 s{sT0}, s{sBase}, s{sN}")
    for j in range(4):
        a(f"v_add_u32 v52, v{48+j}, v{40+j}")
        a(f"v_min_u32 v52, s{sT0}, v52")
        a(f"v_max_u32 v53, s{sBase}, v{48+j}")
        a(f"v_sub_u32 v52, v52, v53")
        a(f"v_max_i32 v{40+j}, 0, v52")
        a(f"v_sub_u32 v52, v53, v{48+j}")
        a(f"v_add_u32 v{44+j}, v{44+j}, v52")
        a(f"v_subrev_u32 v{48+j}, s{sBase}, v53")
    a("Lk2_noclip:")
    a(f"s_mov_b32 s{sT0}, s{sWave}")
    for j in range(4):
        a(f"v_add_lshl_u32 v{48+j}, v{48+j}, s{sWave}, 2")
        a(f"v_add_u32 v{44+j}, s{sWave}, v{44+j}")
    a("v_max_u32 v52, v40, v41")
    a("v_max3_u32 v52, v42, v43, v52")
    a("Lk2_exp:")
    for j in range(4):
        a(f"v_cmp_lt_u32 s[{sMk+2*j}:{sMk+2*j+1}], s{sT0}, v{40+j}")
    a(f"s_add_u32 s{sT0}, s{sT0}, 16")
    a(f"v_cmp_lt_u32 vcc, s{sT0}, v52")
    for j in range(4):
        a(f"s_mov_b64 exec, s[{sMk+2*j}:{sMk+2*j+1}]")
        a(f"ds_write_b32 v{48+j}, v{44+j}")
    a("s_mov_b64 exec, -1")
    a("s_cbranch_vccz Lk2_expdone")
    a("s_waitcnt lgkmcnt(0)")
    for j in range(4):
        a(f"v_add_u32 v{48+j}, 64, v{48+j}")
        a(f"v_add_u32 v{44+j}, 16, v{44+j}")
    a("s_branch Lk2_exp")
    a("Lk2_expdone:")
    a(f"v_lshlrev_b32 v{vTmp}, 2, v0")
    for k in range(4):
        a(f"v_add_u32 v57, {1024*k}, v0")
        a(f"v_cmp_gt_u32 s[{sMk+2*k}:{sMk+2*k+1}], s{sN}, v57")
    a("s_waitcnt lgkmcnt(0)")
    a("s_barrier")
    for k in range(4):
        a(f"ds_read_b32 v{vG+k}, v{vTmp} offset:{k*4096}")
    for k in range(4):
        a(f"s_waitcnt lgkmcnt({3-k})" if not OPT["stamps"] else "s_waitcnt lgkmcnt(0)")
        a(f"v_cndmask_b32 v{vG+k}, 0, v{vG+k}, s[{sMk+2*k}:{sMk+2*k+1}]")
        if OPT["safe"]: a(f"v_min_u32 v{vG+k}, {NE-1}, v{vG+k}")
        a(f"v_mul_u32_u24 v{vPos+k}, 12, v{vG+k}")
        a(f"global_load_dwordx3 v[{68+4*k}:{70+4*k}], v{vPos+k}, s[{sKS}:{sKS+1}]{fl(OPT['ksld'])}")
    for k in range(4):
        a(f"v_lshlrev_b32 v{vG+k}, 5, v{vG+k}")
        a(f"global_load_dwordx4 v[{36+8*k}:{39+8*k}], v{vG+k}, s[{sEA}:{sEA+1}]{fl(OPT['eald'])}")
        a(f"global_load_dwordx4 v[{40+8*k}:{43+8*k}], v{vG+k}, s[{sEA}:{sEA+1}] offset:16{fl(OPT['eald'])}")
    stamp(2)
    a(f"v_mov_b32 v{vTmp}, 1")
    for k in range(4):
        a(f"s_waitcnt vmcnt({11-k})")
        a(f"v_lshrrev_b32 v{71+4*k}, 18, v{68+4*k}")
        a(f"v_and_b32 v{71+4*k}, 0x3fc, v{71+4*k}")
        a(f"s_mov_b64 exec, s[{sMk+2*k}:{sMk+2*k+1}]")
        a(f"ds_add_rtn_u32 v{vPos+k}, v{71+4*k}, v{vTmp} offset:{HIST}")
        a("s_mov_b64 exec, -1")
    stamp(3)
    a(f"v_lshlrev_b32 v{vTmp2}, 4, v{vLane}")
    a("s_waitcnt lgkmcnt(0)")
    a("s_barrier")
    a(f"ds_read_b128 v[84:87], v{vTmp2} offset:{HIST}")
    a(f"s_lshl_b32 s{sT1}, s{sWave}, 2")
    a("s_waitcnt lgkmcnt(0)")
    scan(84, 92, 93, 94, 95)
    a("v_sub_u32 v94, v94, v95")
    a("v_add_u32_dpp v95, v95, v95 quad_perm:[1,0,3,2] row_mask:0xf bank_mask:0xf")
    a("v_add_u32 v85, v94, v84")
    a("v_add_u32 v86, v94, v92")
    a("v_add_u32_dpp v95, v95, v95 quad_perm:[2,3,0,1] row_mask:0xf bank_mask:0xf")
    a("v_add_u32 v87, v94, v93")
    a("v_mov_b32 v84, v94")
    a(f"ds_write_b128 v{vTmp2}, v[84:87] offset:{BASE}")
    for k in range(4):
        a(f"ds_read_b32 v{71+4*k}, v{71+4*k} offset:{BASE}")
    a(f"v_readlane_b32 s{sStart}, v94, s{sT1}")
    a(f"v_readlane_b32 s{sCnt}, v95, s{sT1}")
    for d, rm in (("row_shr:4","0xf"), ("row_shr:8","0xf"), ("row_bcast:15","0xa"), ("row_bcast:31","0xc")):
        a(f"v_max_u32_dpp v95, v95, v95 {d} row_mask:{rm} bank_mask:0xf")
        nop(2)
    a(f"v_readlane_b32 s{sGmax}, v95, 63")
    nop(1)
    a(f"s_cmp_gt_u32 s{sGmax}, {NB*32}")
    a("s_cbranch_scc1 Lk2_slow")
    a(f"s_add_u32 s{sGmax}, s{sGmax}, 15\ns_lshr_b32 s{sGmax}, s{sGmax}, 4")
    a(f"s_add_u32 s{sGw}, s{sCnt}, 15\ns_lshr_b32 s{sGw}, s{sGw}, 4")
    a("s_waitcnt lgkmcnt(0)")
    for k in range(4):
        a(f"v_add_u32 v{vPos+k}, v{vPos+k}, v{71+4*k}")
        a(f"v_lshlrev_b32 v{71+4*k}, 2, v{vPos+k}")
        a(f"v_lshlrev_b32 v{vG+k}, 3, v{vPos+k}")
        a(f"v_add_u32 v{vG+k}, {SHS}, v{vG+k}")
        a(f"s_mov_b64 exec, s[{sMk+2*k}:{sMk+2*k+1}]")
        a(f"ds_write_b32 v{71+4*k}, v{68+4*k} offset:{S0}")
        a(f"ds_write2_b32 v{vG+k}, v{69+4*k}, v{70+4*k} offset0:0 offset1:1")
        a("s_mov_b64 exec, -1")
        a(f"v_lshlrev_b32 v{vPos+k}, 5, v{vPos+k}")
    a(f"v_and_b32 v12, 15, v{vLane}")
    a(f"v_bfe_u32 v13, v{vLane}, 4, 1")
    a("v_lshl_add_u32 v12, v12, 1, v13")
    a(f"v_add_lshl_u32 v13, v12, s{sStart}, 2")
    a(f"v_lshrrev_b32 v14, 2, v{vLane}")
    a(f"v_bfe_u32 v15, v{vLane}, 1, 1")
    a("v_lshl_add_u32 v14, v15, 4, v14")
    a(f"v_add_lshl_u32 v14, v14, s{sStart}, 3")
    a(f"v_and_b32 v15, 1, v{vLane}")
    a("v_lshl_add_u32 v14, v15, 2, v14")
    a("s_waitcnt lgkmcnt(0)")
    a("s_barrier")
    stamp(4)
    for b in range(NB):
        a(f"ds_read_b32 v{vPr+b}, v13 offset:{S0+b*128}")
    for b in range(NB):
        a(f"ds_read_b32 v{vSr+b}, v14 offset:{SHS+b*256}")
    a(f"s_mul_i32 s{sM0[0]}, s{sWave}, 3072")
    a(f"s_add_u32 s{sM0[1]}, s{sM0[0]}, 1024")
    a(f"s_add_u32 s{sM0[2]}, s{sM0[0]}, 2048")
    a(f"v_lshrrev_b32 v15, 5, v{vLane}")
    a(f"v_lshl_add_u32 v{vT[0]}, v15, 9, s{sM0[0]}")
    a(f"v_bfe_u32 v15, v{vLane}, 2, 2")
    a(f"v_lshl_add_u32 v{vT[0]}, v15, 6, v{vT[0]}")
    a(f"v_bfe_u32 v15, v{vLane}, 4, 1")
    a(f"v_lshl_add_u32 v{vT[0]}, v15, 5, v{vT[0]}")
    a(f"v_add_u32 v{vT[0]}, v{vT[0]}, v{vShf}")
    a(f"v_add_u32 v{vT[1]}, 1024, v{vT[0]}")
    a(f"v_add_u32 v{vT[2]}, 2048, v{vT[0]}")
    a(f"v_bfe_u32 v15, v{vLane}, 3, 2")
    a(f"v_and_b32 v16, 3, v{vLane}")
    a("v_lshl_add_u32 v15, v15, 2, v16")
    a(f"v_add_lshl_u32 v{vEa}, v15, s{sStart}, 5")
    a(f"v_add_u32 v{vEa}, {EA0}, v{vEa}")
    a(f"v_mov_b32 v16, 28")
    a(f"v_subrev_u32 v12, s{sCnt}, v12")
    a("s_waitcnt lgkmcnt(0)")
    a("s_barrier")
    for b in range(NB):
        a(f"v_cmp_gt_i32 vcc, {-32*b}, v12")
        nop(2)
        a(f"v_cndmask_b32 v{vPr+b}, v16, v{vPr+b}, vcc")
        if b == 0:
            a(f"v_and_b32 v{vK}, 0xfffe00, v{vPr}")
            if OPT["safe"]: a(f"v_min_u32 v{vK}, {(NN-1)*512}, v{vK}")
            a(f"v_mov_b32 v{vP}, v{vPr}")
            a(f"v_mov_b32 v{vSH}, v{vSr}")
            for p in range(3):
                a(f"s_mov_b32 m0, s{sM0[p]}")
                a(f"v_add_u32_dpp v{vAdr}, v{vK}, v{vLs} row_newbcast:{p} row_mask:0xf bank_mask:0xf")
                a(f"global_load_lds_dwordx4 v{vAdr}, s[{sX}:{sX+1}]{fl(OPT['xfl'])}")
    stamp(5)
    for k in range(4):
        a(f"s_waitcnt vmcnt({3+2*(3-k)})")
        a(f"s_mov_b64 exec, s[{sMk+2*k}:{sMk+2*k+1}]")
        a(f"ds_write_b128 v{vPos+k}, v[{36+8*k}:{39+8*k}] offset:{EA0}")
        a(f"ds_write_b128 v{vPos+k}, v[{40+8*k}:{43+8*k}] offset:{EA0+16}")
    a("s_mov_b64 exec, -1")
    a(f"s_mov_b32 s{sErr}, 0\ns_mov_b32 s{sBlk}, 0\ns_mov_b32 s{sG}, s{sGw}")
    a("s_waitcnt lgkmcnt(0)")
    stamp(6)
    for i in range(8):
        a(f"v_mov_b32 v{vEaA+i}, 0")
    a(f"s_cmp_eq_u32 s{sGw}, 0")
    a("s_cbranch_scc1 Lk2_idle")
    a(".p2align 6")
    a("Lk2_blk:")
    a(f"v_and_b32 v{vTmp}, 28, v{vP}")
    a(f"v_lshlrev_b32 v{vTmp}, v{vShf}, v{vTmp}")
    nop(2)
    a(f"v_or_b32_dpp v{vTmp}, v{vTmp}, v{vTmp} quad_perm:[1,0,3,2] row_mask:0xf bank_mask:0xf")
    nop(2)
    a(f"v_or_b32_dpp v{vTmp}, v{vTmp}, v{vTmp} quad_perm:[2,3,0,1] row_mask:0xf bank_mask:0xf")
    nop(1)
    for i in range(8):
        a(f"v_readlane_b32 s{sI+i}, v{vTmp}, {4*i}")
    for p in range(16):
        g, pp = p // 8, p % 8
        sl = p % 3
        if pp == 0:
            a(f"s_add_u32 s{sErr}, s{sErr}, s{sGmax}")
            a(f"Lk2_bar{g}:")
            a("s_barrier")
            a(f"s_sub_u32 s{sErr}, s{sErr}, s{sGw}")
            a(f"s_cmp_ge_u32 s{sErr}, s{sGw}")
            a(f"s_cbranch_scc1 Lk2_bar{g}")
            a(f"s_mov_b64 exec, s[{sEx}:{sEx+1}]")
            a(f"ds_read_b128 v[{vEaA}:{vEaA+3}], v{vEa} offset:{g*512}")
            a(f"ds_read_b128 v[{vEaA+4}:{vEaA+7}], v{vEa} offset:{g*512+16}")
            a("s_mov_b64 exec, -1")
        a("s_waitcnt vmcnt(2)")
        a(f"ds_read_b64_tr_b16 v[{vB}:{vB+1}], v{vT[sl]}")
        a(f"ds_read_b64_tr_b16 v[{vB+2}:{vB+3}], v{vT[sl]} offset:256")
        if pp == 0:
            q0, q1 = 2*g, 2*g+1
            a(f"v_mov_b32_dpp v{vD+4}, v{vSH} quad_perm:[{q0},{q0},{q0},{q0}] row_mask:0xf bank_mask:0xf")
            a(f"v_mov_b32_dpp v{vD+5}, v{vSH} quad_perm:[{q1},{q1},{q1},{q1}] row_mask:0xf bank_mask:0xf")
            for u in range(4):
                a(f"v_dot2_f32_bf16 v{vD+u}, v{vD+4}, v{vCg+u}, 0")
            for u in range(4):
                a(f"v_dot2_f32_bf16 v{vD+u}, v{vD+5}, v{vCg+4+u}, v{vD+u}")
            nop(1)
            a(f"v_cvt_pk_bf16_f32 v{vA}, v{vD}, v{vD+1}")
            nop(1)
            a(f"v_cvt_pk_bf16_f32 v{vA+1}, v{vD+2}, v{vD+3}")
        if p == 13:
            a(f"s_add_u32 s{sBlk}, s{sBlk}, 1")
            a(f"s_min_u32 s{sBlk}, s{sBlk}, {NB-1}")
            a(f"s_set_gpr_idx_on s{sBlk}, 0x1")
            a(f"v_mov_b32 v{vP}, v{vPr}")
            a(f"v_mov_b32 v{vSH}, v{vSr}")
            a("s_set_gpr_idx_off")
            a(f"v_and_b32 v{vK}, 0xfffe00, v{vP}")
            if OPT["safe"]: a(f"v_min_u32 v{vK}, {(NN-1)*512}, v{vK}")
        a(f"s_mov_b32 m0, s{sM0[sl]}")
        a("s_waitcnt lgkmcnt(0)")
        dma = [f"v_add_u32_dpp v{vAdr}, v{vK}, v{vLs} row_newbcast:{(p+3)%16} row_mask:0xf bank_mask:0xf",
               f"global_load_lds_dwordx4 v{vAdr}, s[{sX}:{sX+1}]{fl(OPT['xfl'])}"]
        tp = [f"v_mfma_f32_4x4x4_16b_bf16 v[{vD+4*s}:{vD+4*s+3}], v[{vA}:{vA+1}], v[{vB+2*s}:{vB+2*s+1}], 0 cbsz:4 abid:{2*pp+s}" for s in range(2)]
        if pp == 0:
            for x in dma: a(x)
            a(f"v_mfma_f32_32x32x16_bf16 v[{vRw}:{vRw+15}], v[{vEaA}:{vEaA+3}], v[{vWr}:{vWr+3}], 0")
            a(f"v_mfma_f32_32x32x16_bf16 v[{vRw}:{vRw+15}], v[{vEaA+4}:{vEaA+7}], v[{vWr+4}:{vWr+7}], v[{vRw}:{vRw+15}]")
            for x in tp: a(x)
            nop(9)
        else:
            for x in tp: a(x)
            for x in dma: a(x)
            if p % 4 == 0: nop(1)
        for s in range(2):
            si = sI + 4*s + p//4
            if p % 4: a(f"s_lshr_b32 s{si}, s{si}, 8")
            j = 2*pp + s
            if OPT["fma"] == "pk":
                a(f"s_set_gpr_idx_on s{si}, 0xc" if s == 0 else f"s_set_gpr_idx_idx s{si}")
                sel = "op_sel_hi:[1,0,1]" if s == 0 else "op_sel:[0,1,0] op_sel_hi:[1,1,1]"
                for h in range(2):
                    a(f"v_pk_fma_f32 v[{ACC+2*h}:{ACC+2*h+1}], v[{vD+4*s+2*h}:{vD+4*s+2*h+1}], v[{vRw+2*pp}:{vRw+2*pp+1}], v[{ACC+2*h}:{ACC+2*h+1}] {sel}")
            else:
                a(f"s_set_gpr_idx_on s{si}, 0x8" if s == 0 else f"s_set_gpr_idx_idx s{si}")
                for w in range(4):
                    a(f"v_fmac_f32 v{ACC+w}, v{vD+4*s+w}, v{vRw+j}")
        a("s_set_gpr_idx_off")
        if pp == 7:
            a(f"s_sub_u32 s{sG}, s{sG}, 1")
            a(f"s_cmp_eq_u32 s{sG}, 0")
            a("s_cbranch_scc1 Lk2_done")
    a(f"v_swap_b32 v{vT[0]}, v{vT[1]}")
    a(f"v_swap_b32 v{vT[1]}, v{vT[2]}")
    a(f"v_add_u32 v{vEa}, 1024, v{vEa}")
    a(f"s_mov_b32 s{sT0}, s{sM0[0]}\ns_mov_b32 s{sM0[0]}, s{sM0[1]}\ns_mov_b32 s{sM0[1]}, s{sM0[2]}\ns_mov_b32 s{sM0[2]}, s{sT0}")
    a("s_branch Lk2_blk")
    a("Lk2_idle:")
    a(f"s_cmp_eq_u32 s{sGmax}, 0")
    a("s_cbranch_scc1 Lk2_done")
    a("s_barrier")
    a(f"s_sub_u32 s{sGmax}, s{sGmax}, 1")
    a("s_branch Lk2_idle")
    a("Lk2_slow:")
    a(f"s_mov_b32 s{sL}, {NB*32}")
    a("s_waitcnt vmcnt(0) lgkmcnt(0)")
    a("s_barrier")
    a("s_branch Lk2_round")
    a("Lk2_done:")
    stamp(7)
    a(f"s_add_u32 s{sBase}, s{sBase}, s{sN}")
    a(f"s_cmp_ge_u32 s{sBase}, s{sTot}")
    a("s_cbranch_scc1 Lk2_epi")
    a("s_waitcnt vmcnt(0)")
    a("s_barrier")
    a("s_branch Lk2_round")
    a("Lk2_epi:")
    a(f"v_lshlrev_b32 v{vTmp2}, 4, v{vLane}")
    a(f"v_add_u32 v{vTmp2}, 8192, v{vTmp2}")
    for i in range(8):
        a(f"global_load_dwordx4 v[{36+4*i}:{39+4*i}], v{vTmp2}, s[{sC}:{sC+1}] offset:{(i-4)*1024}")
    for i in range(14):
        a(f"v_cvt_pk_bf16_f32 v{68+i}, v{ACC+2*i}, v{ACC+2*i+1}")
    a(f"s_mul_i32 s{sT0}, s{sWave}, 4608")
    a(f"s_add_u32 s{sT0}, s{sT0}, {EA0}")
    a(f"v_mov_b32 v12, s{sT0}")
    a(f"v_mad_u32_u24 v12, v{vLane}, 36, v12")
    a(f"v_mad_u32_u24 v12, v{vLane}, 36, v12")
    a(f"v_lshrrev_b32 v13, 5, v{vLane}")
    a(f"v_bfe_u32 v14, v{vLane}, 2, 2")
    a("v_lshl_add_u32 v13, v13, 3, v14")
    a("v_mul_u32_u24 v13, 72, v13")
    a(f"v_bfe_u32 v14, v{vLane}, 4, 1")
    a("v_lshl_add_u32 v13, v14, 5, v13")
    a(f"v_add3_u32 v13, v13, v{vShf}, s{sT0}")
    a(f"s_mul_i32 s{sT1}, s{sBin}, {NPB}")
    a(f"s_add_u32 s{sT1}, s{sT1}, s{sWave}")
    a(f"s_lshl_b32 s{sT1}, s{sT1}, 9")
    a(f"v_lshrrev_b32 v14, 5, v{vLane}")
    a(f"v_lshl_add_u32 v14, v14, 13, s{sT1}")
    a(f"v_and_b32 v15, 31, v{vLane}")
    a("v_lshl_add_u32 v14, v15, 2, v14")
    a("s_barrier")
    for i in range(7):
        a(f"ds_write_b64 v12, v[{68+2*i}:{69+2*i}] offset:{8*i}")
    a("s_waitcnt lgkmcnt(0)")
    for s in range(4):
        for m in range(2):
            a(f"ds_read_b64_tr_b16 v[{68+4*s+2*m}:{69+4*s+2*m}], v13 offset:{(16*s+4*m)*72}")
    a("s_waitcnt vmcnt(0) lgkmcnt(0)")
    stamp(8)
    for s in range(4):
        for t in range(2):
            c = "0" if s == 0 else f"v[{ACC+16*t}:{ACC+16*t+15}]"
            a(f"v_mfma_f32_32x32x16_bf16 v[{ACC+16*t}:{ACC+16*t+15}], v[{68+4*s}:{71+4*s}], v[{36+8*s+4*t}:{39+8*s+4*t}], {c}")
    a(f"s_mov_b32 s{sT1}, 16384\ns_mov_b32 s{sT2}, 32768\ns_mov_b32 s{sT3}, 49152")
    nop(10)
    for r in range(16):
        q, t = r // 4, r % 4
        if r == 12:
            a(f"s_cmp_ge_u32 s{sWave}, {NPB-96}")
            a("s_cbranch_scc1 Lk2_fin")
            a("s_mov_b32 exec_hi, 0")
        a(f"v_cvt_pk_bf16_f32 v{36+r}, v{ACC+r}, v{ACC+16+r}")
        so = "0" if q == 0 else f"s{sT0+q}"
        a(f"buffer_store_dword v{36+r}, v14, s[{sOsrd}:{sOsrd+3}], {so} offen offset:{t*128}{fl(OPT['outst'])}")
    a("Lk2_fin:")
    if OPT["stamps"]:
        stamp(9)
        a("s_waitcnt vmcnt(0)")
        stamp(10)
        stamp_out(1, 11, sWs, sWave)
    a("Lk2_end:")
    a("s_endpgm")

hdr = open("standalone__tensor_product_equiv_mace__graph.s.ref").read().split("; Override launch")[0]
out = hdr
out += f"; @launch kernel=mace_bin_kernel grid=({NCH+1},1,1) block=(640,1,1) lds={K1_LDS}\n"
out += f"; @launch kernel=mace_main_kernel grid=(256,1,1) block=(1024,1,1) lds={K2_LDS}\n"
out += '.amdgcn_target "amdgcn-amd-amdhsa--gfx950"\n.text\n'
k1(); k2()
out += "\n".join(("    " + l if l and not l.endswith(":") and not l.startswith(".") else l) for l in L) + "\n"
out += '.section .rodata,"a"\n.p2align 6\n' + kd("mace_bin_kernel", 80) + ".p2align 6\n" + kd("mace_main_kernel", 128)
open(sys.argv[1], "w").write(out)
```

```python
import sys
OPT = dict(dbgwg=-1, safe=0, stamps=0, ntl=1, nts="", pf=1, fma="pk", ksld="", eald="", outst="", xfl="")
for a in sys.argv[2:]:
    k, v = a.split("=")
    OPT[k] = int(v) if v.lstrip("-").isdigit() else v
for k in ("nts","ksld","eald","outst","xfl"):
    OPT[k] = "" if OPT[k] in (0,"") else str(OPT[k]).replace("+"," ")

NN, NE = 25000, 800000
CH, NCH = 3200, 250
NPB = 98
MAGIC, MSH = 42800, 22
assert all((d*MAGIC) >> MSH == d//NPB for d in range(NN))
WS_TAB, WS_CONST, WS_KS, WS_EA, WS_STAMP = 0, 0x40000, 0x100000, 0xB00000, 128 << 20
CAP, NB = 3520, 10

L = []
def a(s):
    for ln in s.split("\n"):
        L.append(ln)
def nop(n):
    a(f"s_nop {n-1}")
NT = " nt" if OPT["ntl"] else ""
def fl(x): return (" " + x) if x else ""

def stamp(i):
    if OPT["stamps"]:
        a(f"s_memrealtime s[{64+2*i}:{65+2*i}]")
def stamp_out(k, n, sws, swave):
    if not OPT["stamps"]: return
    a(f"s_cmp_lg_u32 s{swave}, {OPT['stamps']-1}")
    a(f"s_cbranch_scc1 Lnostamp{k}")
    if OPT["dbgwg"] >= 0:
        a(f"s_cmp_lg_u32 s2, {OPT['dbgwg']}")
        a(f"s_cbranch_scc1 Lnostamp{k}")
        a("s_load_dwordx2 s[62:63], s[0:1], 72")
        a("s_waitcnt lgkmcnt(0)")
        a("s_mov_b64 exec, 1")
        a("v_mov_b32 v1, 0")
        sel = [0,1,2,3,5] if k == 0 else list(range(11))
        for j, i in enumerate(sel):
            a(f"v_mov_b32 v2, s{64+2*i}")
            a(f"global_store_dword v1, v2, s[62:63] offset:{4*j if k == 0 else 4*(j+5)-512}")
        a(f"Lnostamp{k}:")
        return
    a("s_waitcnt lgkmcnt(0)")
    a("s_mov_b64 exec, 1")
    a(f"s_lshl_b32 s62, s2, 6\ns_add_u32 s62, s62, {WS_STAMP + k*256*64}")
    a("v_mov_b32 v1, s62")
    for i in range(n):
        a(f"v_mov_b32 v2, s{64+2*i}")
        a(f"global_store_dword v1, v2, s[{sws}:{sws+1}] offset:{4*i}")
    a(f"Lnostamp{k}:")

def scan(c, s1, s2, x, tot):
    a(f"v_add_u32 v{s1}, v{c}, v{c+1}")
    a(f"v_add_u32 v{s2}, v{s1}, v{c+2}")
    a(f"v_add_u32 v{tot}, v{s2}, v{c+3}")
    a(f"v_mov_b32 v{x}, v{tot}")
    for d in ("row_shr:1", "row_shr:2", "row_shr:4", "row_shr:8"):
        nop(2)
        a(f"v_add_u32_dpp v{x}, v{x}, v{x} {d} row_mask:0xf bank_mask:0xf")
    nop(2)
    a(f"v_add_u32_dpp v{x}, v{x}, v{x} row_bcast:15 row_mask:0xa bank_mask:0xf")
    nop(2)
    a(f"v_add_u32_dpp v{x}, v{x}, v{x} row_bcast:31 row_mask:0xc bank_mask:0xf")

def kd(name, vg, sg=96):
    return f""".amdhsa_kernel {name}
  .amdhsa_next_free_vgpr {vg}
  .amdhsa_next_free_sgpr {sg}
  .amdhsa_accum_offset {vg}
  .amdhsa_group_segment_fixed_size 0
  .amdhsa_kernarg_size 88
  .amdhsa_user_sgpr_count 2
  .amdhsa_user_sgpr_kernarg_segment_ptr 1
  .amdhsa_system_sgpr_workgroup_id_x 1
  .amdhsa_float_denorm_mode_32 3
.end_amdhsa_kernel
"""

K1_HIST, K1_BASE, K1_INV, K1_KS, K1_EA, K1_LDS = 0, 1024, 2048, 14848, 53248, 155648
def k1():
    a(".globl mace_bin_kernel\n.p2align 8\n.type mace_bin_kernel,@function\nmace_bin_kernel:")
    stamp(0)
    a(f"s_cmp_gt_u32 s2, {NCH}")
    a("s_cbranch_scc1 Lk1_end")
    a(f"s_cmp_eq_u32 s2, {NCH}")
    a("s_cbranch_scc1 Lk1_prep")
    a("s_load_dwordx4 s[4:7], s[0:1], 8")
    a("s_load_dwordx4 s[8:11], s[0:1], 24")
    a("s_load_dwordx2 s[12:13], s[0:1], 80")
    a("v_lshrrev_b32 v1, 6, v0")
    a("v_and_b32 v2, 63, v0")
    a("v_readfirstlane_b32 s14, v1")
    a("v_lshlrev_b32 v3, 2, v0")
    a("v_mov_b32 v4, 0")
    a("ds_write_b32 v3, v4")
    a("v_lshlrev_b32 v3, 2, v2")
    a("v_lshlrev_b32 v4, 3, v2")
    a("v_lshlrev_b32 v5, 4, v2")
    a(f"s_mul_i32 s15, s2, {CH}")
    a("s_mul_i32 s16, s14, 320")
    a("s_add_u32 s15, s15, s16")
    a("s_lshl_b32 s17, s15, 2")
    a("s_lshl_b32 s18, s15, 3")
    a("s_lshl_b32 s19, s15, 5")
    a("s_waitcnt lgkmcnt(0)")
    a("s_add_u32 s6, s6, s17\ns_addc_u32 s7, s7, 0")
    for k in range(5):
        a(f"global_load_dword v{10+k}, v3, s[6:7] offset:{k*256}{NT}")
    a("s_add_u32 s4, s4, s17\ns_addc_u32 s5, s5, 0")
    for k in range(5):
        a(f"global_load_dword v{15+k}, v3, s[4:5] offset:{k*256}{NT}")
    a("s_add_u32 s8, s8, s18\ns_addc_u32 s9, s9, 0")
    for k in range(5):
        a(f"global_load_dwordx2 v[{20+2*k}:{21+2*k}], v4, s[8:9] offset:{k*512}{NT}")
    a("s_add_u32 s10, s10, s19\ns_addc_u32 s11, s11, 0")
    a("s_lshl_b32 s20, s16, 5")
    a(f"s_add_u32 s20, s20, {K1_EA}")
    for i in range(10):
        if i % 4 == 0:
            a(f"s_add_u32 m0, s20, {i*1024}")
            a(f"v_add_u32 v6, {i*1024}, v5")
        a(f"global_load_lds_dwordx4 v6, s[10:11] offset:{(i%4)*1024}{NT}")
    a("s_barrier")
    a(f"s_mov_b32 s21, {MAGIC}")
    a(f"s_mov_b32 s22, {-NPB}")
    a("v_mov_b32 v7, 1")
    a("s_waitcnt vmcnt(20)")
    stamp(1)
    for k in range(5):
        a(f"v_mul_u32_u24 v{30+k}, s21, v{10+k}")
        a(f"v_lshrrev_b32 v{30+k}, {MSH}, v{30+k}")
        a(f"v_mad_i32_i24 v{10+k}, v{30+k}, s22, v{10+k}")
        a(f"v_lshlrev_b32 v{30+k}, 2, v{30+k}")
        a(f"ds_add_rtn_u32 v{35+k}, v{30+k}, v7 offset:{K1_HIST}")
    a("s_waitcnt lgkmcnt(0)")
    a("s_barrier")
    a(f"ds_read_b128 v[40:43], v5 offset:{K1_HIST}")
    a("s_mul_i32 s23, s14, 26")
    a("v_add_u32 v48, s23, v2")
    a("v_cmp_gt_u32 s[24:25], 26, v2")
    a("v_cmp_gt_u32 vcc, 0x100, v48")
    a("s_and_b64 s[24:25], s[24:25], vcc")
    a("v_and_b32 v48, 0xff, v48")
    a("v_lshlrev_b32 v49, 2, v48")
    a("v_lshlrev_b32 v48, 10, v48")
    a("s_lshl_b32 s23, s2, 2")
    a("v_add_u32 v48, s23, v48")
    a("s_waitcnt lgkmcnt(0)")
    scan(40, 44, 45, 46, 47)
    a("v_sub_u32 v46, v46, v47")
    a("v_add_u32 v41, v46, v40")
    a("v_add_u32 v42, v46, v44")
    a("v_add_u32 v43, v46, v45")
    a("v_mov_b32 v40, v46")
    a(f"ds_write_b128 v5, v[40:43] offset:{K1_BASE}")
    for k in range(5):
        a(f"ds_read_b32 v{30+k}, v{30+k} offset:{K1_BASE}")
    a(f"ds_read_b32 v50, v49 offset:{K1_BASE}")
    a(f"ds_read_b32 v51, v49 offset:{K1_HIST}")
    a("s_waitcnt vmcnt(10)")
    for k in range(5):
        a(f"v_and_b32 v52, 15, v{10+k}")
        a(f"v_lshrrev_b32 v{10+k}, 4, v{10+k}")
        a(f"v_lshlrev_b32 v52, 24, v52")
        a(f"v_lshl_or_b32 v52, v{10+k}, 2, v52")
        a(f"v_lshl_or_b32 v{15+k}, v{15+k}, 9, v52")
    a("v_lshl_add_u32 v53, v2, 5, s20")
    a("s_waitcnt lgkmcnt(0)")
    a("v_lshl_or_b32 v50, v51, 16, v50")
    a("s_mov_b64 exec, s[24:25]")
    a(f"global_store_dword v48, v50, s[12:13]")
    a("s_mov_b64 exec, -1")
    for k in range(5):
        a(f"v_add_u32 v{30+k}, v{30+k}, v{35+k}")
        a(f"v_lshlrev_b32 v{35+k}, 2, v{30+k}")
        a(f"v_mul_u32_u24 v{30+k}, 12, v{30+k}")
        if k: a(f"v_add_u32 v{53+k}, {k*2048}, v53")
        a(f"ds_write_b32 v{35+k}, v{53+k} offset:{K1_INV}")
        a(f"v_add_u32 v{30+k}, {K1_KS}, v{30+k}")
        a(f"ds_write_b32 v{30+k}, v{15+k}")
        a(f"ds_write2_b32 v{30+k}, v{20+2*k}, v{21+2*k} offset0:1 offset1:2")
    a("s_waitcnt lgkmcnt(0)")
    a("s_barrier")
    stamp(2)
    a("s_mul_i32 s23, s14, 3840")
    a("v_add_u32 v8, s23, v5")
    for i in range(4):
        a(f"ds_read_b128 v[{12+4*i}:{15+4*i}], v8 offset:{K1_KS+i*1024}")
    a("v_lshrrev_b32 v9, 1, v2")
    a("v_add_u32 v9, s16, v9")
    a("v_lshlrev_b32 v9, 2, v9")
    for i in range(10):
        a(f"ds_read_b32 v{30+i}, v9 offset:{K1_INV+i*128}")
    a(f"s_mul_i32 s23, s2, {CH*12}")
    a(f"s_add_u32 s23, s23, {WS_KS}")
    a("s_add_u32 s26, s12, s23\ns_addc_u32 s27, s13, 0")
    a(f"s_add_u32 s19, s19, {WS_EA}")
    a("s_add_u32 s28, s12, s19\ns_addc_u32 s29, s13, 0")
    a("v_and_b32 v10, 1, v2")
    a("v_lshlrev_b32 v10, 4, v10")
    a("s_waitcnt lgkmcnt(10)")
    for i in range(4):
        if i == 3: a("s_mov_b32 exec_hi, 0xffff")
        a(f"global_store_dwordx4 v8, v[{12+4*i}:{15+4*i}], s[26:27] offset:{i*1024}{fl(OPT['nts'])}")
    a("s_mov_b64 exec, -1")
    a("s_waitcnt lgkmcnt(0)")
    for i in range(10):
        a(f"v_add_u32 v{30+i}, v{30+i}, v10")
    a("s_waitcnt vmcnt(5)")
    a("s_barrier")
    stamp(3)
    for i in range(10):
        a(f"ds_read_b128 v[{40+4*i}:{43+4*i}], v{30+i}")
    a("v_add_u32 v6, 4096, v5")
    a("v_add_u32 v7, 8192, v5")
    for i in range(10):
        a(f"s_waitcnt lgkmcnt({9-i})")
        a(f"global_store_dwordx4 v{5+i//4}, v[{40+4*i}:{43+4*i}], s[28:29] offset:{(i%4)*1024}{fl(OPT['nts'])}")
    if OPT["stamps"]:
        stamp(4)
        a("s_waitcnt vmcnt(0)")
        stamp(5)
        stamp_out(0, 6, 12, 14)
    a("Lk1_end:")
    a("s_endpgm")
    a("Lk1_prep:")
    a("s_load_dwordx4 s[4:7], s[0:1], 40")
    a("s_load_dwordx2 s[8:9], s[0:1], 56")
    a("s_load_dwordx2 s[12:13], s[0:1], 80")
    a("v_lshrrev_b32 v1, 6, v0")
    a("v_and_b32 v2, 63, v0")
    a("v_readfirstlane_b32 s14, v1")
    a("v_lshlrev_b32 v5, 4, v2")
    a("s_waitcnt lgkmcnt(0)")
    a(f"s_add_u32 s12, s12, {WS_CONST}\ns_addc_u32 s13, s13, 0")
    def gather8(base, offs, dstoff_s):
        for k in range(8):
            a(f"global_load_ushort v{10+k}, v3, s[{base}:{base+1}] offset:{offs[k]}")
        a("s_waitcnt vmcnt(0)")
        for k in range(4):
            a(f"v_lshl_or_b32 v{20+k}, v{11+2*k}, 16, v{10+2*k}")
        a(f"v_add_u32 v6, s{dstoff_s}, v5")
        a("global_store_dwordx4 v6, v[20:23], s[12:13]")
        a("s_waitcnt vmcnt(0)")
    a("s_cmp_ge_u32 s14, 8")
    a("s_cbranch_scc1 Lk1_prep2")
    a("s_lshr_b32 s15, s14, 1")
    a("s_and_b32 s16, s14, 1")
    a("s_lshl_b32 s15, s15, 11")
    a("s_lshl_b32 s16, s16, 1")
    a("s_add_u32 s15, s15, s16")
    a("v_lshrrev_b32 v3, 5, v2")
    a("v_lshlrev_b32 v3, 10, v3")
    a("v_and_b32 v4, 31, v2")
    a("v_lshl_add_u32 v3, v4, 2, v3")
    a("v_add_u32 v3, s15, v3")
    a("s_lshl_b32 s17, s14, 10")
    a("s_add_u32 s17, s17, 4096")
    gather8(8, [k*128 for k in range(8)], 17)
    a("s_endpgm")
    a("Lk1_prep2:")
    a("s_sub_u32 s14, s14, 8")
    a("s_lshl_b32 s17, s14, 10")
    a("v_lshl_add_u32 v3, v2, 1, s17")
    gather8(6, [k*128 for k in range(8)], 17)
    a("s_lshl_b32 s15, s14, 4")
    a("v_and_b32 v3, 3, v2")
    a("v_lshl_add_u32 v3, v3, 1, s15")
    a("s_add_u32 s17, s17, 2048")
    gather8(4, [(k//2)*32 + (k%2)*8 for k in range(8)], 17)
    a("s_endpgm")

RING, HIST, BASE, EA0, K2_LDS = 0, 49152, 50176, 51200, 163840
S0, SHS = 0, CAP*4
vLs, vT, vEa, vShf, vK, vP, vSH, vAdr, vTmp = 1, [2,3,4], 5, 6, 7, 8, 9, 10, 11
vA, vB, vLane, vTmp2 = 12, 14, 18, 19
vWr, vCg, vEaA, vD, vRw, vPr, vSr, vPos, vG, ACC = 20, 28, 36, 44, 52, 68, 78, 88, 92, 96
sX, sOut, sKS, sEA, sC, sWs = 4, 6, 8, 10, 12, 14
sTab, sOsrd = 16, 20
sWave, sBin, sTot, sBase, sL, sN, sStart, sCnt, sG, sGw, sGmax, sErr, sBlk = 24,25,26,27,28,29,30,31,32,33,34,35,36
sM0 = [37,38,39]
sI = 40
sMk = 48
sEx = 56
sT0, sT1, sT2, sT3 = 58, 59, 60, 61

def k2():
    a(".globl mace_main_kernel\n.p2align 8\n.type mace_main_kernel,@function\nmace_main_kernel:")
    stamp(0)
    a("s_cmp_ge_u32 s2, 256")
    a("s_cbranch_scc1 Lk2_end")
    a(f"s_load_dwordx2 s[{sWs}:{sWs+1}], s[0:1], 80")
    a(f"s_load_dwordx2 s[{sX}:{sX+1}], s[0:1], 0")
    a(f"s_load_dwordx2 s[{sOut}:{sOut+1}], s[0:1], 64")
    a(f"v_lshrrev_b32 v{vTmp}, 6, v0")
    a(f"v_and_b32 v{vLane}, 63, v0")
    a(f"v_readfirstlane_b32 s{sWave}, v{vTmp}")
    a(f"s_and_b32 s{sBin}, s2, 7")
    a(f"s_lshl_b32 s{sBin}, s{sBin}, 5")
    a(f"s_lshr_b32 s{sT0}, s2, 3")
    a(f"s_add_u32 s{sBin}, s{sBin}, s{sT0}")
    a(f"s_lshl_b32 s{sT0}, s{sBin}, 10")
    a(f"v_lshlrev_b32 v{vTmp2}, 4, v{vLane}")
    a(f"s_mov_b32 s{sTab+2}, {NCH*4}")
    a(f"s_mov_b32 s{sTab+3}, 0x20000")
    a("s_waitcnt lgkmcnt(0)")
    a(f"s_add_u32 s{sTab}, s{sWs}, s{sT0}")
    a(f"s_addc_u32 s{sTab+1}, s{sWs+1}, 0")
    a(f"buffer_load_dwordx4 v[36:39], v{vTmp2}, s[{sTab}:{sTab+3}], 0 offen")
    a(f"s_add_u32 s{sC}, s{sWs}, {WS_CONST}\ns_addc_u32 s{sC+1}, s{sWs+1}, 0")
    for i in range(4):
        a(f"global_load_dwordx4 v[{vWr+4*i}:{vWr+4*i+3}], v{vTmp2}, s[{sC}:{sC+1}] offset:{i*1024}")
    npre = 4
    if OPT["pf"]:
        a(f"s_min_u32 s{sT0}, s2, 249")
        a(f"s_lshl_b32 s{sT0}, s{sT0}, 4")
        a(f"s_add_u32 s{sT0}, s{sT0}, s{sWave}")
        a(f"s_mul_i32 s{sT0}, s{sT0}, 3200")
        a(f"v_min_u32 v{vTmp}, 24, v{vLane}")
        a(f"v_lshl_add_u32 v{vTmp}, v{vTmp}, 7, s{sT0}")
        a(f"global_load_dword v{vAdr}, v{vTmp}, s[{sX}:{sX+1}]")
        npre += 1
    a(f"s_add_u32 s{sKS}, s{sWs}, {WS_KS}\ns_addc_u32 s{sKS+1}, s{sWs+1}, 0")
    a(f"s_add_u32 s{sEA}, s{sWs}, {WS_EA}\ns_addc_u32 s{sEA+1}, s{sWs+1}, 0")
    a(f"s_mov_b32 s{sOsrd}, s{sOut}\ns_mov_b32 s{sOsrd+1}, s{sOut+1}\ns_mov_b32 s{sOsrd+2}, {NN*512}\ns_mov_b32 s{sOsrd+3}, 0x20000")
    a(f"s_mov_b32 s{sBase}, 0\ns_mov_b32 s{sL}, {CAP}")
    a(f"s_mov_b32 s{sEx}, 0x0f0f0f0f\ns_mov_b32 s{sEx+1}, 0xf0f0f0f0")
    for i in range(32):
        a(f"v_mov_b32 v{ACC+i}, 0")
    a(f"v_bfe_u32 v40, v{vLane}, 2, 2")
    a(f"v_and_b32 v41, 3, v{vLane}")
    a(f"v_lshrrev_b32 v42, 5, v{vLane}")
    a(f"v_lshlrev_b32 v{vLs}, 7, v40")
    a(f"v_lshl_add_u32 v{vLs}, v42, 6, v{vLs}")
    a(f"v_lshl_add_u32 v{vLs}, v41, 4, v{vLs}")
    a(f"v_lshlrev_b32 v{vShf}, 3, v41")
    a(f"s_waitcnt vmcnt({npre})")
    a("s_branch Lk2_havetab")
    a("Lk2_round:")
    a(f"v_lshlrev_b32 v{vTmp2}, 4, v{vLane}")
    a(f"buffer_load_dwordx4 v[36:39], v{vTmp2}, s[{sTab}:{sTab+3}], 0 offen")
    a("s_waitcnt vmcnt(0)")
    a("Lk2_havetab:")
    stamp(1)
    a(f"v_and_b32 v60, 0xff, v0")
    a(f"v_lshlrev_b32 v60, 2, v60")
    a(f"v_mov_b32 v61, 0")
    a(f"ds_write_b32 v60, v61 offset:{HIST}")
    a(f"v_mul_u32_u24 v52, {4*CH}, v{vLane}")
    for j in range(4):
        a(f"v_lshrrev_b32 v{40+j}, 16, v{36+j}")
        a(f"v_and_b32 v{44+j}, 0xffff, v{36+j}")
        if j: a(f"v_add_u32 v52, {CH}, v52")
        a(f"v_add_u32 v{44+j}, v{44+j}, v52")
    scan(40, 53, 54, 55, 56)
    a("v_sub_u32 v48, v55, v56")
    a(f"v_readlane_b32 s{sTot}, v55, 63")
    a("v_add_u32 v49, v48, v40")
    a("v_add_u32 v50, v48, v53")
    a("v_add_u32 v51, v48, v54")
    a(f"s_sub_u32 s{sN}, s{sTot}, s{sBase}")
    a(f"s_min_u32 s{sN}, s{sN}, s{sL}")
    a(f"s_cmp_eq_u32 s{sN}, s{sTot}")
    a("s_cbranch_scc1 Lk2_noclip")
    a(f"s_add_u32 s{sT0}, s{sBase}, s{sN}")
    for j in range(4):
        a(f"v_add_u32 v52, v{48+j}, v{40+j}")
        a(f"v_min_u32 v52, s{sT0}, v52")
        a(f"v_max_u32 v53, s{sBase}, v{48+j}")
        a(f"v_sub_u32 v52, v52, v53")
        a(f"v_max_i32 v{40+j}, 0, v52")
        a(f"v_sub_u32 v52, v53, v{48+j}")
        a(f"v_add_u32 v{44+j}, v{44+j}, v52")
        a(f"v_subrev_u32 v{48+j}, s{sBase}, v53")
    a("Lk2_noclip:")
    a(f"s_mov_b32 s{sT0}, s{sWave}")
    for j in range(4):
        a(f"v_add_lshl_u32 v{48+j}, v{48+j}, s{sWave}, 2")
        a(f"v_add_u32 v{44+j}, s{sWave}, v{44+j}")
    a("v_max_u32 v52, v40, v41")
    a("v_max3_u32 v52, v42, v43, v52")
    a("Lk2_exp:")
    for j in range(4):
        a(f"v_cmp_lt_u32 s[{sMk+2*j}:{sMk+2*j+1}], s{sT0}, v{40+j}")
    a(f"s_add_u32 s{sT0}, s{sT0}, 16")
    a(f"v_cmp_lt_u32 vcc, s{sT0}, v52")
    for j in range(4):
        a(f"s_mov_b64 exec, s[{sMk+2*j}:{sMk+2*j+1}]")
        a(f"ds_write_b32 v{48+j}, v{44+j}")
    a("s_mov_b64 exec, -1")
    a("s_cbranch_vccz Lk2_expdone")
    a("s_waitcnt lgkmcnt(0)")
    for j in range(4):
        a(f"v_add_u32 v{48+j}, 64, v{48+j}")
        a(f"v_add_u32 v{44+j}, 16, v{44+j}")
    a("s_branch Lk2_exp")
    a("Lk2_expdone:")
    a(f"v_lshlrev_b32 v{vTmp}, 2, v0")
    for k in range(4):
        a(f"v_add_u32 v57, {1024*k}, v0")
        a(f"v_cmp_gt_u32 s[{sMk+2*k}:{sMk+2*k+1}], s{sN}, v57")
    a("s_waitcnt lgkmcnt(0)")
    a("s_barrier")
    for k in range(4):
        a(f"ds_read_b32 v{vG+k}, v{vTmp} offset:{k*4096}")
    for k in range(4):
        a(f"s_waitcnt lgkmcnt({3-k})" if not OPT["stamps"] else "s_waitcnt lgkmcnt(0)")
        a(f"v_cndmask_b32 v{vG+k}, 0, v{vG+k}, s[{sMk+2*k}:{sMk+2*k+1}]")
        if OPT["safe"]: a(f"v_min_u32 v{vG+k}, {NE-1}, v{vG+k}")
        a(f"v_mul_u32_u24 v{vPos+k}, 12, v{vG+k}")
        a(f"global_load_dwordx3 v[{68+4*k}:{70+4*k}], v{vPos+k}, s[{sKS}:{sKS+1}]{fl(OPT['ksld'])}")
    for k in range(4):
        a(f"v_lshlrev_b32 v{vG+k}, 5, v{vG+k}")
        a(f"global_load_dwordx4 v[{36+8*k}:{39+8*k}], v{vG+k}, s[{sEA}:{sEA+1}]{fl(OPT['eald'])}")
        a(f"global_load_dwordx4 v[{40+8*k}:{43+8*k}], v{vG+k}, s[{sEA}:{sEA+1}] offset:16{fl(OPT['eald'])}")
    stamp(2)
    a(f"v_mov_b32 v{vTmp}, 1")
    for k in range(4):
        a(f"s_waitcnt vmcnt({11-k})")
        a(f"v_lshrrev_b32 v{71+4*k}, 18, v{68+4*k}")
        a(f"v_and_b32 v{71+4*k}, 0x3fc, v{71+4*k}")
        a(f"s_mov_b64 exec, s[{sMk+2*k}:{sMk+2*k+1}]")
        a(f"ds_add_rtn_u32 v{vPos+k}, v{71+4*k}, v{vTmp} offset:{HIST}")
        a("s_mov_b64 exec, -1")
    stamp(3)
    a(f"v_lshlrev_b32 v{vTmp2}, 4, v{vLane}")
    a("s_waitcnt lgkmcnt(0)")
    a("s_barrier")
    a(f"ds_read_b128 v[84:87], v{vTmp2} offset:{HIST}")
    a(f"s_lshl_b32 s{sT1}, s{sWave}, 2")
    a("s_waitcnt lgkmcnt(0)")
    scan(84, 92, 93, 94, 95)
    a("v_sub_u32 v94, v94, v95")
    a("v_add_u32_dpp v95, v95, v95 quad_perm:[1,0,3,2] row_mask:0xf bank_mask:0xf")
    a("v_add_u32 v85, v94, v84")
    a("v_add_u32 v86, v94, v92")
    a("v_add_u32_dpp v95, v95, v95 quad_perm:[2,3,0,1] row_mask:0xf bank_mask:0xf")
    a("v_add_u32 v87, v94, v93")
    a("v_mov_b32 v84, v94")
    a(f"ds_write_b128 v{vTmp2}, v[84:87] offset:{BASE}")
    for k in range(4):
        a(f"ds_read_b32 v{71+4*k}, v{71+4*k} offset:{BASE}")
    a(f"v_readlane_b32 s{sStart}, v94, s{sT1}")
    a(f"v_readlane_b32 s{sCnt}, v95, s{sT1}")
    for d, rm in (("row_shr:4","0xf"), ("row_shr:8","0xf"), ("row_bcast:15","0xa"), ("row_bcast:31","0xc")):
        a(f"v_max_u32_dpp v95, v95, v95 {d} row_mask:{rm} bank_mask:0xf")
        nop(2)
    a(f"v_readlane_b32 s{sGmax}, v95, 63")
    nop(1)
    a(f"s_cmp_gt_u32 s{sGmax}, {NB*32}")
    a("s_cbranch_scc1 Lk2_slow")
    a(f"s_add_u32 s{sGmax}, s{sGmax}, 15\ns_lshr_b32 s{sGmax}, s{sGmax}, 4")
    a(f"s_add_u32 s{sGw}, s{sCnt}, 15\ns_lshr_b32 s{sGw}, s{sGw}, 4")
    a("s_waitcnt lgkmcnt(0)")
    for k in range(4):
        a(f"v_add_u32 v{vPos+k}, v{vPos+k}, v{71+4*k}")
        a(f"v_lshlrev_b32 v{71+4*k}, 2, v{vPos+k}")
        a(f"v_lshlrev_b32 v{vG+k}, 3, v{vPos+k}")
        a(f"v_add_u32 v{vG+k}, {SHS}, v{vG+k}")
        a(f"s_mov_b64 exec, s[{sMk+2*k}:{sMk+2*k+1}]")
        a(f"ds_write_b32 v{71+4*k}, v{68+4*k} offset:{S0}")
        a(f"ds_write2_b32 v{vG+k}, v{69+4*k}, v{70+4*k} offset0:0 offset1:1")
        a("s_mov_b64 exec, -1")
        a(f"v_lshlrev_b32 v{vPos+k}, 5, v{vPos+k}")
    a(f"v_and_b32 v12, 15, v{vLane}")
    a(f"v_bfe_u32 v13, v{vLane}, 4, 1")
    a("v_lshl_add_u32 v12, v12, 1, v13")
    a(f"v_add_lshl_u32 v13, v12, s{sStart}, 2")
    a(f"v_lshrrev_b32 v14, 2, v{vLane}")
    a(f"v_bfe_u32 v15, v{vLane}, 1, 1")
    a("v_lshl_add_u32 v14, v15, 4, v14")
    a(f"v_add_lshl_u32 v14, v14, s{sStart}, 3")
    a(f"v_and_b32 v15, 1, v{vLane}")
    a("v_lshl_add_u32 v14, v15, 2, v14")
    a("s_waitcnt lgkmcnt(0)")
    a("s_barrier")
    stamp(4)
    for b in range(NB):
        a(f"ds_read_b32 v{vPr+b}, v13 offset:{S0+b*128}")
    for b in range(NB):
        a(f"ds_read_b32 v{vSr+b}, v14 offset:{SHS+b*256}")
    a(f"s_mul_i32 s{sM0[0]}, s{sWave}, 3072")
    a(f"s_add_u32 s{sM0[1]}, s{sM0[0]}, 1024")
    a(f"s_add_u32 s{sM0[2]}, s{sM0[0]}, 2048")
    a(f"v_lshrrev_b32 v15, 5, v{vLane}")
    a(f"v_lshl_add_u32 v{vT[0]}, v15, 9, s{sM0[0]}")
    a(f"v_bfe_u32 v15, v{vLane}, 2, 2")
    a(f"v_lshl_add_u32 v{vT[0]}, v15, 6, v{vT[0]}")
    a(f"v_bfe_u32 v15, v{vLane}, 4, 1")
    a(f"v_lshl_add_u32 v{vT[0]}, v15, 5, v{vT[0]}")
    a(f"v_add_u32 v{vT[0]}, v{vT[0]}, v{vShf}")
    a(f"v_add_u32 v{vT[1]}, 1024, v{vT[0]}")
    a(f"v_add_u32 v{vT[2]}, 2048, v{vT[0]}")
    a(f"v_bfe_u32 v15, v{vLane}, 3, 2")
    a(f"v_and_b32 v16, 3, v{vLane}")
    a("v_lshl_add_u32 v15, v15, 2, v16")
    a(f"v_add_lshl_u32 v{vEa}, v15, s{sStart}, 5")
    a(f"v_add_u32 v{vEa}, {EA0}, v{vEa}")
    a(f"v_mov_b32 v16, 28")
    a(f"v_subrev_u32 v12, s{sCnt}, v12")
    a("s_waitcnt lgkmcnt(0)")
    a("s_barrier")
    for b in range(NB):
        a(f"v_cmp_gt_i32 vcc, {-32*b}, v12")
        nop(2)
        a(f"v_cndmask_b32 v{vPr+b}, v16, v{vPr+b}, vcc")
        if b == 0:
            a(f"v_and_b32 v{vK}, 0xfffe00, v{vPr}")
            if OPT["safe"]: a(f"v_min_u32 v{vK}, {(NN-1)*512}, v{vK}")
            a(f"v_mov_b32 v{vP}, v{vPr}")
            a(f"v_mov_b32 v{vSH}, v{vSr}")
            for p in range(3):
                a(f"s_mov_b32 m0, s{sM0[p]}")
                a(f"v_add_u32_dpp v{vAdr}, v{vK}, v{vLs} row_newbcast:{p} row_mask:0xf bank_mask:0xf")
                a(f"global_load_lds_dwordx4 v{vAdr}, s[{sX}:{sX+1}]{fl(OPT['xfl'])}")
    stamp(5)
    for k in range(4):
        a(f"s_waitcnt vmcnt({3+2*(3-k)})")
        a(f"s_mov_b64 exec, s[{sMk+2*k}:{sMk+2*k+1}]")
        a(f"ds_write_b128 v{vPos+k}, v[{36+8*k}:{39+8*k}] offset:{EA0}")
        a(f"ds_write_b128 v{vPos+k}, v[{40+8*k}:{43+8*k}] offset:{EA0+16}")
    a("s_mov_b64 exec, -1")
    a(f"s_mov_b32 s{sErr}, 0\ns_mov_b32 s{sBlk}, 0\ns_mov_b32 s{sG}, s{sGw}")
    a("s_waitcnt lgkmcnt(0)")
    stamp(6)
    for i in range(8):
        a(f"v_mov_b32 v{vEaA+i}, 0")
    a(f"s_cmp_eq_u32 s{sGw}, 0")
    a("s_cbranch_scc1 Lk2_idle")
    a(".p2align 6")
    a("Lk2_blk:")
    a(f"v_and_b32 v{vTmp}, 28, v{vP}")
    a(f"v_lshlrev_b32 v{vTmp}, v{vShf}, v{vTmp}")
    nop(2)
    a(f"v_or_b32_dpp v{vTmp}, v{vTmp}, v{vTmp} quad_perm:[1,0,3,2] row_mask:0xf bank_mask:0xf")
    nop(2)
    a(f"v_or_b32_dpp v{vTmp}, v{vTmp}, v{vTmp} quad_perm:[2,3,0,1] row_mask:0xf bank_mask:0xf")
    nop(1)
    for i in range(8):
        a(f"v_readlane_b32 s{sI+i}, v{vTmp}, {4*i}")
    for p in range(16):
        g, pp = p // 8, p % 8
        sl = p % 3
        if pp == 0:
            a(f"s_add_u32 s{sErr}, s{sErr}, s{sGmax}")
            a(f"Lk2_bar{g}:")
            a("s_barrier")
            a(f"s_sub_u32 s{sErr}, s{sErr}, s{sGw}")
            a(f"s_cmp_ge_u32 s{sErr}, s{sGw}")
            a(f"s_cbranch_scc1 Lk2_bar{g}")
            a(f"s_mov_b64 exec, s[{sEx}:{sEx+1}]")
            a(f"ds_read_b128 v[{vEaA}:{vEaA+3}], v{vEa} offset:{g*512}")
            a(f"ds_read_b128 v[{vEaA+4}:{vEaA+7}], v{vEa} offset:{g*512+16}")
            a("s_mov_b64 exec, -1")
        a("s_waitcnt vmcnt(2)")
        a(f"ds_read_b64_tr_b16 v[{vB}:{vB+1}], v{vT[sl]}")
        a(f"ds_read_b64_tr_b16 v[{vB+2}:{vB+3}], v{vT[sl]} offset:256")
        if pp == 0:
            q0, q1 = 2*g, 2*g+1
            a(f"v_mov_b32_dpp v{vD+4}, v{vSH} quad_perm:[{q0},{q0},{q0},{q0}] row_mask:0xf bank_mask:0xf")
            a(f"v_mov_b32_dpp v{vD+5}, v{vSH} quad_perm:[{q1},{q1},{q1},{q1}] row_mask:0xf bank_mask:0xf")
            for u in range(4):
                a(f"v_dot2_f32_bf16 v{vD+u}, v{vD+4}, v{vCg+u}, 0")
            for u in range(4):
                a(f"v_dot2_f32_bf16 v{vD+u}, v{vD+5}, v{vCg+4+u}, v{vD+u}")
            nop(1)
            a(f"v_cvt_pk_bf16_f32 v{vA}, v{vD}, v{vD+1}")
            nop(1)
            a(f"v_cvt_pk_bf16_f32 v{vA+1}, v{vD+2}, v{vD+3}")
        if p == 13:
            a(f"s_add_u32 s{sBlk}, s{sBlk}, 1")
            a(f"s_min_u32 s{sBlk}, s{sBlk}, {NB-1}")
            a(f"s_set_gpr_idx_on s{sBlk}, 0x1")
            a(f"v_mov_b32 v{vP}, v{vPr}")
            a(f"v_mov_b32 v{vSH}, v{vSr}")
            a("s_set_gpr_idx_off")
            a(f"v_and_b32 v{vK}, 0xfffe00, v{vP}")
            if OPT["safe"]: a(f"v_min_u32 v{vK}, {(NN-1)*512}, v{vK}")
        a(f"s_mov_b32 m0, s{sM0[sl]}")
        a("s_waitcnt lgkmcnt(0)")
        dma = [f"v_add_u32_dpp v{vAdr}, v{vK}, v{vLs} row_newbcast:{(p+3)%16} row_mask:0xf bank_mask:0xf",
               f"global_load_lds_dwordx4 v{vAdr}, s[{sX}:{sX+1}]{fl(OPT['xfl'])}"]
        tp = [f"v_mfma_f32_4x4x4_16b_bf16 v[{vD+4*s}:{vD+4*s+3}], v[{vA}:{vA+1}], v[{vB+2*s}:{vB+2*s+1}], 0 cbsz:4 abid:{2*pp+s}" for s in range(2)]
        if pp == 0:
            for x in dma: a(x)
            a(f"v_mfma_f32_32x32x16_bf16 v[{vRw}:{vRw+15}], v[{vEaA}:{vEaA+3}], v[{vWr}:{vWr+3}], 0")
            a(f"v_mfma_f32_32x32x16_bf16 v[{vRw}:{vRw+15}], v[{vEaA+4}:{vEaA+7}], v[{vWr+4}:{vWr+7}], v[{vRw}:{vRw+15}]")
            for x in tp: a(x)
            nop(9)
        else:
            for x in tp: a(x)
            for x in dma: a(x)
            if p % 4 == 0: nop(1)
        for s in range(2):
            si = sI + 4*s + p//4
            if p % 4: a(f"s_lshr_b32 s{si}, s{si}, 8")
            j = 2*pp + s
            if OPT["fma"] == "pk":
                a(f"s_set_gpr_idx_on s{si}, 0xc" if s == 0 else f"s_set_gpr_idx_idx s{si}")
                sel = "op_sel_hi:[1,0,1]" if s == 0 else "op_sel:[0,1,0] op_sel_hi:[1,1,1]"
                for h in range(2):
                    a(f"v_pk_fma_f32 v[{ACC+2*h}:{ACC+2*h+1}], v[{vD+4*s+2*h}:{vD+4*s+2*h+1}], v[{vRw+2*pp}:{vRw+2*pp+1}], v[{ACC+2*h}:{ACC+2*h+1}] {sel}")
            else:
                a(f"s_set_gpr_idx_on s{si}, 0x8" if s == 0 else f"s_set_gpr_idx_idx s{si}")
                for w in range(4):
                    a(f"v_fmac_f32 v{ACC+w}, v{vD+4*s+w}, v{vRw+j}")
        a("s_set_gpr_idx_off")
        if pp == 7:
            a(f"s_sub_u32 s{sG}, s{sG}, 1")
            a(f"s_cmp_eq_u32 s{sG}, 0")
            a("s_cbranch_scc1 Lk2_done")
    a(f"v_swap_b32 v{vT[0]}, v{vT[1]}")
    a(f"v_swap_b32 v{vT[1]}, v{vT[2]}")
    a(f"v_add_u32 v{vEa}, 1024, v{vEa}")
    a(f"s_mov_b32 s{sT0}, s{sM0[0]}\ns_mov_b32 s{sM0[0]}, s{sM0[1]}\ns_mov_b32 s{sM0[1]}, s{sM0[2]}\ns_mov_b32 s{sM0[2]}, s{sT0}")
    a("s_branch Lk2_blk")
    a("Lk2_idle:")
    a(f"s_cmp_eq_u32 s{sGmax}, 0")
    a("s_cbranch_scc1 Lk2_done")
    a("s_barrier")
    a(f"s_sub_u32 s{sGmax}, s{sGmax}, 1")
    a("s_branch Lk2_idle")
    a("Lk2_slow:")
    a(f"s_mov_b32 s{sL}, {NB*32}")
    a("s_waitcnt vmcnt(0) lgkmcnt(0)")
    a("s_barrier")
    a("s_branch Lk2_round")
    a("Lk2_done:")
    stamp(7)
    a(f"s_add_u32 s{sBase}, s{sBase}, s{sN}")
    a(f"s_cmp_ge_u32 s{sBase}, s{sTot}")
    a("s_cbranch_scc1 Lk2_epi")
    a("s_waitcnt vmcnt(0)")
    a("s_barrier")
    a("s_branch Lk2_round")
    a("Lk2_epi:")
    a(f"v_lshlrev_b32 v{vTmp2}, 4, v{vLane}")
    a(f"v_add_u32 v{vTmp2}, 8192, v{vTmp2}")
    for i in range(8):
        a(f"global_load_dwordx4 v[{36+4*i}:{39+4*i}], v{vTmp2}, s[{sC}:{sC+1}] offset:{(i-4)*1024}")
    for i in range(14):
        a(f"v_cvt_pk_bf16_f32 v{68+i}, v{ACC+2*i}, v{ACC+2*i+1}")
    a(f"s_mul_i32 s{sT0}, s{sWave}, 4608")
    a(f"s_add_u32 s{sT0}, s{sT0}, {EA0}")
    a(f"v_mov_b32 v12, s{sT0}")
    a(f"v_mad_u32_u24 v12, v{vLane}, 36, v12")
    a(f"v_mad_u32_u24 v12, v{vLane}, 36, v12")
    a(f"v_lshrrev_b32 v13, 5, v{vLane}")
    a(f"v_bfe_u32 v14, v{vLane}, 2, 2")
    a("v_lshl_add_u32 v13, v13, 3, v14")
    a("v_mul_u32_u24 v13, 72, v13")
    a(f"v_bfe_u32 v14, v{vLane}, 4, 1")
    a("v_lshl_add_u32 v13, v14, 5, v13")
    a(f"v_add3_u32 v13, v13, v{vShf}, s{sT0}")
    a(f"s_mul_i32 s{sT1}, s{sBin}, {NPB}")
    a(f"s_add_u32 s{sT1}, s{sT1}, s{sWave}")
    a(f"s_lshl_b32 s{sT1}, s{sT1}, 9")
    a(f"v_lshrrev_b32 v14, 5, v{vLane}")
    a(f"v_lshl_add_u32 v14, v14, 13, s{sT1}")
    a(f"v_and_b32 v15, 31, v{vLane}")
    a("v_lshl_add_u32 v14, v15, 2, v14")
    a("s_barrier")
    for i in range(7):
        a(f"ds_write_b64 v12, v[{68+2*i}:{69+2*i}] offset:{8*i}")
    a("s_waitcnt lgkmcnt(0)")
    for s in range(4):
        for m in range(2):
            a(f"ds_read_b64_tr_b16 v[{68+4*s+2*m}:{69+4*s+2*m}], v13 offset:{(16*s+4*m)*72}")
    a("s_waitcnt vmcnt(0) lgkmcnt(0)")
    stamp(8)
    for s in range(4):
        for t in range(2):
            c = "0" if s == 0 else f"v[{ACC+16*t}:{ACC+16*t+15}]"
            a(f"v_mfma_f32_32x32x16_bf16 v[{ACC+16*t}:{ACC+16*t+15}], v[{68+4*s}:{71+4*s}], v[{36+8*s+4*t}:{39+8*s+4*t}], {c}")
    a(f"s_mov_b32 s{sT1}, 16384\ns_mov_b32 s{sT2}, 32768\ns_mov_b32 s{sT3}, 49152")
    nop(10)
    for r in range(16):
        q, t = r // 4, r % 4
        if r == 12:
            a(f"s_cmp_ge_u32 s{sWave}, {NPB-96}")
            a("s_cbranch_scc1 Lk2_fin")
            a("s_mov_b32 exec_hi, 0")
        a(f"v_cvt_pk_bf16_f32 v{36+r}, v{ACC+r}, v{ACC+16+r}")
        so = "0" if q == 0 else f"s{sT0+q}"
        a(f"buffer_store_dword v{36+r}, v14, s[{sOsrd}:{sOsrd+3}], {so} offen offset:{t*128}{fl(OPT['outst'])}")
    a("Lk2_fin:")
    if OPT["stamps"]:
        stamp(9)
        a("s_waitcnt vmcnt(0)")
        stamp(10)
        stamp_out(1, 11, sWs, sWave)
    a("Lk2_end:")
    a("s_endpgm")

hdr = open("standalone__tensor_product_equiv_mace__graph.s.ref").read().split("; Override launch")[0]
out = hdr
out += f"; @launch kernel=mace_bin_kernel grid=({NCH+1},1,1) block=(640,1,1) lds={K1_LDS}\n"
out += f"; @launch kernel=mace_main_kernel grid=(256,1,1) block=(1024,1,1) lds={K2_LDS}\n"
out += '.amdgcn_target "amdgcn-amd-amdhsa--gfx950"\n.text\n'
k1(); k2()
out += "\n".join(("    " + l if l and not l.endswith(":") and not l.startswith(".") else l) for l in L) + "\n"
out += '.section .rodata,"a"\n.p2align 6\n' + kd("mace_bin_kernel", 80) + ".p2align 6\n" + kd("mace_main_kernel", 128)
open(sys.argv[1], "w").write(out)
```

```python
import sys
OPT = dict(dbgwg=-1, safe=0, stamps=0, ntl=1, nts="", pf=1, fma="pk", ksld="", eald="", outst="", xfl="")
for a in sys.argv[2:]:
    k, v = a.split("=")
    OPT[k] = int(v) if v.lstrip("-").isdigit() else v
for k in ("nts","ksld","eald","outst","xfl"):
    OPT[k] = "" if OPT[k] in (0,"") else str(OPT[k]).replace("+"," ")

NN, NE = 25000, 800000
CH, NCH = 3200, 250
NPB = 98
MAGIC, MSH = 42800, 22
assert all((d*MAGIC) >> MSH == d//NPB for d in range(NN))
WS_TAB, WS_CONST, WS_KS, WS_EA, WS_STAMP = 0, 0x40000, 0x100000, 0xB00000, 128 << 20
CAP, NB = 3520, 10

L = []
def a(s):
    for ln in s.split("\n"):
        L.append(ln)
def nop(n):
    a(f"s_nop {n-1}")
NT = " nt" if OPT["ntl"] else ""
def fl(x): return (" " + x) if x else ""

def stamp(i):
    if OPT["stamps"]:
        a(f"s_memrealtime s[{64+2*i}:{65+2*i}]")
def stamp_out(k, n, sws, swave):
    if not OPT["stamps"]: return
    a(f"s_cmp_lg_u32 s{swave}, {OPT['stamps']-1}")
    a(f"s_cbranch_scc1 Lnostamp{k}")
    if OPT["dbgwg"] >= 0 and k == 1:
        a(f"s_cmp_lg_u32 s2, {OPT['dbgwg']}")
        a(f"s_cbranch_scc1 Lnostamp{k}")
        a("s_load_dwordx2 s[62:63], s[0:1], 72")
        a("s_waitcnt lgkmcnt(0)")
        a("s_mov_b64 exec, 1")
        a(f"v_mov_b32 v1, {WS_STAMP + OPT['dbgwg']*64}")
        a(f"global_load_dwordx4 v[4:7], v1, s[{sws}:{sws+1}]")
        a(f"global_load_dword v8, v1, s[{sws}:{sws+1}] offset:20")
        a("v_mov_b32 v1, 0")
        a("s_waitcnt vmcnt(0)")
        for j in range(1,5):
            a(f"v_sub_u32 v2, v{4+j}, v4")
            a(f"global_store_dword v1, v2, s[62:63] offset:{4*j}")
        for j in range(11):
            a(f"v_sub_u32 v2, s{64+2*j}, v4")
            a(f"global_store_dword v1, v2, s[62:63] offset:{4*(j+5)}")
        a(f"Lnostamp{k}:")
        return
    a("s_waitcnt lgkmcnt(0)")
    a("s_mov_b64 exec, 1")
    a(f"s_lshl_b32 s62, s2, 6\ns_add_u32 s62, s62, {WS_STAMP + k*256*64}")
    a("v_mov_b32 v1, s62")
    for i in range(n):
        a(f"v_mov_b32 v2, s{64+2*i}")
        a(f"global_store_dword v1, v2, s[{sws}:{sws+1}] offset:{4*i}")
    a(f"Lnostamp{k}:")

def scan(c, s1, s2, x, tot):
    a(f"v_add_u32 v{s1}, v{c}, v{c+1}")
    a(f"v_add_u32 v{s2}, v{s1}, v{c+2}")
    a(f"v_add_u32 v{tot}, v{s2}, v{c+3}")
    a(f"v_mov_b32 v{x}, v{tot}")
    for d in ("row_shr:1", "row_shr:2", "row_shr:4", "row_shr:8"):
        nop(2)
        a(f"v_add_u32_dpp v{x}, v{x}, v{x} {d} row_mask:0xf bank_mask:0xf")
    nop(2)
    a(f"v_add_u32_dpp v{x}, v{x}, v{x} row_bcast:15 row_mask:0xa bank_mask:0xf")
    nop(2)
    a(f"v_add_u32_dpp v{x}, v{x}, v{x} row_bcast:31 row_mask:0xc bank_mask:0xf")

def kd(name, vg, sg=96):
    return f""".amdhsa_kernel {name}
  .amdhsa_next_free_vgpr {vg}
  .amdhsa_next_free_sgpr {sg}
  .amdhsa_accum_offset {vg}
  .amdhsa_group_segment_fixed_size 0
  .amdhsa_kernarg_size 88
  .amdhsa_user_sgpr_count 2
  .amdhsa_user_sgpr_kernarg_segment_ptr 1
  .amdhsa_system_sgpr_workgroup_id_x 1
  .amdhsa_float_denorm_mode_32 3
.end_amdhsa_kernel
"""

K1_HIST, K1_BASE, K1_INV, K1_KS, K1_EA, K1_LDS = 0, 1024, 2048, 14848, 53248, 155648
def k1():
    a(".globl mace_bin_kernel\n.p2align 8\n.type mace_bin_kernel,@function\nmace_bin_kernel:")
    stamp(0)
    a(f"s_cmp_gt_u32 s2, {NCH}")
    a("s_cbranch_scc1 Lk1_end")
    a(f"s_cmp_eq_u32 s2, {NCH}")
    a("s_cbranch_scc1 Lk1_prep")
    a("s_load_dwordx4 s[4:7], s[0:1], 8")
    a("s_load_dwordx4 s[8:11], s[0:1], 24")
    a("s_load_dwordx2 s[12:13], s[0:1], 80")
    a("v_lshrrev_b32 v1, 6, v0")
    a("v_and_b32 v2, 63, v0")
    a("v_readfirstlane_b32 s14, v1")
    a("v_lshlrev_b32 v3, 2, v0")
    a("v_mov_b32 v4, 0")
    a("ds_write_b32 v3, v4")
    a("v_lshlrev_b32 v3, 2, v2")
    a("v_lshlrev_b32 v4, 3, v2")
    a("v_lshlrev_b32 v5, 4, v2")
    a(f"s_mul_i32 s15, s2, {CH}")
    a("s_mul_i32 s16, s14, 320")
    a("s_add_u32 s15, s15, s16")
    a("s_lshl_b32 s17, s15, 2")
    a("s_lshl_b32 s18, s15, 3")
    a("s_lshl_b32 s19, s15, 5")
    a("s_waitcnt lgkmcnt(0)")
    a("s_add_u32 s6, s6, s17\ns_addc_u32 s7, s7, 0")
    for k in range(5):
        a(f"global_load_dword v{10+k}, v3, s[6:7] offset:{k*256}{NT}")
    a("s_add_u32 s4, s4, s17\ns_addc_u32 s5, s5, 0")
    for k in range(5):
        a(f"global_load_dword v{15+k}, v3, s[4:5] offset:{k*256}{NT}")
    a("s_add_u32 s8, s8, s18\ns_addc_u32 s9, s9, 0")
    for k in range(5):
        a(f"global_load_dwordx2 v[{20+2*k}:{21+2*k}], v4, s[8:9] offset:{k*512}{NT}")
    a("s_add_u32 s10, s10, s19\ns_addc_u32 s11, s11, 0")
    a("s_lshl_b32 s20, s16, 5")
    a(f"s_add_u32 s20, s20, {K1_EA}")
    for i in range(10):
        if i % 4 == 0:
            a(f"s_add_u32 m0, s20, {i*1024}")
            a(f"v_add_u32 v6, {i*1024}, v5")
        a(f"global_load_lds_dwordx4 v6, s[10:11] offset:{(i%4)*1024}{NT}")
    a("s_barrier")
    a(f"s_mov_b32 s21, {MAGIC}")
    a(f"s_mov_b32 s22, {-NPB}")
    a("v_mov_b32 v7, 1")
    a("s_waitcnt vmcnt(20)")
    stamp(1)
    for k in range(5):
        a(f"v_mul_u32_u24 v{30+k}, s21, v{10+k}")
        a(f"v_lshrrev_b32 v{30+k}, {MSH}, v{30+k}")
        a(f"v_mad_i32_i24 v{10+k}, v{30+k}, s22, v{10+k}")
        a(f"v_lshlrev_b32 v{30+k}, 2, v{30+k}")
        a(f"ds_add_rtn_u32 v{35+k}, v{30+k}, v7 offset:{K1_HIST}")
    a("s_waitcnt lgkmcnt(0)")
    a("s_barrier")
    a(f"ds_read_b128 v[40:43], v5 offset:{K1_HIST}")
    a("s_mul_i32 s23, s14, 26")
    a("v_add_u32 v48, s23, v2")
    a("v_cmp_gt_u32 s[24:25], 26, v2")
    a("v_cmp_gt_u32 vcc, 0x100, v48")
    a("s_and_b64 s[24:25], s[24:25], vcc")
    a("v_and_b32 v48, 0xff, v48")
    a("v_lshlrev_b32 v49, 2, v48")
    a("v_lshlrev_b32 v48, 10, v48")
    a("s_lshl_b32 s23, s2, 2")
    a("v_add_u32 v48, s23, v48")
    a("s_waitcnt lgkmcnt(0)")
    scan(40, 44, 45, 46, 47)
    a("v_sub_u32 v46, v46, v47")
    a("v_add_u32 v41, v46, v40")
    a("v_add_u32 v42, v46, v44")
    a("v_add_u32 v43, v46, v45")
    a("v_mov_b32 v40, v46")
    a(f"ds_write_b128 v5, v[40:43] offset:{K1_BASE}")
    for k in range(5):
        a(f"ds_read_b32 v{30+k}, v{30+k} offset:{K1_BASE}")
    a(f"ds_read_b32 v50, v49 offset:{K1_BASE}")
    a(f"ds_read_b32 v51, v49 offset:{K1_HIST}")
    a("s_waitcnt vmcnt(10)")
    for k in range(5):
        a(f"v_and_b32 v52, 15, v{10+k}")
        a(f"v_lshrrev_b32 v{10+k}, 4, v{10+k}")
        a(f"v_lshlrev_b32 v52, 24, v52")
        a(f"v_lshl_or_b32 v52, v{10+k}, 2, v52")
        a(f"v_lshl_or_b32 v{15+k}, v{15+k}, 9, v52")
    a("v_lshl_add_u32 v53, v2, 5, s20")
    a("s_waitcnt lgkmcnt(0)")
    a("v_lshl_or_b32 v50, v51, 16, v50")
    a("s_mov_b64 exec, s[24:25]")
    a(f"global_store_dword v48, v50, s[12:13]")
    a("s_mov_b64 exec, -1")
    for k in range(5):
        a(f"v_add_u32 v{30+k}, v{30+k}, v{35+k}")
        a(f"v_lshlrev_b32 v{35+k}, 2, v{30+k}")
        a(f"v_mul_u32_u24 v{30+k}, 12, v{30+k}")
        if k: a(f"v_add_u32 v{53+k}, {k*2048}, v53")
        a(f"ds_write_b32 v{35+k}, v{53+k} offset:{K1_INV}")
        a(f"v_add_u32 v{30+k}, {K1_KS}, v{30+k}")
        a(f"ds_write_b32 v{30+k}, v{15+k}")
        a(f"ds_write2_b32 v{30+k}, v{20+2*k}, v{21+2*k} offset0:1 offset1:2")
    a("s_waitcnt lgkmcnt(0)")
    a("s_barrier")
    stamp(2)
    a("s_mul_i32 s23, s14, 3840")
    a("v_add_u32 v8, s23, v5")
    for i in range(4):
        a(f"ds_read_b128 v[{12+4*i}:{15+4*i}], v8 offset:{K1_KS+i*1024}")
    a("v_lshrrev_b32 v9, 1, v2")
    a("v_add_u32 v9, s16, v9")
    a("v_lshlrev_b32 v9, 2, v9")
    for i in range(10):
        a(f"ds_read_b32 v{30+i}, v9 offset:{K1_INV+i*128}")
    a(f"s_mul_i32 s23, s2, {CH*12}")
    a(f"s_add_u32 s23, s23, {WS_KS}")
    a("s_add_u32 s26, s12, s23\ns_addc_u32 s27, s13, 0")
    a(f"s_add_u32 s19, s19, {WS_EA}")
    a("s_add_u32 s28, s12, s19\ns_addc_u32 s29, s13, 0")
    a("v_and_b32 v10, 1, v2")
    a("v_lshlrev_b32 v10, 4, v10")
    a("s_waitcnt lgkmcnt(10)")
    for i in range(4):
        if i == 3: a("s_mov_b32 exec_hi, 0xffff")
        a(f"global_store_dwordx4 v8, v[{12+4*i}:{15+4*i}], s[26:27] offset:{i*1024}{fl(OPT['nts'])}")
    a("s_mov_b64 exec, -1")
    a("s_waitcnt lgkmcnt(0)")
    for i in range(10):
        a(f"v_add_u32 v{30+i}, v{30+i}, v10")
    a("s_waitcnt vmcnt(5)")
    a("s_barrier")
    stamp(3)
    for i in range(10):
        a(f"ds_read_b128 v[{40+4*i}:{43+4*i}], v{30+i}")
    a("v_add_u32 v6, 4096, v5")
    a("v_add_u32 v7, 8192, v5")
    for i in range(10):
        a(f"s_waitcnt lgkmcnt({9-i})")
        a(f"global_store_dwordx4 v{5+i//4}, v[{40+4*i}:{43+4*i}], s[28:29] offset:{(i%4)*1024}{fl(OPT['nts'])}")
    if OPT["stamps"]:
        stamp(4)
        a("s_waitcnt vmcnt(0)")
        stamp(5)
        stamp_out(0, 6, 12, 14)
    a("Lk1_end:")
    a("s_endpgm")
    a("Lk1_prep:")
    a("s_load_dwordx4 s[4:7], s[0:1], 40")
    a("s_load_dwordx2 s[8:9], s[0:1], 56")
    a("s_load_dwordx2 s[12:13], s[0:1], 80")
    a("v_lshrrev_b32 v1, 6, v0")
    a("v_and_b32 v2, 63, v0")
    a("v_readfirstlane_b32 s14, v1")
    a("v_lshlrev_b32 v5, 4, v2")
    a("s_waitcnt lgkmcnt(0)")
    a(f"s_add_u32 s12, s12, {WS_CONST}\ns_addc_u32 s13, s13, 0")
    def gather8(base, offs, dstoff_s):
        for k in range(8):
            a(f"global_load_ushort v{10+k}, v3, s[{base}:{base+1}] offset:{offs[k]}")
        a("s_waitcnt vmcnt(0)")
        for k in range(4):
            a(f"v_lshl_or_b32 v{20+k}, v{11+2*k}, 16, v{10+2*k}")
        a(f"v_add_u32 v6, s{dstoff_s}, v5")
        a("global_store_dwordx4 v6, v[20:23], s[12:13]")
        a("s_waitcnt vmcnt(0)")
    a("s_cmp_ge_u32 s14, 8")
    a("s_cbranch_scc1 Lk1_prep2")
    a("s_lshr_b32 s15, s14, 1")
    a("s_and_b32 s16, s14, 1")
    a("s_lshl_b32 s15, s15, 11")
    a("s_lshl_b32 s16, s16, 1")
    a("s_add_u32 s15, s15, s16")
    a("v_lshrrev_b32 v3, 5, v2")
    a("v_lshlrev_b32 v3, 10, v3")
    a("v_and_b32 v4, 31, v2")
    a("v_lshl_add_u32 v3, v4, 2, v3")
    a("v_add_u32 v3, s15, v3")
    a("s_lshl_b32 s17, s14, 10")
    a("s_add_u32 s17, s17, 4096")
    gather8(8, [k*128 for k in range(8)], 17)
    a("s_endpgm")
    a("Lk1_prep2:")
    a("s_sub_u32 s14, s14, 8")
    a("s_lshl_b32 s17, s14, 10")
    a("v_lshl_add_u32 v3, v2, 1, s17")
    gather8(6, [k*128 for k in range(8)], 17)
    a("s_lshl_b32 s15, s14, 4")
    a("v_and_b32 v3, 3, v2")
    a("v_lshl_add_u32 v3, v3, 1, s15")
    a("s_add_u32 s17, s17, 2048")
    gather8(4, [(k//2)*32 + (k%2)*8 for k in range(8)], 17)
    a("s_endpgm")

RING, HIST, BASE, EA0, K2_LDS = 0, 49152, 50176, 51200, 163840
S0, SHS = 0, CAP*4
vLs, vT, vEa, vShf, vK, vP, vSH, vAdr, vTmp = 1, [2,3,4], 5, 6, 7, 8, 9, 10, 11
vA, vB, vLane, vTmp2 = 12, 14, 18, 19
vWr, vCg, vEaA, vD, vRw, vPr, vSr, vPos, vG, ACC = 20, 28, 36, 44, 52, 68, 78, 88, 92, 96
sX, sOut, sKS, sEA, sC, sWs = 4, 6, 8, 10, 12, 14
sTab, sOsrd = 16, 20
sWave, sBin, sTot, sBase, sL, sN, sStart, sCnt, sG, sGw, sGmax, sErr, sBlk = 24,25,26,27,28,29,30,31,32,33,34,35,36
sM0 = [37,38,39]
sI = 40
sMk = 48
sEx = 56
sT0, sT1, sT2, sT3 = 58, 59, 60, 61

def k2():
    a(".globl mace_main_kernel\n.p2align 8\n.type mace_main_kernel,@function\nmace_main_kernel:")
    stamp(0)
    a("s_cmp_ge_u32 s2, 256")
    a("s_cbranch_scc1 Lk2_end")
    a(f"s_load_dwordx2 s[{sWs}:{sWs+1}], s[0:1], 80")
    a(f"s_load_dwordx2 s[{sX}:{sX+1}], s[0:1], 0")
    a(f"s_load_dwordx2 s[{sOut}:{sOut+1}], s[0:1], 64")
    a(f"v_lshrrev_b32 v{vTmp}, 6, v0")
    a(f"v_and_b32 v{vLane}, 63, v0")
    a(f"v_readfirstlane_b32 s{sWave}, v{vTmp}")
    a(f"s_and_b32 s{sBin}, s2, 7")
    a(f"s_lshl_b32 s{sBin}, s{sBin}, 5")
    a(f"s_lshr_b32 s{sT0}, s2, 3")
    a(f"s_add_u32 s{sBin}, s{sBin}, s{sT0}")
    a(f"s_lshl_b32 s{sT0}, s{sBin}, 10")
    a(f"v_lshlrev_b32 v{vTmp2}, 4, v{vLane}")
    a(f"s_mov_b32 s{sTab+2}, {NCH*4}")
    a(f"s_mov_b32 s{sTab+3}, 0x20000")
    a("s_waitcnt lgkmcnt(0)")
    a(f"s_add_u32 s{sTab}, s{sWs}, s{sT0}")
    a(f"s_addc_u32 s{sTab+1}, s{sWs+1}, 0")
    a(f"buffer_load_dwordx4 v[36:39], v{vTmp2}, s[{sTab}:{sTab+3}], 0 offen")
    a(f"s_add_u32 s{sC}, s{sWs}, {WS_CONST}\ns_addc_u32 s{sC+1}, s{sWs+1}, 0")
    for i in range(4):
        a(f"global_load_dwordx4 v[{vWr+4*i}:{vWr+4*i+3}], v{vTmp2}, s[{sC}:{sC+1}] offset:{i*1024}")
    npre = 4
    if OPT["pf"]:
        a(f"s_min_u32 s{sT0}, s2, 249")
        a(f"s_lshl_b32 s{sT0}, s{sT0}, 4")
        a(f"s_add_u32 s{sT0}, s{sT0}, s{sWave}")
        a(f"s_mul_i32 s{sT0}, s{sT0}, 3200")
        a(f"v_min_u32 v{vTmp}, 24, v{vLane}")
        a(f"v_lshl_add_u32 v{vTmp}, v{vTmp}, 7, s{sT0}")
        a(f"global_load_dword v{vAdr}, v{vTmp}, s[{sX}:{sX+1}]")
        npre += 1
    a(f"s_add_u32 s{sKS}, s{sWs}, {WS_KS}\ns_addc_u32 s{sKS+1}, s{sWs+1}, 0")
    a(f"s_add_u32 s{sEA}, s{sWs}, {WS_EA}\ns_addc_u32 s{sEA+1}, s{sWs+1}, 0")
    a(f"s_mov_b32 s{sOsrd}, s{sOut}\ns_mov_b32 s{sOsrd+1}, s{sOut+1}\ns_mov_b32 s{sOsrd+2}, {NN*512}\ns_mov_b32 s{sOsrd+3}, 0x20000")
    a(f"s_mov_b32 s{sBase}, 0\ns_mov_b32 s{sL}, {CAP}")
    a(f"s_mov_b32 s{sEx}, 0x0f0f0f0f\ns_mov_b32 s{sEx+1}, 0xf0f0f0f0")
    for i in range(32):
        a(f"v_mov_b32 v{ACC+i}, 0")
    a(f"v_bfe_u32 v40, v{vLane}, 2, 2")
    a(f"v_and_b32 v41, 3, v{vLane}")
    a(f"v_lshrrev_b32 v42, 5, v{vLane}")
    a(f"v_lshlrev_b32 v{vLs}, 7, v40")
    a(f"v_lshl_add_u32 v{vLs}, v42, 6, v{vLs}")
    a(f"v_lshl_add_u32 v{vLs}, v41, 4, v{vLs}")
    a(f"v_lshlrev_b32 v{vShf}, 3, v41")
    a(f"s_waitcnt vmcnt({npre})")
    a("s_branch Lk2_havetab")
    a("Lk2_round:")
    a(f"v_lshlrev_b32 v{vTmp2}, 4, v{vLane}")
    a(f"buffer_load_dwordx4 v[36:39], v{vTmp2}, s[{sTab}:{sTab+3}], 0 offen")
    a("s_waitcnt vmcnt(0)")
    a("Lk2_havetab:")
    stamp(1)
    a(f"v_and_b32 v60, 0xff, v0")
    a(f"v_lshlrev_b32 v60, 2, v60")
    a(f"v_mov_b32 v61, 0")
    a(f"ds_write_b32 v60, v61 offset:{HIST}")
    a(f"v_mul_u32_u24 v52, {4*CH}, v{vLane}")
    for j in range(4):
        a(f"v_lshrrev_b32 v{40+j}, 16, v{36+j}")
        a(f"v_and_b32 v{44+j}, 0xffff, v{36+j}")
        if j: a(f"v_add_u32 v52, {CH}, v52")
        a(f"v_add_u32 v{44+j}, v{44+j}, v52")
    scan(40, 53, 54, 55, 56)
    a("v_sub_u32 v48, v55, v56")
    a(f"v_readlane_b32 s{sTot}, v55, 63")
    a("v_add_u32 v49, v48, v40")
    a("v_add_u32 v50, v48, v53")
    a("v_add_u32 v51, v48, v54")
    a(f"s_sub_u32 s{sN}, s{sTot}, s{sBase}")
    a(f"s_min_u32 s{sN}, s{sN}, s{sL}")
    a(f"s_cmp_eq_u32 s{sN}, s{sTot}")
    a("s_cbranch_scc1 Lk2_noclip")
    a(f"s_add_u32 s{sT0}, s{sBase}, s{sN}")
    for j in range(4):
        a(f"v_add_u32 v52, v{48+j}, v{40+j}")
        a(f"v_min_u32 v52, s{sT0}, v52")
        a(f"v_max_u32 v53, s{sBase}, v{48+j}")
        a(f"v_sub_u32 v52, v52, v53")
        a(f"v_max_i32 v{40+j}, 0, v52")
        a(f"v_sub_u32 v52, v53, v{48+j}")
        a(f"v_add_u32 v{44+j}, v{44+j}, v52")
        a(f"v_subrev_u32 v{48+j}, s{sBase}, v53")
    a("Lk2_noclip:")
    a(f"s_mov_b32 s{sT0}, s{sWave}")
    for j in range(4):
        a(f"v_add_lshl_u32 v{48+j}, v{48+j}, s{sWave}, 2")
        a(f"v_add_u32 v{44+j}, s{sWave}, v{44+j}")
    a("v_max_u32 v52, v40, v41")
    a("v_max3_u32 v52, v42, v43, v52")
    a("Lk2_exp:")
    for j in range(4):
        a(f"v_cmp_lt_u32 s[{sMk+2*j}:{sMk+2*j+1}], s{sT0}, v{40+j}")
    a(f"s_add_u32 s{sT0}, s{sT0}, 16")
    a(f"v_cmp_lt_u32 vcc, s{sT0}, v52")
    for j in range(4):
        a(f"s_mov_b64 exec, s[{sMk+2*j}:{sMk+2*j+1}]")
        a(f"ds_write_b32 v{48+j}, v{44+j}")
    a("s_mov_b64 exec, -1")
    a("s_cbranch_vccz Lk2_expdone")
    a("s_waitcnt lgkmcnt(0)")
    for j in range(4):
        a(f"v_add_u32 v{48+j}, 64, v{48+j}")
        a(f"v_add_u32 v{44+j}, 16, v{44+j}")
    a("s_branch Lk2_exp")
    a("Lk2_expdone:")
    a(f"v_lshlrev_b32 v{vTmp}, 2, v0")
    for k in range(4):
        a(f"v_add_u32 v57, {1024*k}, v0")
        a(f"v_cmp_gt_u32 s[{sMk+2*k}:{sMk+2*k+1}], s{sN}, v57")
    a("s_waitcnt lgkmcnt(0)")
    a("s_barrier")
    for k in range(4):
        a(f"ds_read_b32 v{vG+k}, v{vTmp} offset:{k*4096}")
    for k in range(4):
        a(f"s_waitcnt lgkmcnt({3-k})" if not OPT["stamps"] else "s_waitcnt lgkmcnt(0)")
        a(f"v_cndmask_b32 v{vG+k}, 0, v{vG+k}, s[{sMk+2*k}:{sMk+2*k+1}]")
        if OPT["safe"]: a(f"v_min_u32 v{vG+k}, {NE-1}, v{vG+k}")
        a(f"v_mul_u32_u24 v{vPos+k}, 12, v{vG+k}")
        a(f"global_load_dwordx3 v[{68+4*k}:{70+4*k}], v{vPos+k}, s[{sKS}:{sKS+1}]{fl(OPT['ksld'])}")
    for k in range(4):
        a(f"v_lshlrev_b32 v{vG+k}, 5, v{vG+k}")
        a(f"global_load_dwordx4 v[{36+8*k}:{39+8*k}], v{vG+k}, s[{sEA}:{sEA+1}]{fl(OPT['eald'])}")
        a(f"global_load_dwordx4 v[{40+8*k}:{43+8*k}], v{vG+k}, s[{sEA}:{sEA+1}] offset:16{fl(OPT['eald'])}")
    stamp(2)
    a(f"v_mov_b32 v{vTmp}, 1")
    for k in range(4):
        a(f"s_waitcnt vmcnt({11-k})")
        a(f"v_lshrrev_b32 v{71+4*k}, 18, v{68+4*k}")
        a(f"v_and_b32 v{71+4*k}, 0x3fc, v{71+4*k}")
        a(f"s_mov_b64 exec, s[{sMk+2*k}:{sMk+2*k+1}]")
        a(f"ds_add_rtn_u32 v{vPos+k}, v{71+4*k}, v{vTmp} offset:{HIST}")
        a("s_mov_b64 exec, -1")
    stamp(3)
    a(f"v_lshlrev_b32 v{vTmp2}, 4, v{vLane}")
    a("s_waitcnt lgkmcnt(0)")
    a("s_barrier")
    a(f"ds_read_b128 v[84:87], v{vTmp2} offset:{HIST}")
    a(f"s_lshl_b32 s{sT1}, s{sWave}, 2")
    a("s_waitcnt lgkmcnt(0)")
    scan(84, 92, 93, 94, 95)
    a("v_sub_u32 v94, v94, v95")
    a("v_add_u32_dpp v95, v95, v95 quad_perm:[1,0,3,2] row_mask:0xf bank_mask:0xf")
    a("v_add_u32 v85, v94, v84")
    a("v_add_u32 v86, v94, v92")
    a("v_add_u32_dpp v95, v95, v95 quad_perm:[2,3,0,1] row_mask:0xf bank_mask:0xf")
    a("v_add_u32 v87, v94, v93")
    a("v_mov_b32 v84, v94")
    a(f"ds_write_b128 v{vTmp2}, v[84:87] offset:{BASE}")
    for k in range(4):
        a(f"ds_read_b32 v{71+4*k}, v{71+4*k} offset:{BASE}")
    a(f"v_readlane_b32 s{sStart}, v94, s{sT1}")
    a(f"v_readlane_b32 s{sCnt}, v95, s{sT1}")
    for d, rm in (("row_shr:4","0xf"), ("row_shr:8","0xf"), ("row_bcast:15","0xa"), ("row_bcast:31","0xc")):
        a(f"v_max_u32_dpp v95, v95, v95 {d} row_mask:{rm} bank_mask:0xf")
        nop(2)
    a(f"v_readlane_b32 s{sGmax}, v95, 63")
    nop(1)
    a(f"s_cmp_gt_u32 s{sGmax}, {NB*32}")
    a("s_cbranch_scc1 Lk2_slow")
    a(f"s_add_u32 s{sGmax}, s{sGmax}, 15\ns_lshr_b32 s{sGmax}, s{sGmax}, 4")
    a(f"s_add_u32 s{sGw}, s{sCnt}, 15\ns_lshr_b32 s{sGw}, s{sGw}, 4")
    a("s_waitcnt lgkmcnt(0)")
    for k in range(4):
        a(f"v_add_u32 v{vPos+k}, v{vPos+k}, v{71+4*k}")
        a(f"v_lshlrev_b32 v{71+4*k}, 2, v{vPos+k}")
        a(f"v_lshlrev_b32 v{vG+k}, 3, v{vPos+k}")
        a(f"v_add_u32 v{vG+k}, {SHS}, v{vG+k}")
        a(f"s_mov_b64 exec, s[{sMk+2*k}:{sMk+2*k+1}]")
        a(f"ds_write_b32 v{71+4*k}, v{68+4*k} offset:{S0}")
        a(f"ds_write2_b32 v{vG+k}, v{69+4*k}, v{70+4*k} offset0:0 offset1:1")
        a("s_mov_b64 exec, -1")
        a(f"v_lshlrev_b32 v{vPos+k}, 5, v{vPos+k}")
    a(f"v_and_b32 v12, 15, v{vLane}")
    a(f"v_bfe_u32 v13, v{vLane}, 4, 1")
    a("v_lshl_add_u32 v12, v12, 1, v13")
    a(f"v_add_lshl_u32 v13, v12, s{sStart}, 2")
    a(f"v_lshrrev_b32 v14, 2, v{vLane}")
    a(f"v_bfe_u32 v15, v{vLane}, 1, 1")
    a("v_lshl_add_u32 v14, v15, 4, v14")
    a(f"v_add_lshl_u32 v14, v14, s{sStart}, 3")
    a(f"v_and_b32 v15, 1, v{vLane}")
    a("v_lshl_add_u32 v14, v15, 2, v14")
    a("s_waitcnt lgkmcnt(0)")
    a("s_barrier")
    stamp(4)
    for b in range(NB):
        a(f"ds_read_b32 v{vPr+b}, v13 offset:{S0+b*128}")
    for b in range(NB):
        a(f"ds_read_b32 v{vSr+b}, v14 offset:{SHS+b*256}")
    a(f"s_mul_i32 s{sM0[0]}, s{sWave}, 3072")
    a(f"s_add_u32 s{sM0[1]}, s{sM0[0]}, 1024")
    a(f"s_add_u32 s{sM0[2]}, s{sM0[0]}, 2048")
    a(f"v_lshrrev_b32 v15, 5, v{vLane}")
    a(f"v_lshl_add_u32 v{vT[0]}, v15, 9, s{sM0[0]}")
    a(f"v_bfe_u32 v15, v{vLane}, 2, 2")
    a(f"v_lshl_add_u32 v{vT[0]}, v15, 6, v{vT[0]}")
    a(f"v_bfe_u32 v15, v{vLane}, 4, 1")
    a(f"v_lshl_add_u32 v{vT[0]}, v15, 5, v{vT[0]}")
    a(f"v_add_u32 v{vT[0]}, v{vT[0]}, v{vShf}")
    a(f"v_add_u32 v{vT[1]}, 1024, v{vT[0]}")
    a(f"v_add_u32 v{vT[2]}, 2048, v{vT[0]}")
    a(f"v_bfe_u32 v15, v{vLane}, 3, 2")
    a(f"v_and_b32 v16, 3, v{vLane}")
    a("v_lshl_add_u32 v15, v15, 2, v16")
    a(f"v_add_lshl_u32 v{vEa}, v15, s{sStart}, 5")
    a(f"v_add_u32 v{vEa}, {EA0}, v{vEa}")
    a(f"v_mov_b32 v16, 28")
    a(f"v_subrev_u32 v12, s{sCnt}, v12")
    a("s_waitcnt lgkmcnt(0)")
    a("s_barrier")
    for b in range(NB):
        a(f"v_cmp_gt_i32 vcc, {-32*b}, v12")
        nop(2)
        a(f"v_cndmask_b32 v{vPr+b}, v16, v{vPr+b}, vcc")
        if b == 0:
            a(f"v_and_b32 v{vK}, 0xfffe00, v{vPr}")
            if OPT["safe"]: a(f"v_min_u32 v{vK}, {(NN-1)*512}, v{vK}")
            a(f"v_mov_b32 v{vP}, v{vPr}")
            a(f"v_mov_b32 v{vSH}, v{vSr}")
            for p in range(3):
                a(f"s_mov_b32 m0, s{sM0[p]}")
                a(f"v_add_u32_dpp v{vAdr}, v{vK}, v{vLs} row_newbcast:{p} row_mask:0xf bank_mask:0xf")
                a(f"global_load_lds_dwordx4 v{vAdr}, s[{sX}:{sX+1}]{fl(OPT['xfl'])}")
    stamp(5)
    for k in range(4):
        a(f"s_waitcnt vmcnt({3+2*(3-k)})")
        a(f"s_mov_b64 exec, s[{sMk+2*k}:{sMk+2*k+1}]")
        a(f"ds_write_b128 v{vPos+k}, v[{36+8*k}:{39+8*k}] offset:{EA0}")
        a(f"ds_write_b128 v{vPos+k}, v[{40+8*k}:{43+8*k}] offset:{EA0+16}")
    a("s_mov_b64 exec, -1")
    a(f"s_mov_b32 s{sErr}, 0\ns_mov_b32 s{sBlk}, 0\ns_mov_b32 s{sG}, s{sGw}")
    a("s_waitcnt lgkmcnt(0)")
    stamp(6)
    for i in range(8):
        a(f"v_mov_b32 v{vEaA+i}, 0")
    a(f"s_cmp_eq_u32 s{sGw}, 0")
    a("s_cbranch_scc1 Lk2_idle")
    a(".p2align 6")
    a("Lk2_blk:")
    a(f"v_and_b32 v{vTmp}, 28, v{vP}")
    a(f"v_lshlrev_b32 v{vTmp}, v{vShf}, v{vTmp}")
    nop(2)
    a(f"v_or_b32_dpp v{vTmp}, v{vTmp}, v{vTmp} quad_perm:[1,0,3,2] row_mask:0xf bank_mask:0xf")
    nop(2)
    a(f"v_or_b32_dpp v{vTmp}, v{vTmp}, v{vTmp} quad_perm:[2,3,0,1] row_mask:0xf bank_mask:0xf")
    nop(1)
    for i in range(8):
        a(f"v_readlane_b32 s{sI+i}, v{vTmp}, {4*i}")
    for p in range(16):
        g, pp = p // 8, p % 8
        sl = p % 3
        if pp == 0:
            a(f"s_add_u32 s{sErr}, s{sErr}, s{sGmax}")
            a(f"Lk2_bar{g}:")
            a("s_barrier")
            a(f"s_sub_u32 s{sErr}, s{sErr}, s{sGw}")
            a(f"s_cmp_ge_u32 s{sErr}, s{sGw}")
            a(f"s_cbranch_scc1 Lk2_bar{g}")
            a(f"s_mov_b64 exec, s[{sEx}:{sEx+1}]")
            a(f"ds_read_b128 v[{vEaA}:{vEaA+3}], v{vEa} offset:{g*512}")
            a(f"ds_read_b128 v[{vEaA+4}:{vEaA+7}], v{vEa} offset:{g*512+16}")
            a("s_mov_b64 exec, -1")
        a("s_waitcnt vmcnt(2)")
        a(f"ds_read_b64_tr_b16 v[{vB}:{vB+1}], v{vT[sl]}")
        a(f"ds_read_b64_tr_b16 v[{vB+2}:{vB+3}], v{vT[sl]} offset:256")
        if pp == 0:
            q0, q1 = 2*g, 2*g+1
            a(f"v_mov_b32_dpp v{vD+4}, v{vSH} quad_perm:[{q0},{q0},{q0},{q0}] row_mask:0xf bank_mask:0xf")
            a(f"v_mov_b32_dpp v{vD+5}, v{vSH} quad_perm:[{q1},{q1},{q1},{q1}] row_mask:0xf bank_mask:0xf")
            for u in range(4):
                a(f"v_dot2_f32_bf16 v{vD+u}, v{vD+4}, v{vCg+u}, 0")
            for u in range(4):
                a(f"v_dot2_f32_bf16 v{vD+u}, v{vD+5}, v{vCg+4+u}, v{vD+u}")
            nop(1)
            a(f"v_cvt_pk_bf16_f32 v{vA}, v{vD}, v{vD+1}")
            nop(1)
            a(f"v_cvt_pk_bf16_f32 v{vA+1}, v{vD+2}, v{vD+3}")
        if p == 13:
            a(f"s_add_u32 s{sBlk}, s{sBlk}, 1")
            a(f"s_min_u32 s{sBlk}, s{sBlk}, {NB-1}")
            a(f"s_set_gpr_idx_on s{sBlk}, 0x1")
            a(f"v_mov_b32 v{vP}, v{vPr}")
            a(f"v_mov_b32 v{vSH}, v{vSr}")
            a("s_set_gpr_idx_off")
            a(f"v_and_b32 v{vK}, 0xfffe00, v{vP}")
            if OPT["safe"]: a(f"v_min_u32 v{vK}, {(NN-1)*512}, v{vK}")
        a(f"s_mov_b32 m0, s{sM0[sl]}")
        a("s_waitcnt lgkmcnt(0)")
        dma = [f"v_add_u32_dpp v{vAdr}, v{vK}, v{vLs} row_newbcast:{(p+3)%16} row_mask:0xf bank_mask:0xf",
               f"global_load_lds_dwordx4 v{vAdr}, s[{sX}:{sX+1}]{fl(OPT['xfl'])}"]
        tp = [f"v_mfma_f32_4x4x4_16b_bf16 v[{vD+4*s}:{vD+4*s+3}], v[{vA}:{vA+1}], v[{vB+2*s}:{vB+2*s+1}], 0 cbsz:4 abid:{2*pp+s}" for s in range(2)]
        if pp == 0:
            for x in dma: a(x)
            a(f"v_mfma_f32_32x32x16_bf16 v[{vRw}:{vRw+15}], v[{vEaA}:{vEaA+3}], v[{vWr}:{vWr+3}], 0")
            a(f"v_mfma_f32_32x32x16_bf16 v[{vRw}:{vRw+15}], v[{vEaA+4}:{vEaA+7}], v[{vWr+4}:{vWr+7}], v[{vRw}:{vRw+15}]")
            for x in tp: a(x)
            nop(9)
        else:
            for x in tp: a(x)
            for x in dma: a(x)
            if p % 4 == 0: nop(1)
        for s in range(2):
            si = sI + 4*s + p//4
            if p % 4: a(f"s_lshr_b32 s{si}, s{si}, 8")
            j = 2*pp + s
            if OPT["fma"] == "pk":
                a(f"s_set_gpr_idx_on s{si}, 0xc" if s == 0 else f"s_set_gpr_idx_idx s{si}")
                sel = "op_sel_hi:[1,0,1]" if s == 0 else "op_sel:[0,1,0] op_sel_hi:[1,1,1]"
                for h in range(2):
                    a(f"v_pk_fma_f32 v[{ACC+2*h}:{ACC+2*h+1}], v[{vD+4*s+2*h}:{vD+4*s+2*h+1}], v[{vRw+2*pp}:{vRw+2*pp+1}], v[{ACC+2*h}:{ACC+2*h+1}] {sel}")
            else:
                a(f"s_set_gpr_idx_on s{si}, 0x8" if s == 0 else f"s_set_gpr_idx_idx s{si}")
                for w in range(4):
                    a(f"v_fmac_f32 v{ACC+w}, v{vD+4*s+w}, v{vRw+j}")
        a("s_set_gpr_idx_off")
        if pp == 7:
            a(f"s_sub_u32 s{sG}, s{sG}, 1")
            a(f"s_cmp_eq_u32 s{sG}, 0")
            a("s_cbranch_scc1 Lk2_done")
    a(f"v_swap_b32 v{vT[0]}, v{vT[1]}")
    a(f"v_swap_b32 v{vT[1]}, v{vT[2]}")
    a(f"v_add_u32 v{vEa}, 1024, v{vEa}")
    a(f"s_mov_b32 s{sT0}, s{sM0[0]}\ns_mov_b32 s{sM0[0]}, s{sM0[1]}\ns_mov_b32 s{sM0[1]}, s{sM0[2]}\ns_mov_b32 s{sM0[2]}, s{sT0}")
    a("s_branch Lk2_blk")
    a("Lk2_idle:")
    a(f"s_cmp_eq_u32 s{sGmax}, 0")
    a("s_cbranch_scc1 Lk2_done")
    a("s_barrier")
    a(f"s_sub_u32 s{sGmax}, s{sGmax}, 1")
    a("s_branch Lk2_idle")
    a("Lk2_slow:")
    a(f"s_mov_b32 s{sL}, {NB*32}")
    a("s_waitcnt vmcnt(0) lgkmcnt(0)")
    a("s_barrier")
    a("s_branch Lk2_round")
    a("Lk2_done:")
    stamp(7)
    a(f"s_add_u32 s{sBase}, s{sBase}, s{sN}")
    a(f"s_cmp_ge_u32 s{sBase}, s{sTot}")
    a("s_cbranch_scc1 Lk2_epi")
    a("s_waitcnt vmcnt(0)")
    a("s_barrier")
    a("s_branch Lk2_round")
    a("Lk2_epi:")
    a(f"v_lshlrev_b32 v{vTmp2}, 4, v{vLane}")
    a(f"v_add_u32 v{vTmp2}, 8192, v{vTmp2}")
    for i in range(8):
        a(f"global_load_dwordx4 v[{36+4*i}:{39+4*i}], v{vTmp2}, s[{sC}:{sC+1}] offset:{(i-4)*1024}")
    for i in range(14):
        a(f"v_cvt_pk_bf16_f32 v{68+i}, v{ACC+2*i}, v{ACC+2*i+1}")
    a(f"s_mul_i32 s{sT0}, s{sWave}, 4608")
    a(f"s_add_u32 s{sT0}, s{sT0}, {EA0}")
    a(f"v_mov_b32 v12, s{sT0}")
    a(f"v_mad_u32_u24 v12, v{vLane}, 36, v12")
    a(f"v_mad_u32_u24 v12, v{vLane}, 36, v12")
    a(f"v_lshrrev_b32 v13, 5, v{vLane}")
    a(f"v_bfe_u32 v14, v{vLane}, 2, 2")
    a("v_lshl_add_u32 v13, v13, 3, v14")
    a("v_mul_u32_u24 v13, 72, v13")
    a(f"v_bfe_u32 v14, v{vLane}, 4, 1")
    a("v_lshl_add_u32 v13, v14, 5, v13")
    a(f"v_add3_u32 v13, v13, v{vShf}, s{sT0}")
    a(f"s_mul_i32 s{sT1}, s{sBin}, {NPB}")
    a(f"s_add_u32 s{sT1}, s{sT1}, s{sWave}")
    a(f"s_lshl_b32 s{sT1}, s{sT1}, 9")
    a(f"v_lshrrev_b32 v14, 5, v{vLane}")
    a(f"v_lshl_add_u32 v14, v14, 13, s{sT1}")
    a(f"v_and_b32 v15, 31, v{vLane}")
    a("v_lshl_add_u32 v14, v15, 2, v14")
    a("s_barrier")
    for i in range(7):
        a(f"ds_write_b64 v12, v[{68+2*i}:{69+2*i}] offset:{8*i}")
    a("s_waitcnt lgkmcnt(0)")
    for s in range(4):
        for m in range(2):
            a(f"ds_read_b64_tr_b16 v[{68+4*s+2*m}:{69+4*s+2*m}], v13 offset:{(16*s+4*m)*72}")
    a("s_waitcnt vmcnt(0) lgkmcnt(0)")
    stamp(8)
    for s in range(4):
        for t in range(2):
            c = "0" if s == 0 else f"v[{ACC+16*t}:{ACC+16*t+15}]"
            a(f"v_mfma_f32_32x32x16_bf16 v[{ACC+16*t}:{ACC+16*t+15}], v[{68+4*s}:{71+4*s}], v[{36+8*s+4*t}:{39+8*s+4*t}], {c}")
    a(f"s_mov_b32 s{sT1}, 16384\ns_mov_b32 s{sT2}, 32768\ns_mov_b32 s{sT3}, 49152")
    nop(10)
    for r in range(16):
        q, t = r // 4, r % 4
        if r == 12:
            a(f"s_cmp_ge_u32 s{sWave}, {NPB-96}")
            a("s_cbranch_scc1 Lk2_fin")
            a("s_mov_b32 exec_hi, 0")
        a(f"v_cvt_pk_bf16_f32 v{36+r}, v{ACC+r}, v{ACC+16+r}")
        so = "0" if q == 0 else f"s{sT0+q}"
        a(f"buffer_store_dword v{36+r}, v14, s[{sOsrd}:{sOsrd+3}], {so} offen offset:{t*128}{fl(OPT['outst'])}")
    a("Lk2_fin:")
    if OPT["stamps"]:
        stamp(9)
        a("s_waitcnt vmcnt(0)")
        stamp(10)
        stamp_out(1, 11, sWs, sWave)
    a("Lk2_end:")
    a("s_endpgm")

hdr = open("standalone__tensor_product_equiv_mace__graph.s.ref").read().split("; Override launch")[0]
out = hdr
out += f"; @launch kernel=mace_bin_kernel grid=({NCH+1},1,1) block=(640,1,1) lds={K1_LDS}\n"
out += f"; @launch kernel=mace_main_kernel grid=(256,1,1) block=(1024,1,1) lds={K2_LDS}\n"
out += '.amdgcn_target "amdgcn-amd-amdhsa--gfx950"\n.text\n'
k1(); k2()
out += "\n".join(("    " + l if l and not l.endswith(":") and not l.startswith(".") else l) for l in L) + "\n"
out += '.section .rodata,"a"\n.p2align 6\n' + kd("mace_bin_kernel", 80) + ".p2align 6\n" + kd("mace_main_kernel", 128)
open(sys.argv[1], "w").write(out)
```

```python
import sys
OPT = dict(spin=-1, dbgwg=-1, safe=0, stamps=0, ntl=1, nts="", pf=1, fma="pk", ksld="", eald="", outst="", xfl="")
for a in sys.argv[2:]:
    k, v = a.split("=")
    OPT[k] = int(v) if v.lstrip("-").isdigit() else v
for k in ("nts","ksld","eald","outst","xfl"):
    OPT[k] = "" if OPT[k] in (0,"") else str(OPT[k]).replace("+"," ")

NN, NE = 25000, 800000
CH, NCH = 3200, 250
NPB = 98
MAGIC, MSH = 42800, 22
assert all((d*MAGIC) >> MSH == d//NPB for d in range(NN))
WS_TAB, WS_CONST, WS_KS, WS_EA, WS_STAMP = 0, 0x40000, 0x100000, 0xB00000, 128 << 20
CAP, NB = 3520, 10

L = []
def a(s):
    for ln in s.split("\n"):
        L.append(ln)
def nop(n):
    a(f"s_nop {n-1}")
NT = " nt" if OPT["ntl"] else ""
def fl(x): return (" " + x) if x else ""

def stamp(i):
    if OPT["stamps"]:
        a(f"s_memrealtime s[{64+2*i}:{65+2*i}]")
def stamp_out(k, n, sws, swave):
    if not OPT["stamps"]: return
    a(f"s_cmp_lg_u32 s{swave}, {OPT['stamps']-1}")
    a(f"s_cbranch_scc1 Lnostamp{k}")
    if OPT["dbgwg"] >= 0 and k == 1:
        a(f"s_cmp_lg_u32 s2, {OPT['dbgwg']}")
        a(f"s_cbranch_scc1 Lnostamp{k}")
        a("s_load_dwordx2 s[62:63], s[0:1], 72")
        a("s_waitcnt lgkmcnt(0)")
        a("s_mov_b64 exec, 1")
        a(f"v_mov_b32 v1, {WS_STAMP + OPT['dbgwg']*64}")
        a(f"global_load_dwordx4 v[4:7], v1, s[{sws}:{sws+1}]")
        a(f"global_load_dword v8, v1, s[{sws}:{sws+1}] offset:20")
        a("v_mov_b32 v1, 0")
        a("s_waitcnt vmcnt(0)")
        if OPT["spin"] >= 0:
            j = OPT["spin"]
            a(f"v_sub_u32 v2, v{4+j}, v4" if j < 5 else f"v_sub_u32 v2, s{64+2*(j-5)}, v4")
            a("s_nop 1")
            a("v_readfirstlane_b32 s60, v2")
            a("s_min_u32 s60, s60, 10000")
            a("s_lshl_b32 s60, s60, 3")
            a("Lspin:")
            a("s_memrealtime s[58:59]")
            a("s_waitcnt lgkmcnt(0)")
            a("s_sub_u32 s58, s58, s84")
            a("s_cmp_lt_u32 s58, s60")
            a("s_cbranch_scc1 Lspin")
        for j in range(1,5):
            a(f"v_sub_u32 v2, v{4+j}, v4")
            a(f"global_store_dword v1, v2, s[62:63] offset:{4*j}")
        for j in range(11):
            a(f"v_sub_u32 v2, s{64+2*j}, v4")
            a(f"global_store_dword v1, v2, s[62:63] offset:{4*(j+5)}")
        a(f"Lnostamp{k}:")
        return
    a("s_waitcnt lgkmcnt(0)")
    a("s_mov_b64 exec, 1")
    a(f"s_lshl_b32 s62, s2, 6\ns_add_u32 s62, s62, {WS_STAMP + k*256*64}")
    a("v_mov_b32 v1, s62")
    for i in range(n):
        a(f"v_mov_b32 v2, s{64+2*i}")
        a(f"global_store_dword v1, v2, s[{sws}:{sws+1}] offset:{4*i}")
    a(f"Lnostamp{k}:")

def scan(c, s1, s2, x, tot):
    a(f"v_add_u32 v{s1}, v{c}, v{c+1}")
    a(f"v_add_u32 v{s2}, v{s1}, v{c+2}")
    a(f"v_add_u32 v{tot}, v{s2}, v{c+3}")
    a(f"v_mov_b32 v{x}, v{tot}")
    for d in ("row_shr:1", "row_shr:2", "row_shr:4", "row_shr:8"):
        nop(2)
        a(f"v_add_u32_dpp v{x}, v{x}, v{x} {d} row_mask:0xf bank_mask:0xf")
    nop(2)
    a(f"v_add_u32_dpp v{x}, v{x}, v{x} row_bcast:15 row_mask:0xa bank_mask:0xf")
    nop(2)
    a(f"v_add_u32_dpp v{x}, v{x}, v{x} row_bcast:31 row_mask:0xc bank_mask:0xf")

def kd(name, vg, sg=96):
    return f""".amdhsa_kernel {name}
  .amdhsa_next_free_vgpr {vg}
  .amdhsa_next_free_sgpr {sg}
  .amdhsa_accum_offset {vg}
  .amdhsa_group_segment_fixed_size 0
  .amdhsa_kernarg_size 88
  .amdhsa_user_sgpr_count 2
  .amdhsa_user_sgpr_kernarg_segment_ptr 1
  .amdhsa_system_sgpr_workgroup_id_x 1
  .amdhsa_float_denorm_mode_32 3
.end_amdhsa_kernel
"""

K1_HIST, K1_BASE, K1_INV, K1_KS, K1_EA, K1_LDS = 0, 1024, 2048, 14848, 53248, 155648
def k1():
    a(".globl mace_bin_kernel\n.p2align 8\n.type mace_bin_kernel,@function\nmace_bin_kernel:")
    stamp(0)
    a(f"s_cmp_gt_u32 s2, {NCH}")
    a("s_cbranch_scc1 Lk1_end")
    a(f"s_cmp_eq_u32 s2, {NCH}")
    a("s_cbranch_scc1 Lk1_prep")
    a("s_load_dwordx4 s[4:7], s[0:1], 8")
    a("s_load_dwordx4 s[8:11], s[0:1], 24")
    a("s_load_dwordx2 s[12:13], s[0:1], 80")
    a("v_lshrrev_b32 v1, 6, v0")
    a("v_and_b32 v2, 63, v0")
    a("v_readfirstlane_b32 s14, v1")
    a("v_lshlrev_b32 v3, 2, v0")
    a("v_mov_b32 v4, 0")
    a("ds_write_b32 v3, v4")
    a("v_lshlrev_b32 v3, 2, v2")
    a("v_lshlrev_b32 v4, 3, v2")
    a("v_lshlrev_b32 v5, 4, v2")
    a(f"s_mul_i32 s15, s2, {CH}")
    a("s_mul_i32 s16, s14, 320")
    a("s_add_u32 s15, s15, s16")
    a("s_lshl_b32 s17, s15, 2")
    a("s_lshl_b32 s18, s15, 3")
    a("s_lshl_b32 s19, s15, 5")
    a("s_waitcnt lgkmcnt(0)")
    a("s_add_u32 s6, s6, s17\ns_addc_u32 s7, s7, 0")
    for k in range(5):
        a(f"global_load_dword v{10+k}, v3, s[6:7] offset:{k*256}{NT}")
    a("s_add_u32 s4, s4, s17\ns_addc_u32 s5, s5, 0")
    for k in range(5):
        a(f"global_load_dword v{15+k}, v3, s[4:5] offset:{k*256}{NT}")
    a("s_add_u32 s8, s8, s18\ns_addc_u32 s9, s9, 0")
    for k in range(5):
        a(f"global_load_dwordx2 v[{20+2*k}:{21+2*k}], v4, s[8:9] offset:{k*512}{NT}")
    a("s_add_u32 s10, s10, s19\ns_addc_u32 s11, s11, 0")
    a("s_lshl_b32 s20, s16, 5")
    a(f"s_add_u32 s20, s20, {K1_EA}")
    for i in range(10):
        if i % 4 == 0:
            a(f"s_add_u32 m0, s20, {i*1024}")
            a(f"v_add_u32 v6, {i*1024}, v5")
        a(f"global_load_lds_dwordx4 v6, s[10:11] offset:{(i%4)*1024}{NT}")
    a("s_barrier")
    a(f"s_mov_b32 s21, {MAGIC}")
    a(f"s_mov_b32 s22, {-NPB}")
    a("v_mov_b32 v7, 1")
    a("s_waitcnt vmcnt(20)")
    stamp(1)
    for k in range(5):
        a(f"v_mul_u32_u24 v{30+k}, s21, v{10+k}")
        a(f"v_lshrrev_b32 v{30+k}, {MSH}, v{30+k}")
        a(f"v_mad_i32_i24 v{10+k}, v{30+k}, s22, v{10+k}")
        a(f"v_lshlrev_b32 v{30+k}, 2, v{30+k}")
        a(f"ds_add_rtn_u32 v{35+k}, v{30+k}, v7 offset:{K1_HIST}")
    a("s_waitcnt lgkmcnt(0)")
    a("s_barrier")
    a(f"ds_read_b128 v[40:43], v5 offset:{K1_HIST}")
    a("s_mul_i32 s23, s14, 26")
    a("v_add_u32 v48, s23, v2")
    a("v_cmp_gt_u32 s[24:25], 26, v2")
    a("v_cmp_gt_u32 vcc, 0x100, v48")
    a("s_and_b64 s[24:25], s[24:25], vcc")
    a("v_and_b32 v48, 0xff, v48")
    a("v_lshlrev_b32 v49, 2, v48")
    a("v_lshlrev_b32 v48, 10, v48")
    a("s_lshl_b32 s23, s2, 2")
    a("v_add_u32 v48, s23, v48")
    a("s_waitcnt lgkmcnt(0)")
    scan(40, 44, 45, 46, 47)
    a("v_sub_u32 v46, v46, v47")
    a("v_add_u32 v41, v46, v40")
    a("v_add_u32 v42, v46, v44")
    a("v_add_u32 v43, v46, v45")
    a("v_mov_b32 v40, v46")
    a(f"ds_write_b128 v5, v[40:43] offset:{K1_BASE}")
    for k in range(5):
        a(f"ds_read_b32 v{30+k}, v{30+k} offset:{K1_BASE}")
    a(f"ds_read_b32 v50, v49 offset:{K1_BASE}")
    a(f"ds_read_b32 v51, v49 offset:{K1_HIST}")
    a("s_waitcnt vmcnt(10)")
    for k in range(5):
        a(f"v_and_b32 v52, 15, v{10+k}")
        a(f"v_lshrrev_b32 v{10+k}, 4, v{10+k}")
        a(f"v_lshlrev_b32 v52, 24, v52")
        a(f"v_lshl_or_b32 v52, v{10+k}, 2, v52")
        a(f"v_lshl_or_b32 v{15+k}, v{15+k}, 9, v52")
    a("v_lshl_add_u32 v53, v2, 5, s20")
    a("s_waitcnt lgkmcnt(0)")
    a("v_lshl_or_b32 v50, v51, 16, v50")
    a("s_mov_b64 exec, s[24:25]")
    a(f"global_store_dword v48, v50, s[12:13]")
    a("s_mov_b64 exec, -1")
    for k in range(5):
        a(f"v_add_u32 v{30+k}, v{30+k}, v{35+k}")
        a(f"v_lshlrev_b32 v{35+k}, 2, v{30+k}")
        a(f"v_mul_u32_u24 v{30+k}, 12, v{30+k}")
        if k: a(f"v_add_u32 v{53+k}, {k*2048}, v53")
        a(f"ds_write_b32 v{35+k}, v{53+k} offset:{K1_INV}")
        a(f"v_add_u32 v{30+k}, {K1_KS}, v{30+k}")
        a(f"ds_write_b32 v{30+k}, v{15+k}")
        a(f"ds_write2_b32 v{30+k}, v{20+2*k}, v{21+2*k} offset0:1 offset1:2")
    a("s_waitcnt lgkmcnt(0)")
    a("s_barrier")
    stamp(2)
    a("s_mul_i32 s23, s14, 3840")
    a("v_add_u32 v8, s23, v5")
    for i in range(4):
        a(f"ds_read_b128 v[{12+4*i}:{15+4*i}], v8 offset:{K1_KS+i*1024}")
    a("v_lshrrev_b32 v9, 1, v2")
    a("v_add_u32 v9, s16, v9")
    a("v_lshlrev_b32 v9, 2, v9")
    for i in range(10):
        a(f"ds_read_b32 v{30+i}, v9 offset:{K1_INV+i*128}")
    a(f"s_mul_i32 s23, s2, {CH*12}")
    a(f"s_add_u32 s23, s23, {WS_KS}")
    a("s_add_u32 s26, s12, s23\ns_addc_u32 s27, s13, 0")
    a(f"s_add_u32 s19, s19, {WS_EA}")
    a("s_add_u32 s28, s12, s19\ns_addc_u32 s29, s13, 0")
    a("v_and_b32 v10, 1, v2")
    a("v_lshlrev_b32 v10, 4, v10")
    a("s_waitcnt lgkmcnt(10)")
    for i in range(4):
        if i == 3: a("s_mov_b32 exec_hi, 0xffff")
        a(f"global_store_dwordx4 v8, v[{12+4*i}:{15+4*i}], s[26:27] offset:{i*1024}{fl(OPT['nts'])}")
    a("s_mov_b64 exec, -1")
    a("s_waitcnt lgkmcnt(0)")
    for i in range(10):
        a(f"v_add_u32 v{30+i}, v{30+i}, v10")
    a("s_waitcnt vmcnt(5)")
    a("s_barrier")
    stamp(3)
    for i in range(10):
        a(f"ds_read_b128 v[{40+4*i}:{43+4*i}], v{30+i}")
    a("v_add_u32 v6, 4096, v5")
    a("v_add_u32 v7, 8192, v5")
    for i in range(10):
        a(f"s_waitcnt lgkmcnt({9-i})")
        a(f"global_store_dwordx4 v{5+i//4}, v[{40+4*i}:{43+4*i}], s[28:29] offset:{(i%4)*1024}{fl(OPT['nts'])}")
    if OPT["stamps"]:
        stamp(4)
        a("s_waitcnt vmcnt(0)")
        stamp(5)
        stamp_out(0, 6, 12, 14)
    a("Lk1_end:")
    a("s_endpgm")
    a("Lk1_prep:")
    a("s_load_dwordx4 s[4:7], s[0:1], 40")
    a("s_load_dwordx2 s[8:9], s[0:1], 56")
    a("s_load_dwordx2 s[12:13], s[0:1], 80")
    a("v_lshrrev_b32 v1, 6, v0")
    a("v_and_b32 v2, 63, v0")
    a("v_readfirstlane_b32 s14, v1")
    a("v_lshlrev_b32 v5, 4, v2")
    a("s_waitcnt lgkmcnt(0)")
    a(f"s_add_u32 s12, s12, {WS_CONST}\ns_addc_u32 s13, s13, 0")
    def gather8(base, offs, dstoff_s):
        for k in range(8):
            a(f"global_load_ushort v{10+k}, v3, s[{base}:{base+1}] offset:{offs[k]}")
        a("s_waitcnt vmcnt(0)")
        for k in range(4):
            a(f"v_lshl_or_b32 v{20+k}, v{11+2*k}, 16, v{10+2*k}")
        a(f"v_add_u32 v6, s{dstoff_s}, v5")
        a("global_store_dwordx4 v6, v[20:23], s[12:13]")
        a("s_waitcnt vmcnt(0)")
    a("s_cmp_ge_u32 s14, 8")
    a("s_cbranch_scc1 Lk1_prep2")
    a("s_lshr_b32 s15, s14, 1")
    a("s_and_b32 s16, s14, 1")
    a("s_lshl_b32 s15, s15, 11")
    a("s_lshl_b32 s16, s16, 1")
    a("s_add_u32 s15, s15, s16")
    a("v_lshrrev_b32 v3, 5, v2")
    a("v_lshlrev_b32 v3, 10, v3")
    a("v_and_b32 v4, 31, v2")
    a("v_lshl_add_u32 v3, v4, 2, v3")
    a("v_add_u32 v3, s15, v3")
    a("s_lshl_b32 s17, s14, 10")
    a("s_add_u32 s17, s17, 4096")
    gather8(8, [k*128 for k in range(8)], 17)
    a("s_endpgm")
    a("Lk1_prep2:")
    a("s_sub_u32 s14, s14, 8")
    a("s_lshl_b32 s17, s14, 10")
    a("v_lshl_add_u32 v3, v2, 1, s17")
    gather8(6, [k*128 for k in range(8)], 17)
    a("s_lshl_b32 s15, s14, 4")
    a("v_and_b32 v3, 3, v2")
    a("v_lshl_add_u32 v3, v3, 1, s15")
    a("s_add_u32 s17, s17, 2048")
    gather8(4, [(k//2)*32 + (k%2)*8 for k in range(8)], 17)
    a("s_endpgm")

RING, HIST, BASE, EA0, K2_LDS = 0, 49152, 50176, 51200, 163840
S0, SHS = 0, CAP*4
vLs, vT, vEa, vShf, vK, vP, vSH, vAdr, vTmp = 1, [2,3,4], 5, 6, 7, 8, 9, 10, 11
vA, vB, vLane, vTmp2 = 12, 14, 18, 19
vWr, vCg, vEaA, vD, vRw, vPr, vSr, vPos, vG, ACC = 20, 28, 36, 44, 52, 68, 78, 88, 92, 96
sX, sOut, sKS, sEA, sC, sWs = 4, 6, 8, 10, 12, 14
sTab, sOsrd = 16, 20
sWave, sBin, sTot, sBase, sL, sN, sStart, sCnt, sG, sGw, sGmax, sErr, sBlk = 24,25,26,27,28,29,30,31,32,33,34,35,36
sM0 = [37,38,39]
sI = 40
sMk = 48
sEx = 56
sT0, sT1, sT2, sT3 = 58, 59, 60, 61

def k2():
    a(".globl mace_main_kernel\n.p2align 8\n.type mace_main_kernel,@function\nmace_main_kernel:")
    stamp(0)
    a("s_cmp_ge_u32 s2, 256")
    a("s_cbranch_scc1 Lk2_end")
    a(f"s_load_dwordx2 s[{sWs}:{sWs+1}], s[0:1], 80")
    a(f"s_load_dwordx2 s[{sX}:{sX+1}], s[0:1], 0")
    a(f"s_load_dwordx2 s[{sOut}:{sOut+1}], s[0:1], 64")
    a(f"v_lshrrev_b32 v{vTmp}, 6, v0")
    a(f"v_and_b32 v{vLane}, 63, v0")
    a(f"v_readfirstlane_b32 s{sWave}, v{vTmp}")
    a(f"s_and_b32 s{sBin}, s2, 7")
    a(f"s_lshl_b32 s{sBin}, s{sBin}, 5")
    a(f"s_lshr_b32 s{sT0}, s2, 3")
    a(f"s_add_u32 s{sBin}, s{sBin}, s{sT0}")
    a(f"s_lshl_b32 s{sT0}, s{sBin}, 10")
    a(f"v_lshlrev_b32 v{vTmp2}, 4, v{vLane}")
    a(f"s_mov_b32 s{sTab+2}, {NCH*4}")
    a(f"s_mov_b32 s{sTab+3}, 0x20000")
    a("s_waitcnt lgkmcnt(0)")
    a(f"s_add_u32 s{sTab}, s{sWs}, s{sT0}")
    a(f"s_addc_u32 s{sTab+1}, s{sWs+1}, 0")
    a(f"buffer_load_dwordx4 v[36:39], v{vTmp2}, s[{sTab}:{sTab+3}], 0 offen")
    a(f"s_add_u32 s{sC}, s{sWs}, {WS_CONST}\ns_addc_u32 s{sC+1}, s{sWs+1}, 0")
    for i in range(4):
        a(f"global_load_dwordx4 v[{vWr+4*i}:{vWr+4*i+3}], v{vTmp2}, s[{sC}:{sC+1}] offset:{i*1024}")
    npre = 4
    if OPT["pf"]:
        a(f"s_min_u32 s{sT0}, s2, 249")
        a(f"s_lshl_b32 s{sT0}, s{sT0}, 4")
        a(f"s_add_u32 s{sT0}, s{sT0}, s{sWave}")
        a(f"s_mul_i32 s{sT0}, s{sT0}, 3200")
        a(f"v_min_u32 v{vTmp}, 24, v{vLane}")
        a(f"v_lshl_add_u32 v{vTmp}, v{vTmp}, 7, s{sT0}")
        a(f"global_load_dword v{vAdr}, v{vTmp}, s[{sX}:{sX+1}]")
        npre += 1
    a(f"s_add_u32 s{sKS}, s{sWs}, {WS_KS}\ns_addc_u32 s{sKS+1}, s{sWs+1}, 0")
    a(f"s_add_u32 s{sEA}, s{sWs}, {WS_EA}\ns_addc_u32 s{sEA+1}, s{sWs+1}, 0")
    a(f"s_mov_b32 s{sOsrd}, s{sOut}\ns_mov_b32 s{sOsrd+1}, s{sOut+1}\ns_mov_b32 s{sOsrd+2}, {NN*512}\ns_mov_b32 s{sOsrd+3}, 0x20000")
    a(f"s_mov_b32 s{sBase}, 0\ns_mov_b32 s{sL}, {CAP}")
    a(f"s_mov_b32 s{sEx}, 0x0f0f0f0f\ns_mov_b32 s{sEx+1}, 0xf0f0f0f0")
    for i in range(32):
        a(f"v_mov_b32 v{ACC+i}, 0")
    a(f"v_bfe_u32 v40, v{vLane}, 2, 2")
    a(f"v_and_b32 v41, 3, v{vLane}")
    a(f"v_lshrrev_b32 v42, 5, v{vLane}")
    a(f"v_lshlrev_b32 v{vLs}, 7, v40")
    a(f"v_lshl_add_u32 v{vLs}, v42, 6, v{vLs}")
    a(f"v_lshl_add_u32 v{vLs}, v41, 4, v{vLs}")
    a(f"v_lshlrev_b32 v{vShf}, 3, v41")
    a(f"s_waitcnt vmcnt({npre})")
    a("s_branch Lk2_havetab")
    a("Lk2_round:")
    a(f"v_lshlrev_b32 v{vTmp2}, 4, v{vLane}")
    a(f"buffer_load_dwordx4 v[36:39], v{vTmp2}, s[{sTab}:{sTab+3}], 0 offen")
    a("s_waitcnt vmcnt(0)")
    a("Lk2_havetab:")
    stamp(1)
    a(f"v_and_b32 v60, 0xff, v0")
    a(f"v_lshlrev_b32 v60, 2, v60")
    a(f"v_mov_b32 v61, 0")
    a(f"ds_write_b32 v60, v61 offset:{HIST}")
    a(f"v_mul_u32_u24 v52, {4*CH}, v{vLane}")
    for j in range(4):
        a(f"v_lshrrev_b32 v{40+j}, 16, v{36+j}")
        a(f"v_and_b32 v{44+j}, 0xffff, v{36+j}")
        if j: a(f"v_add_u32 v52, {CH}, v52")
        a(f"v_add_u32 v{44+j}, v{44+j}, v52")
    scan(40, 53, 54, 55, 56)
    a("v_sub_u32 v48, v55, v56")
    a(f"v_readlane_b32 s{sTot}, v55, 63")
    a("v_add_u32 v49, v48, v40")
    a("v_add_u32 v50, v48, v53")
    a("v_add_u32 v51, v48, v54")
    a(f"s_sub_u32 s{sN}, s{sTot}, s{sBase}")
    a(f"s_min_u32 s{sN}, s{sN}, s{sL}")
    a(f"s_cmp_eq_u32 s{sN}, s{sTot}")
    a("s_cbranch_scc1 Lk2_noclip")
    a(f"s_add_u32 s{sT0}, s{sBase}, s{sN}")
    for j in range(4):
        a(f"v_add_u32 v52, v{48+j}, v{40+j}")
        a(f"v_min_u32 v52, s{sT0}, v52")
        a(f"v_max_u32 v53, s{sBase}, v{48+j}")
        a(f"v_sub_u32 v52, v52, v53")
        a(f"v_max_i32 v{40+j}, 0, v52")
        a(f"v_sub_u32 v52, v53, v{48+j}")
        a(f"v_add_u32 v{44+j}, v{44+j}, v52")
        a(f"v_subrev_u32 v{48+j}, s{sBase}, v53")
    a("Lk2_noclip:")
    a(f"s_mov_b32 s{sT0}, s{sWave}")
    for j in range(4):
        a(f"v_add_lshl_u32 v{48+j}, v{48+j}, s{sWave}, 2")
        a(f"v_add_u32 v{44+j}, s{sWave}, v{44+j}")
    a("v_max_u32 v52, v40, v41")
    a("v_max3_u32 v52, v42, v43, v52")
    a("Lk2_exp:")
    for j in range(4):
        a(f"v_cmp_lt_u32 s[{sMk+2*j}:{sMk+2*j+1}], s{sT0}, v{40+j}")
    a(f"s_add_u32 s{sT0}, s{sT0}, 16")
    a(f"v_cmp_lt_u32 vcc, s{sT0}, v52")
    for j in range(4):
        a(f"s_mov_b64 exec, s[{sMk+2*j}:{sMk+2*j+1}]")
        a(f"ds_write_b32 v{48+j}, v{44+j}")
    a("s_mov_b64 exec, -1")
    a("s_cbranch_vccz Lk2_expdone")
    a("s_waitcnt lgkmcnt(0)")
    for j in range(4):
        a(f"v_add_u32 v{48+j}, 64, v{48+j}")
        a(f"v_add_u32 v{44+j}, 16, v{44+j}")
    a("s_branch Lk2_exp")
    a("Lk2_expdone:")
    a(f"v_lshlrev_b32 v{vTmp}, 2, v0")
    for k in range(4):
        a(f"v_add_u32 v57, {1024*k}, v0")
        a(f"v_cmp_gt_u32 s[{sMk+2*k}:{sMk+2*k+1}], s{sN}, v57")
    a("s_waitcnt lgkmcnt(0)")
    a("s_barrier")
    for k in range(4):
        a(f"ds_read_b32 v{vG+k}, v{vTmp} offset:{k*4096}")
    for k in range(4):
        a(f"s_waitcnt lgkmcnt({3-k})" if not OPT["stamps"] else "s_waitcnt lgkmcnt(0)")
        a(f"v_cndmask_b32 v{vG+k}, 0, v{vG+k}, s[{sMk+2*k}:{sMk+2*k+1}]")
        if OPT["safe"]: a(f"v_min_u32 v{vG+k}, {NE-1}, v{vG+k}")
        a(f"v_mul_u32_u24 v{vPos+k}, 12, v{vG+k}")
        a(f"global_load_dwordx3 v[{68+4*k}:{70+4*k}], v{vPos+k}, s[{sKS}:{sKS+1}]{fl(OPT['ksld'])}")
    for k in range(4):
        a(f"v_lshlrev_b32 v{vG+k}, 5, v{vG+k}")
        a(f"global_load_dwordx4 v[{36+8*k}:{39+8*k}], v{vG+k}, s[{sEA}:{sEA+1}]{fl(OPT['eald'])}")
        a(f"global_load_dwordx4 v[{40+8*k}:{43+8*k}], v{vG+k}, s[{sEA}:{sEA+1}] offset:16{fl(OPT['eald'])}")
    stamp(2)
    a(f"v_mov_b32 v{vTmp}, 1")
    for k in range(4):
        a(f"s_waitcnt vmcnt({11-k})")
        a(f"v_lshrrev_b32 v{71+4*k}, 18, v{68+4*k}")
        a(f"v_and_b32 v{71+4*k}, 0x3fc, v{71+4*k}")
        a(f"s_mov_b64 exec, s[{sMk+2*k}:{sMk+2*k+1}]")
        a(f"ds_add_rtn_u32 v{vPos+k}, v{71+4*k}, v{vTmp} offset:{HIST}")
        a("s_mov_b64 exec, -1")
    stamp(3)
    a(f"v_lshlrev_b32 v{vTmp2}, 4, v{vLane}")
    a("s_waitcnt lgkmcnt(0)")
    a("s_barrier")
    a(f"ds_read_b128 v[84:87], v{vTmp2} offset:{HIST}")
    a(f"s_lshl_b32 s{sT1}, s{sWave}, 2")
    a("s_waitcnt lgkmcnt(0)")
    scan(84, 92, 93, 94, 95)
    a("v_sub_u32 v94, v94, v95")
    a("v_add_u32_dpp v95, v95, v95 quad_perm:[1,0,3,2] row_mask:0xf bank_mask:0xf")
    a("v_add_u32 v85, v94, v84")
    a("v_add_u32 v86, v94, v92")
    a("v_add_u32_dpp v95, v95, v95 quad_perm:[2,3,0,1] row_mask:0xf bank_mask:0xf")
    a("v_add_u32 v87, v94, v93")
    a("v_mov_b32 v84, v94")
    a(f"ds_write_b128 v{vTmp2}, v[84:87] offset:{BASE}")
    for k in range(4):
        a(f"ds_read_b32 v{71+4*k}, v{71+4*k} offset:{BASE}")
    a(f"v_readlane_b32 s{sStart}, v94, s{sT1}")
    a(f"v_readlane_b32 s{sCnt}, v95, s{sT1}")
    for d, rm in (("row_shr:4","0xf"), ("row_shr:8","0xf"), ("row_bcast:15","0xa"), ("row_bcast:31","0xc")):
        a(f"v_max_u32_dpp v95, v95, v95 {d} row_mask:{rm} bank_mask:0xf")
        nop(2)
    a(f"v_readlane_b32 s{sGmax}, v95, 63")
    nop(1)
    a(f"s_cmp_gt_u32 s{sGmax}, {NB*32}")
    a("s_cbranch_scc1 Lk2_slow")
    a(f"s_add_u32 s{sGmax}, s{sGmax}, 15\ns_lshr_b32 s{sGmax}, s{sGmax}, 4")
    a(f"s_add_u32 s{sGw}, s{sCnt}, 15\ns_lshr_b32 s{sGw}, s{sGw}, 4")
    a("s_waitcnt lgkmcnt(0)")
    for k in range(4):
        a(f"v_add_u32 v{vPos+k}, v{vPos+k}, v{71+4*k}")
        a(f"v_lshlrev_b32 v{71+4*k}, 2, v{vPos+k}")
        a(f"v_lshlrev_b32 v{vG+k}, 3, v{vPos+k}")
        a(f"v_add_u32 v{vG+k}, {SHS}, v{vG+k}")
        a(f"s_mov_b64 exec, s[{sMk+2*k}:{sMk+2*k+1}]")
        a(f"ds_write_b32 v{71+4*k}, v{68+4*k} offset:{S0}")
        a(f"ds_write2_b32 v{vG+k}, v{69+4*k}, v{70+4*k} offset0:0 offset1:1")
        a("s_mov_b64 exec, -1")
        a(f"v_lshlrev_b32 v{vPos+k}, 5, v{vPos+k}")
    a(f"v_and_b32 v12, 15, v{vLane}")
    a(f"v_bfe_u32 v13, v{vLane}, 4, 1")
    a("v_lshl_add_u32 v12, v12, 1, v13")
    a(f"v_add_lshl_u32 v13, v12, s{sStart}, 2")
    a(f"v_lshrrev_b32 v14, 2, v{vLane}")
    a(f"v_bfe_u32 v15, v{vLane}, 1, 1")
    a("v_lshl_add_u32 v14, v15, 4, v14")
    a(f"v_add_lshl_u32 v14, v14, s{sStart}, 3")
    a(f"v_and_b32 v15, 1, v{vLane}")
    a("v_lshl_add_u32 v14, v15, 2, v14")
    a("s_waitcnt lgkmcnt(0)")
    a("s_barrier")
    stamp(4)
    for b in range(NB):
        a(f"ds_read_b32 v{vPr+b}, v13 offset:{S0+b*128}")
    for b in range(NB):
        a(f"ds_read_b32 v{vSr+b}, v14 offset:{SHS+b*256}")
    a(f"s_mul_i32 s{sM0[0]}, s{sWave}, 3072")
    a(f"s_add_u32 s{sM0[1]}, s{sM0[0]}, 1024")
    a(f"s_add_u32 s{sM0[2]}, s{sM0[0]}, 2048")
    a(f"v_lshrrev_b32 v15, 5, v{vLane}")
    a(f"v_lshl_add_u32 v{vT[0]}, v15, 9, s{sM0[0]}")
    a(f"v_bfe_u32 v15, v{vLane}, 2, 2")
    a(f"v_lshl_add_u32 v{vT[0]}, v15, 6, v{vT[0]}")
    a(f"v_bfe_u32 v15, v{vLane}, 4, 1")
    a(f"v_lshl_add_u32 v{vT[0]}, v15, 5, v{vT[0]}")
    a(f"v_add_u32 v{vT[0]}, v{vT[0]}, v{vShf}")
    a(f"v_add_u32 v{vT[1]}, 1024, v{vT[0]}")
    a(f"v_add_u32 v{vT[2]}, 2048, v{vT[0]}")
    a(f"v_bfe_u32 v15, v{vLane}, 3, 2")
    a(f"v_and_b32 v16, 3, v{vLane}")
    a("v_lshl_add_u32 v15, v15, 2, v16")
    a(f"v_add_lshl_u32 v{vEa}, v15, s{sStart}, 5")
    a(f"v_add_u32 v{vEa}, {EA0}, v{vEa}")
    a(f"v_mov_b32 v16, 28")
    a(f"v_subrev_u32 v12, s{sCnt}, v12")
    a("s_waitcnt lgkmcnt(0)")
    a("s_barrier")
    for b in range(NB):
        a(f"v_cmp_gt_i32 vcc, {-32*b}, v12")
        nop(2)
        a(f"v_cndmask_b32 v{vPr+b}, v16, v{vPr+b}, vcc")
        if b == 0:
            a(f"v_and_b32 v{vK}, 0xfffe00, v{vPr}")
            if OPT["safe"]: a(f"v_min_u32 v{vK}, {(NN-1)*512}, v{vK}")
            a(f"v_mov_b32 v{vP}, v{vPr}")
            a(f"v_mov_b32 v{vSH}, v{vSr}")
            for p in range(3):
                a(f"s_mov_b32 m0, s{sM0[p]}")
                a(f"v_add_u32_dpp v{vAdr}, v{vK}, v{vLs} row_newbcast:{p} row_mask:0xf bank_mask:0xf")
                a(f"global_load_lds_dwordx4 v{vAdr}, s[{sX}:{sX+1}]{fl(OPT['xfl'])}")
    stamp(5)
    for k in range(4):
        a(f"s_waitcnt vmcnt({3+2*(3-k)})")
        a(f"s_mov_b64 exec, s[{sMk+2*k}:{sMk+2*k+1}]")
        a(f"ds_write_b128 v{vPos+k}, v[{36+8*k}:{39+8*k}] offset:{EA0}")
        a(f"ds_write_b128 v{vPos+k}, v[{40+8*k}:{43+8*k}] offset:{EA0+16}")
    a("s_mov_b64 exec, -1")
    a(f"s_mov_b32 s{sErr}, 0\ns_mov_b32 s{sBlk}, 0\ns_mov_b32 s{sG}, s{sGw}")
    a("s_waitcnt lgkmcnt(0)")
    stamp(6)
    for i in range(8):
        a(f"v_mov_b32 v{vEaA+i}, 0")
    a(f"s_cmp_eq_u32 s{sGw}, 0")
    a("s_cbranch_scc1 Lk2_idle")
    a(".p2align 6")
    a("Lk2_blk:")
    a(f"v_and_b32 v{vTmp}, 28, v{vP}")
    a(f"v_lshlrev_b32 v{vTmp}, v{vShf}, v{vTmp}")
    nop(2)
    a(f"v_or_b32_dpp v{vTmp}, v{vTmp}, v{vTmp} quad_perm:[1,0,3,2] row_mask:0xf bank_mask:0xf")
    nop(2)
    a(f"v_or_b32_dpp v{vTmp}, v{vTmp}, v{vTmp} quad_perm:[2,3,0,1] row_mask:0xf bank_mask:0xf")
    nop(1)
    for i in range(8):
        a(f"v_readlane_b32 s{sI+i}, v{vTmp}, {4*i}")
    for p in range(16):
        g, pp = p // 8, p % 8
        sl = p % 3
        if pp == 0:
            a(f"s_add_u32 s{sErr}, s{sErr}, s{sGmax}")
            a(f"Lk2_bar{g}:")
            a("s_barrier")
            a(f"s_sub_u32 s{sErr}, s{sErr}, s{sGw}")
            a(f"s_cmp_ge_u32 s{sErr}, s{sGw}")
            a(f"s_cbranch_scc1 Lk2_bar{g}")
            a(f"s_mov_b64 exec, s[{sEx}:{sEx+1}]")
            a(f"ds_read_b128 v[{vEaA}:{vEaA+3}], v{vEa} offset:{g*512}")
            a(f"ds_read_b128 v[{vEaA+4}:{vEaA+7}], v{vEa} offset:{g*512+16}")
            a("s_mov_b64 exec, -1")
        a("s_waitcnt vmcnt(2)")
        a(f"ds_read_b64_tr_b16 v[{vB}:{vB+1}], v{vT[sl]}")
        a(f"ds_read_b64_tr_b16 v[{vB+2}:{vB+3}], v{vT[sl]} offset:256")
        if pp == 0:
            q0, q1 = 2*g, 2*g+1
            a(f"v_mov_b32_dpp v{vD+4}, v{vSH} quad_perm:[{q0},{q0},{q0},{q0}] row_mask:0xf bank_mask:0xf")
            a(f"v_mov_b32_dpp v{vD+5}, v{vSH} quad_perm:[{q1},{q1},{q1},{q1}] row_mask:0xf bank_mask:0xf")
            for u in range(4):
                a(f"v_dot2_f32_bf16 v{vD+u}, v{vD+4}, v{vCg+u}, 0")
            for u in range(4):
                a(f"v_dot2_f32_bf16 v{vD+u}, v{vD+5}, v{vCg+4+u}, v{vD+u}")
            nop(1)
            a(f"v_cvt_pk_bf16_f32 v{vA}, v{vD}, v{vD+1}")
            nop(1)
            a(f"v_cvt_pk_bf16_f32 v{vA+1}, v{vD+2}, v{vD+3}")
        if p == 13:
            a(f"s_add_u32 s{sBlk}, s{sBlk}, 1")
            a(f"s_min_u32 s{sBlk}, s{sBlk}, {NB-1}")
            a(f"s_set_gpr_idx_on s{sBlk}, 0x1")
            a(f"v_mov_b32 v{vP}, v{vPr}")
            a(f"v_mov_b32 v{vSH}, v{vSr}")
            a("s_set_gpr_idx_off")
            a(f"v_and_b32 v{vK}, 0xfffe00, v{vP}")
            if OPT["safe"]: a(f"v_min_u32 v{vK}, {(NN-1)*512}, v{vK}")
        a(f"s_mov_b32 m0, s{sM0[sl]}")
        a("s_waitcnt lgkmcnt(0)")
        dma = [f"v_add_u32_dpp v{vAdr}, v{vK}, v{vLs} row_newbcast:{(p+3)%16} row_mask:0xf bank_mask:0xf",
               f"global_load_lds_dwordx4 v{vAdr}, s[{sX}:{sX+1}]{fl(OPT['xfl'])}"]
        tp = [f"v_mfma_f32_4x4x4_16b_bf16 v[{vD+4*s}:{vD+4*s+3}], v[{vA}:{vA+1}], v[{vB+2*s}:{vB+2*s+1}], 0 cbsz:4 abid:{2*pp+s}" for s in range(2)]
        if pp == 0:
            for x in dma: a(x)
            a(f"v_mfma_f32_32x32x16_bf16 v[{vRw}:{vRw+15}], v[{vEaA}:{vEaA+3}], v[{vWr}:{vWr+3}], 0")
            a(f"v_mfma_f32_32x32x16_bf16 v[{vRw}:{vRw+15}], v[{vEaA+4}:{vEaA+7}], v[{vWr+4}:{vWr+7}], v[{vRw}:{vRw+15}]")
            for x in tp: a(x)
            nop(9)
        else:
            for x in tp: a(x)
            for x in dma: a(x)
            if p % 4 == 0: nop(1)
        for s in range(2):
            si = sI + 4*s + p//4
            if p % 4: a(f"s_lshr_b32 s{si}, s{si}, 8")
            j = 2*pp + s
            if OPT["fma"] == "pk":
                a(f"s_set_gpr_idx_on s{si}, 0xc" if s == 0 else f"s_set_gpr_idx_idx s{si}")
                sel = "op_sel_hi:[1,0,1]" if s == 0 else "op_sel:[0,1,0] op_sel_hi:[1,1,1]"
                for h in range(2):
                    a(f"v_pk_fma_f32 v[{ACC+2*h}:{ACC+2*h+1}], v[{vD+4*s+2*h}:{vD+4*s+2*h+1}], v[{vRw+2*pp}:{vRw+2*pp+1}], v[{ACC+2*h}:{ACC+2*h+1}] {sel}")
            else:
                a(f"s_set_gpr_idx_on s{si}, 0x8" if s == 0 else f"s_set_gpr_idx_idx s{si}")
                for w in range(4):
                    a(f"v_fmac_f32 v{ACC+w}, v{vD+4*s+w}, v{vRw+j}")
        a("s_set_gpr_idx_off")
        if pp == 7:
            a(f"s_sub_u32 s{sG}, s{sG}, 1")
            a(f"s_cmp_eq_u32 s{sG}, 0")
            a("s_cbranch_scc1 Lk2_done")
    a(f"v_swap_b32 v{vT[0]}, v{vT[1]}")
    a(f"v_swap_b32 v{vT[1]}, v{vT[2]}")
    a(f"v_add_u32 v{vEa}, 1024, v{vEa}")
    a(f"s_mov_b32 s{sT0}, s{sM0[0]}\ns_mov_b32 s{sM0[0]}, s{sM0[1]}\ns_mov_b32 s{sM0[1]}, s{sM0[2]}\ns_mov_b32 s{sM0[2]}, s{sT0}")
    a("s_branch Lk2_blk")
    a("Lk2_idle:")
    a(f"s_cmp_eq_u32 s{sGmax}, 0")
    a("s_cbranch_scc1 Lk2_done")
    a("s_barrier")
    a(f"s_sub_u32 s{sGmax}, s{sGmax}, 1")
    a("s_branch Lk2_idle")
    a("Lk2_slow:")
    a(f"s_mov_b32 s{sL}, {NB*32}")
    a("s_waitcnt vmcnt(0) lgkmcnt(0)")
    a("s_barrier")
    a("s_branch Lk2_round")
    a("Lk2_done:")
    stamp(7)
    a(f"s_add_u32 s{sBase}, s{sBase}, s{sN}")
    a(f"s_cmp_ge_u32 s{sBase}, s{sTot}")
    a("s_cbranch_scc1 Lk2_epi")
    a("s_waitcnt vmcnt(0)")
    a("s_barrier")
    a("s_branch Lk2_round")
    a("Lk2_epi:")
    a(f"v_lshlrev_b32 v{vTmp2}, 4, v{vLane}")
    a(f"v_add_u32 v{vTmp2}, 8192, v{vTmp2}")
    for i in range(8):
        a(f"global_load_dwordx4 v[{36+4*i}:{39+4*i}], v{vTmp2}, s[{sC}:{sC+1}] offset:{(i-4)*1024}")
    for i in range(14):
        a(f"v_cvt_pk_bf16_f32 v{68+i}, v{ACC+2*i}, v{ACC+2*i+1}")
    a(f"s_mul_i32 s{sT0}, s{sWave}, 4608")
    a(f"s_add_u32 s{sT0}, s{sT0}, {EA0}")
    a(f"v_mov_b32 v12, s{sT0}")
    a(f"v_mad_u32_u24 v12, v{vLane}, 36, v12")
    a(f"v_mad_u32_u24 v12, v{vLane}, 36, v12")
    a(f"v_lshrrev_b32 v13, 5, v{vLane}")
    a(f"v_bfe_u32 v14, v{vLane}, 2, 2")
    a("v_lshl_add_u32 v13, v13, 3, v14")
    a("v_mul_u32_u24 v13, 72, v13")
    a(f"v_bfe_u32 v14, v{vLane}, 4, 1")
    a("v_lshl_add_u32 v13, v14, 5, v13")
    a(f"v_add3_u32 v13, v13, v{vShf}, s{sT0}")
    a(f"s_mul_i32 s{sT1}, s{sBin}, {NPB}")
    a(f"s_add_u32 s{sT1}, s{sT1}, s{sWave}")
    a(f"s_lshl_b32 s{sT1}, s{sT1}, 9")
    a(f"v_lshrrev_b32 v14, 5, v{vLane}")
    a(f"v_lshl_add_u32 v14, v14, 13, s{sT1}")
    a(f"v_and_b32 v15, 31, v{vLane}")
    a("v_lshl_add_u32 v14, v15, 2, v14")
    a("s_barrier")
    for i in range(7):
        a(f"ds_write_b64 v12, v[{68+2*i}:{69+2*i}] offset:{8*i}")
    a("s_waitcnt lgkmcnt(0)")
    for s in range(4):
        for m in range(2):
            a(f"ds_read_b64_tr_b16 v[{68+4*s+2*m}:{69+4*s+2*m}], v13 offset:{(16*s+4*m)*72}")
    a("s_waitcnt vmcnt(0) lgkmcnt(0)")
    stamp(8)
    for s in range(4):
        for t in range(2):
            c = "0" if s == 0 else f"v[{ACC+16*t}:{ACC+16*t+15}]"
            a(f"v_mfma_f32_32x32x16_bf16 v[{ACC+16*t}:{ACC+16*t+15}], v[{68+4*s}:{71+4*s}], v[{36+8*s+4*t}:{39+8*s+4*t}], {c}")
    a(f"s_mov_b32 s{sT1}, 16384\ns_mov_b32 s{sT2}, 32768\ns_mov_b32 s{sT3}, 49152")
    nop(10)
    for r in range(16):
        q, t = r // 4, r % 4
        if r == 12:
            a(f"s_cmp_ge_u32 s{sWave}, {NPB-96}")
            a("s_cbranch_scc1 Lk2_fin")
            a("s_mov_b32 exec_hi, 0")
        a(f"v_cvt_pk_bf16_f32 v{36+r}, v{ACC+r}, v{ACC+16+r}")
        so = "0" if q == 0 else f"s{sT0+q}"
        a(f"buffer_store_dword v{36+r}, v14, s[{sOsrd}:{sOsrd+3}], {so} offen offset:{t*128}{fl(OPT['outst'])}")
    a("Lk2_fin:")
    if OPT["stamps"]:
        stamp(9)
        a("s_waitcnt vmcnt(0)")
        stamp(10)
        stamp_out(1, 11, sWs, sWave)
    a("Lk2_end:")
    a("s_endpgm")

hdr = open("standalone__tensor_product_equiv_mace__graph.s.ref").read().split("; Override launch")[0]
out = hdr
out += f"; @launch kernel=mace_bin_kernel grid=({NCH+1},1,1) block=(640,1,1) lds={K1_LDS}\n"
out += f"; @launch kernel=mace_main_kernel grid=(256,1,1) block=(1024,1,1) lds={K2_LDS}\n"
out += '.amdgcn_target "amdgcn-amd-amdhsa--gfx950"\n.text\n'
k1(); k2()
out += "\n".join(("    " + l if l and not l.endswith(":") and not l.startswith(".") else l) for l in L) + "\n"
out += '.section .rodata,"a"\n.p2align 6\n' + kd("mace_bin_kernel", 80) + ".p2align 6\n" + kd("mace_main_kernel", 128)
open(sys.argv[1], "w").write(out)
```

```python
import sys
OPT = dict(k1m=1, xg=-1, own=1, keep="off", xcc=0, lprio=1, sk3=1, epi=0, fine=0, kpf=0, clate=0, cpf=0, zearly=1, ph=10, apre=0, tperm=1, tabst="", ord=2, k1ord=0, spf=1, pfn=10, easched=1111100001, k2bar=1, k1bar=1, drop="", nodma=0, fuse=0, spin=-1, dbgwg=-1, safe=0, stamps=0, ntl=1, nts="sc1", pf=1, fma="pk", ksld="", eald="", outst="sc1", xfl="")
for a in sys.argv[2:]:
    k, v = a.split("=")
    OPT[k] = int(v) if v.lstrip("-").isdigit() else v
for k in ("tabst","nts","ksld","eald","outst","xfl"):
    OPT[k] = "" if OPT[k] in (0,"") else str(OPT[k]).replace("+"," ")

KN = "standalone__tensor_product_equiv_mace__graph_kernel"
NN, NE = 25000, 800000
CH, NCH = 3200, 250
NPB = 98
MAGIC, MSH = 42800, 22
assert all((d*MAGIC) >> MSH == d//NPB for d in range(NN))
WS_FLAG, SPIN = 0x50000, 400000
WS_TAB, WS_CONST, WS_KS, WS_EA, WS_STAMP = 0, 0x40000, 0x100000, 0xB00000, 128 << 20
CAP, NB = 3552, 7

L = []
def a(s):
    for ln in s.split("\n"):
        L.append(ln)
def nop(n):
    a(f"s_nop {n-1}")
NT = " nt" if OPT["ntl"] else ""
def fl(x): return (" " + x) if x else ""

def stamp(i):
    if OPT["stamps"]:
        a(f"s_memrealtime s[{64+2*i}:{65+2*i}]")
def stamp_out(k, n, sws, swave, tag=''):
    if not OPT["stamps"]: return
    a(f"s_cmp_lg_u32 s{swave}, {OPT['stamps']-1}")
    a(f"s_cbranch_scc1 Lnostamp{k}{tag}")
    if OPT["dbgwg"] >= 0 and k == 1:
        a(f"s_cmp_lg_u32 s2, {OPT['dbgwg']}")
        a(f"s_cbranch_scc1 Lnostamp{k}{tag}")
        a("s_load_dwordx2 s[62:63], s[0:1], 72")
        a("s_waitcnt lgkmcnt(0)")
        a("s_mov_b64 exec, 1")
        a(f"v_mov_b32 v1, {WS_STAMP + OPT['dbgwg']*64}")
        a(f"global_load_dwordx4 v[4:7], v1, s[{sws}:{sws+1}]")
        a(f"global_load_dword v8, v1, s[{sws}:{sws+1}] offset:20")
        a("v_mov_b32 v1, 0")
        a("s_waitcnt vmcnt(0)")
        if OPT["spin"] >= 0:
            j = OPT["spin"]
            a(f"v_sub_u32 v2, v{4+j}, v4" if j < 5 else f"v_sub_u32 v2, s{64+2*(j-5)}, v4")
            a("s_nop 1")
            a("v_readfirstlane_b32 s60, v2")
            a("s_min_u32 s60, s60, 10000")
            a("s_lshl_b32 s60, s60, 3")
            a("Lspin:")
            a("s_memrealtime s[58:59]")
            a("s_waitcnt lgkmcnt(0)")
            a("s_sub_u32 s58, s58, s84")
            a("s_cmp_lt_u32 s58, s60")
            a("s_cbranch_scc1 Lspin")
        for j in range(1,5):
            a(f"v_sub_u32 v2, v{4+j}, v4")
            a(f"global_store_dword v1, v2, s[62:63] offset:{4*j}")
        for j in range(11):
            a(f"v_sub_u32 v2, s{64+2*j}, v4")
            a(f"global_store_dword v1, v2, s[62:63] offset:{4*(j+5)}")
        a(f"Lnostamp{k}{tag}:")
        return
    a("s_waitcnt lgkmcnt(0)")
    a("s_mov_b64 exec, 1")
    a(f"s_lshl_b32 s62, s2, 6\ns_add_u32 s62, s62, {WS_STAMP + k*256*64}")
    a("v_mov_b32 v1, s62")
    for i in range(n):
        a(f"v_mov_b32 v2, s{64+2*i}")
        a(f"global_store_dword v1, v2, s[{sws}:{sws+1}] offset:{4*i}")
    a(f"Lnostamp{k}{tag}:")

def scan(c, s1, s2, x, tot):
    a(f"v_add_u32 v{s1}, v{c}, v{c+1}")
    a(f"v_add_u32 v{s2}, v{s1}, v{c+2}")
    a(f"v_add_u32 v{tot}, v{s2}, v{c+3}")
    a(f"v_mov_b32 v{x}, v{tot}")
    for d in ("row_shr:1", "row_shr:2", "row_shr:4", "row_shr:8"):
        nop(2)
        a(f"v_add_u32_dpp v{x}, v{x}, v{x} {d} row_mask:0xf bank_mask:0xf")
    nop(2)
    a(f"v_add_u32_dpp v{x}, v{x}, v{x} row_bcast:15 row_mask:0xa bank_mask:0xf")
    nop(2)
    a(f"v_add_u32_dpp v{x}, v{x}, v{x} row_bcast:31 row_mask:0xc bank_mask:0xf")

def kd(name, vg, sg=96):
    return f""".amdhsa_kernel {name}
  .amdhsa_next_free_vgpr {vg}
  .amdhsa_next_free_sgpr {sg}
  .amdhsa_accum_offset {vg}
  .amdhsa_group_segment_fixed_size 0
  .amdhsa_kernarg_size 88
  .amdhsa_user_sgpr_count 2
  .amdhsa_user_sgpr_kernarg_segment_ptr 1
  .amdhsa_system_sgpr_workgroup_id_x 1
  .amdhsa_float_denorm_mode_32 3
.end_amdhsa_kernel
"""

K1_HIST, K1_BASE, K1_INV, K1_KS, K1_EA, K1_LDS = 0, 1024, 2048, 14848, 53248, 155648
def k1():
    if OPT["fuse"]:
        a(f".globl {KN}\n.p2align 8\n.type {KN},@function\n{KN}:")
        stamp(0)
        a("s_cmp_ge_u32 s2, 256")
        a("s_cbranch_scc1 Lk2_end")
        a("v_readfirstlane_b32 s14, v0")
        a("s_cmp_ge_u32 s14, 640")
        a("s_cbranch_scc1 Lk1_spare")
    else:
        a(".globl mace_bin_kernel\n.p2align 8\n.type mace_bin_kernel,@function\nmace_bin_kernel:")
        stamp(0)
    a(f"s_cmp_gt_u32 s2, {NCH}")
    a("s_cbranch_scc1 Lk1_spare1" if OPT["fuse"] else "s_cbranch_scc1 Lk1_end")
    a(f"s_cmp_eq_u32 s2, {NCH}")
    a("s_cbranch_scc1 Lk1_prep")
    a("s_load_dwordx4 s[4:7], s[0:1], 8")
    a("s_load_dwordx4 s[8:11], s[0:1], 24")
    a("s_load_dwordx2 s[12:13], s[0:1], 80")
    a("s_load_dwordx2 s[30:31], s[0:1], 0")
    a("v_lshrrev_b32 v1, 6, v0")
    a("v_and_b32 v2, 63, v0")
    a("v_readfirstlane_b32 s14, v1")
    a("v_lshlrev_b32 v3, 2, v0")
    a("v_mov_b32 v4, 0")
    a("ds_write_b32 v3, v4")
    a("v_lshlrev_b32 v3, 2, v2")
    a("v_lshlrev_b32 v4, 3, v2")
    a("v_lshlrev_b32 v5, 4, v2")
    a(f"s_mul_i32 s15, s2, {CH}")
    a("s_mul_i32 s16, s14, 320")
    a("s_add_u32 s15, s15, s16")
    a("s_lshl_b32 s17, s15, 2")
    a("s_lshl_b32 s18, s15, 3")
    a("s_lshl_b32 s19, s15, 5")
    a("s_waitcnt lgkmcnt(0)")
    a("s_add_u32 s6, s6, s17\ns_addc_u32 s7, s7, 0")
    for k in range(5):
        a(f"global_load_dword v{10+k}, v3, s[6:7] offset:{k*256}{NT}")
    a("s_add_u32 s4, s4, s17\ns_addc_u32 s5, s5, 0")
    for k in range(5):
        a(f"global_load_dword v{15+k}, v3, s[4:5] offset:{k*256}{NT}")
    a("s_add_u32 s8, s8, s18\ns_addc_u32 s9, s9, 0")
    for k in range(5):
        a(f"global_load_dwordx2 v[{20+2*k}:{21+2*k}], v4, s[8:9] offset:{k*512}{NT}")
    if OPT["k1bar"]: a("s_barrier")
    def k1dma():
        a("s_add_u32 s10, s10, s19\ns_addc_u32 s11, s11, 0")
        a("s_lshl_b32 s20, s16, 5")
        a(f"s_add_u32 s20, s20, {K1_EA}")
        for i in range(10):
            if i % 4 == 0:
                a(f"s_add_u32 m0, s20, {i*1024}")
                a(f"v_add_u32 v6, {i*1024}, v5")
            a(f"global_load_lds_dwordx4 v6, s[10:11] offset:{(i%4)*1024}{NT}")
    if not OPT["k1ord"]: k1dma()
    if not OPT["k1bar"]: a("s_barrier")
    a(f"s_mov_b32 s21, {MAGIC}")
    a(f"s_mov_b32 s22, {-NPB}")
    a("v_mov_b32 v7, 1")
    a("s_waitcnt vmcnt(10)" if OPT["k1ord"] else "s_waitcnt vmcnt(20)")
    stamp(1)
    for k in range(5):
        a(f"v_mul_u32_u24 v{30+k}, s21, v{10+k}")
        a(f"v_lshrrev_b32 v{30+k}, {MSH}, v{30+k}")
        a(f"v_mad_i32_i24 v{10+k}, v{30+k}, s22, v{10+k}")
        a(f"v_lshlrev_b32 v{30+k}, 2, v{30+k}")
        a(f"ds_add_rtn_u32 v{35+k}, v{30+k}, v7 offset:{K1_HIST}")
    a("s_waitcnt lgkmcnt(0)")
    a("s_barrier")
    a(f"ds_read_b128 v[40:43], v5 offset:{K1_HIST}")
    if OPT["k1ord"]: k1dma()
    if not OPT['fuse']:
        a("s_mul_i32 s23, s14, 26")
        a("v_add_u32 v48, s23, v2")
        a("v_cmp_gt_u32 s[24:25], 26, v2")
        a("v_cmp_gt_u32 vcc, 0x100, v48")
        a("s_and_b64 s[24:25], s[24:25], vcc")
        a("v_and_b32 v48, 0xff, v48")
        a("v_lshlrev_b32 v49, 2, v48")
        a("v_lshlrev_b32 v48, 10, v48")
        if OPT["tperm"]:
            a("s_and_b32 s23, s2, 7\ns_lshl_b32 s23, s23, 5\ns_lshr_b32 s26, s2, 3\ns_add_u32 s23, s23, s26\ns_lshl_b32 s23, s23, 2")
        else:
            a("s_lshl_b32 s23, s2, 2")
        a("v_add_u32 v48, s23, v48")
    a("s_waitcnt lgkmcnt(0)")
    scan(40, 44, 45, 46, 47)
    KEEP = OPT["keep"] != "off"
    kfl = "" if OPT["keep"] == "plain" else " " + str(OPT["keep"])
    if KEEP:
        a("s_and_b32 s34, s2, 7\ns_lshl_b32 s34, s34, 3\ns_add_u32 s35, s34, 7")
        a("v_readlane_b32 s33, v46, s35")
    a("v_sub_u32 v46, v46, v47")
    a("v_add_u32 v41, v46, v40")
    a("v_add_u32 v42, v46, v44")
    a("v_add_u32 v43, v46, v45")
    a("v_mov_b32 v40, v46")
    if KEEP:
        a("v_readlane_b32 s32, v46, s34")
        a("s_sub_u32 s33, s33, s32")
        a("s_sub_u32 s32, s16, s32")
    kn = [0]
    def kstore(text, mid):
        if not KEEP:
            a(text + fl(OPT['nts'])); return
        kn[0] += 1
        a(f"s_add_u32 s34, s32, {mid}")
        a("s_cmp_lt_u32 s34, s33")
        a(f"s_cbranch_scc1 Lk1_k{kn[0]}")
        a(text + fl(OPT['nts']))
        a(f"s_branch Lk1_kd{kn[0]}")
        a(f"Lk1_k{kn[0]}:")
        a(text + kfl)
        a(f"Lk1_kd{kn[0]}:")
    a(f"ds_write_b128 v5, v[40:43] offset:{K1_BASE}")
    for k in range(5):
        a(f"ds_read_b32 v{30+k}, v{30+k} offset:{K1_BASE}")
    if not OPT["fuse"]:
        a(f"ds_read_b32 v50, v49 offset:{K1_BASE}")
        a(f"ds_read_b32 v51, v49 offset:{K1_HIST}")
    a("s_waitcnt vmcnt(10)")
    for k in range(5):
        a(f"v_lshlrev_b32 v{10+k}, 2, v{10+k}")
        a(f"v_lshl_or_b32 v{15+k}, v{15+k}, 17, v{10+k}")
    a("v_lshl_add_u32 v53, v2, 5, s20")
    a("s_waitcnt lgkmcnt(0)")
    if not OPT["fuse"]:
        a(f"s_mul_i32 s23, s2, {CH}")
        a("v_add_u32 v50, s23, v50")
        a("v_lshl_or_b32 v50, v51, 20, v50")
        a("s_mov_b64 exec, s[24:25]")
        a(f"global_store_dword v48, v50, s[12:13]{fl(OPT['tabst'])}")
        a("s_mov_b64 exec, -1")
    for k in range(5):
        a(f"v_add_u32 v{30+k}, v{30+k}, v{35+k}")
        a(f"v_lshlrev_b32 v{35+k}, 2, v{30+k}")
        a(f"v_mul_u32_u24 v{30+k}, 12, v{30+k}")
        if k: a(f"v_add_u32 v{53+k}, {k*2048}, v53")
        a(f"ds_write_b32 v{35+k}, v{53+k} offset:{K1_INV}")
        a(f"v_add_u32 v{30+k}, {K1_KS}, v{30+k}")
        a(f"ds_write_b32 v{30+k}, v{15+k}")
        a(f"ds_write2_b32 v{30+k}, v{20+2*k}, v{21+2*k} offset0:1 offset1:2")
    a("s_waitcnt vmcnt(1) lgkmcnt(0)" if OPT["k1m"] == 1 else "s_waitcnt lgkmcnt(0)")
    a("s_barrier")
    stamp(2)
    a("s_mul_i32 s23, s14, 3840")
    a("v_add_u32 v8, s23, v5")
    for i in range(4):
        a(f"ds_read_b128 v[{12+4*i}:{15+4*i}], v8 offset:{K1_KS+i*1024}")
    a("v_lshrrev_b32 v9, 1, v2")
    a("v_add_u32 v9, s16, v9")
    a("v_lshlrev_b32 v9, 2, v9")
    for i in range(10):
        a(f"ds_read_b32 v{30+i}, v9 offset:{K1_INV+i*128}")
    a(f"s_mul_i32 s23, s2, {CH*12}")
    a(f"s_add_u32 s23, s23, {WS_KS}")
    a("s_add_u32 s26, s12, s23\ns_addc_u32 s27, s13, 0")
    a(f"s_add_u32 s19, s19, {WS_EA}")
    a("s_add_u32 s28, s12, s19\ns_addc_u32 s29, s13, 0")
    a("v_and_b32 v10, 1, v2")
    a("v_lshlrev_b32 v10, 4, v10")
    def ksout():
        for i in range(4):
            if i == 3: a("s_mov_b32 exec_hi, 0xffff")
            kstore(f"global_store_dwordx4 v8, v[{12+4*i}:{15+4*i}], s[26:27] offset:{i*1024}", (i*1024+(512 if i < 3 else 384))//12)
        a("s_mov_b64 exec, -1")
    if OPT["k1m"] == 0:
        a("s_waitcnt lgkmcnt(10)")
        ksout()
    a("s_waitcnt lgkmcnt(0)")
    for i in range(10):
        a(f"v_add_u32 v{30+i}, v{30+i}, v10")
    def k1pf():
        a("s_mul_i32 s23, s2, 10")
        a("s_add_u32 s23, s23, s14")
        a("s_mul_i32 s23, s23, 5120")
        a("v_min_u32 v11, 39, v2")
        a("v_lshl_add_u32 v11, v11, 7, s23")
        a("global_load_dword v11, v11, s[30:31]")
    if OPT["pf"] == 2: k1pf()
    if OPT["k1m"] != 1:
        a("s_waitcnt vmcnt(5)" if OPT["k1m"] == 0 else "s_waitcnt vmcnt(1)")
        a("s_barrier")
    stamp(3)
    for i in range(10):
        a(f"ds_read_b128 v[{40+4*i}:{43+4*i}], v{30+i}")
    if OPT["k1m"]: ksout()
    a("v_add_u32 v6, 4096, v5")
    a("v_add_u32 v7, 8192, v5")
    for i in range(10):
        a(f"s_waitcnt lgkmcnt({9-i})")
        kstore(f"global_store_dwordx4 v{5+i//4}, v[{40+4*i}:{43+4*i}], s[28:29] offset:{(i%4)*1024}", 32*i+16)
    if OPT["pf"] == 3: k1pf()
    if OPT["stamps"]:
        stamp(4)
        a("s_waitcnt vmcnt(0)")
        stamp(5)
        stamp_out(0, 6, 12, 14)
    if OPT["xcc"]:
        a("s_getreg_b32 s40, hwreg(20, 0, 4)")
        a(f"s_lshl_b32 s41, s2, 2\ns_add_u32 s41, s41, {WS_STAMP}")
        a("v_mov_b32 v1, s41\nv_mov_b32 v2, s40")
        a("global_store_dword v1, v2, s[12:13]")
    a("Lk1_end:")
    a("s_mov_b64 exec, -1\ns_branch Lk2_join" if OPT["fuse"] else "s_endpgm")
    a("Lk1_prep:")
    a("s_load_dwordx4 s[4:7], s[0:1], 40")
    a("s_load_dwordx2 s[8:9], s[0:1], 56")
    a("s_load_dwordx2 s[12:13], s[0:1], 80")
    a("v_lshrrev_b32 v1, 6, v0")
    a("v_and_b32 v2, 63, v0")
    a("v_readfirstlane_b32 s14, v1")
    a("v_lshlrev_b32 v5, 4, v2")
    a("s_waitcnt lgkmcnt(0)")
    a(f"s_add_u32 s12, s12, {WS_CONST}\ns_addc_u32 s13, s13, 0")
    def gather8(base, offs, dstoff_s):
        for k in range(8):
            a(f"global_load_ushort v{10+k}, v3, s[{base}:{base+1}] offset:{offs[k]}")
        a("s_waitcnt vmcnt(0)")
        for k in range(4):
            a(f"v_lshl_or_b32 v{20+k}, v{11+2*k}, 16, v{10+2*k}")
        a(f"v_add_u32 v6, s{dstoff_s}, v5")
        a("global_store_dwordx4 v6, v[20:23], s[12:13]" + (" sc1" if OPT["fuse"] else ""))
        a("s_waitcnt vmcnt(0)")
    a("s_cmp_ge_u32 s14, 8")
    a("s_cbranch_scc1 Lk1_prep2")
    a("s_lshr_b32 s15, s14, 1")
    a("s_and_b32 s16, s14, 1")
    a("s_lshl_b32 s15, s15, 11")
    a("s_lshl_b32 s16, s16, 1")
    a("s_add_u32 s15, s15, s16")
    a("v_lshrrev_b32 v3, 5, v2")
    a("v_lshlrev_b32 v3, 10, v3")
    a("v_and_b32 v4, 31, v2")
    a("v_lshl_add_u32 v3, v4, 2, v3")
    a("v_add_u32 v3, s15, v3")
    a("s_lshl_b32 s17, s14, 10")
    a("s_add_u32 s17, s17, 4096")
    gather8(8, [k*128 for k in range(8)], 17)
    a("s_barrier\ns_branch Lk2_join" if OPT["fuse"] else "s_endpgm")
    a("Lk1_prep2:")
    a("s_sub_u32 s14, s14, 8")
    a("s_lshl_b32 s17, s14, 10")
    a("v_lshl_add_u32 v3, v2, 1, s17")
    gather8(6, [k*128 for k in range(8)], 17)
    a("s_lshl_b32 s15, s14, 4")
    a("v_and_b32 v3, 3, v2")
    a("v_lshl_add_u32 v3, v3, 1, s15")
    a("s_add_u32 s17, s17, 2048")
    gather8(4, [(k//2)*32 + (k%2)*8 for k in range(8)], 17)
    a("s_endpgm")

MAP, INVM, EA0, K2_LDS = 49152, 49664, 50176, 163840
assert EA0 + CAP*32 == K2_LDS
REG = 3072
HISTO, BASEO = 2784, 2912
DEG, RT = 0, 512
BAND = 70
PH = OPT["ph"]; NPL = 4 if PH == 11 else 8
assert all((r*147) >> 11 == r//14 for r in range(128))
assert all(((x*12+12)*2731) >> 16 == (x+1)//2 for x in range(NB*32+1))
APRE = OPT["apre"]
vLs, vT, vEm, vS16, vK, vP, vE, vAdr, vI = 1, [2,3,4], 5, 6, 7, 8, 9, 10, 11
vA, vB, vLane, vF = 12, 14, 18, 19
vWr, vEaA, vD, vRw, vPr, vSH, vAr, ACC = 20, 28, 36, 44, 60, 67, 68, 96
vCg, vSr = (44, 52) if APRE else (68, 76)
vKS, vS, vPos, vG = 28, 84, 88, 92
sX, sOut, sKS, sEA, sC, sWs = 4, 6, 8, 10, 12, 14
sTab, sOsrd = 16, 20
sWave, sBin, sTot, sBase, sL, sN, sReg, sCnt, sR, sTail, sGi, sFirst, sBlk = 24,25,26,27,28,29,30,31,32,33,34,35,36
sM0 = [37,38,39]
sI, sC0, sEm, sPf, sPx = 40, 42, 43, 45, 46
sMk = 48
sEx = 56
sT0, sT1, sT2, sT3 = 58, 59, 60, 61
KORD = (3, 0, 1, 2)
def LN(tau):
    tau %= 16
    return (tau & 3) | ((tau & 4) << 1) | ((tau & 8) >> 1)
DPPM = "row_mask:0xf bank_mask:0xf"

def fst(i):
    m = {"A":2, 3:3, "B1":4, "B2":5, "B3":6, 4:7, 6:8, 7:9} if OPT["fine"] else {k:k for k in range(12)}
    if i in m: stamp(m[i])
def k2():
    a(".globl mace_main_kernel\n.p2align 8\n.type mace_main_kernel,@function\nmace_main_kernel:")
    stamp(0)
    a("s_cmp_ge_u32 s2, 256")
    a("s_cbranch_scc1 Lk2_end")
    a(f"s_load_dwordx2 s[{sWs}:{sWs+1}], s[0:1], 80")
    a(f"s_load_dwordx2 s[{sX}:{sX+1}], s[0:1], 0")
    a(f"s_load_dwordx2 s[{sOut}:{sOut+1}], s[0:1], 64")
    a(f"v_lshrrev_b32 v81, 6, v0")
    a(f"v_and_b32 v{vLane}, 63, v0")
    a(f"v_readfirstlane_b32 s{sWave}, v81")
    a(f"s_and_b32 s{sBin}, s2, 7")
    a(f"s_lshl_b32 s{sBin}, s{sBin}, 5")
    a(f"s_lshr_b32 s{sT0}, s2, 3")
    a(f"s_add_u32 s{sBin}, s{sBin}, s{sT0}")
    a(f"s_lshl_b32 s{sT0}, s{sBin}, 10")
    a(f"v_lshlrev_b32 v81, 4, v{vLane}")
    a(f"s_mov_b32 s{sTab+2}, 1024")
    a(f"s_mov_b32 s{sTab+3}, 0x20000")
    a("s_waitcnt lgkmcnt(0)")
    a(f"s_add_u32 s{sTab}, s{sWs}, s{sT0}")
    a(f"s_addc_u32 s{sTab+1}, s{sWs+1}, 0")
    a(f"buffer_load_dwordx4 v[52:55], v81, s[{sTab}:{sTab+3}], 0 offen")
    npre = 0
    if OPT["kpf"]:
        a(f"s_and_b32 s{sT1}, s{sWave}, 3")
        a(f"s_lshl_b32 s{sT1}, s{sT1}, 2")
        a(f"buffer_load_dword v84, v81, s[{sTab}:{sTab+3}], s{sT1} offen")
    if OPT["cpf"]:
        a("s_getpc_b64 s[62:63]")
        a(f"v_lshlrev_b32 v{vK}, 7, v{vLane}")
        a(f"v_min_u32 v{vK}, Lk2_end-mace_main_kernel-256, v{vK}")
        a(f"s_cmp_lg_u32 s{sWave}, 15")
        a("s_cbranch_scc1 Lk2_nocpf")
        a(f"global_load_dword v{vP}, v{vK}, s[62:63]")
        a("Lk2_nocpf:")
    if OPT["pf"] == 1:
        a(f"s_min_u32 s{sT0}, s2, 249")
        a(f"s_lshl_b32 s{sT0}, s{sT0}, 4")
        a(f"s_add_u32 s{sT0}, s{sT0}, s{sWave}")
        a(f"s_mul_i32 s{sT0}, s{sT0}, {OPT['pfn']*128}")
        a(f"v_min_u32 v{vE}, {OPT['pfn']-1}, v{vLane}")
        a(f"v_lshl_add_u32 v{vE}, v{vE}, 7, s{sT0}")
        a(f"global_load_dword v{vI}, v{vE}, s[{sX}:{sX+1}]")
        npre += 1
    if OPT["spf"]:
        ns = 25 - OPT["pfn"]
        a(f"s_lshr_b32 s{sPf}, s{sWave}, 2")
        a(f"s_mul_i32 s{sT0}, s{sPf}, 1000")
        a(f"s_min_u32 s{sT1}, s2, 249")
        a(f"s_lshl_b32 s{sT1}, s{sT1}, 2")
        a(f"s_add_u32 s{sT0}, s{sT0}, s{sT1}")
        a(f"s_and_b32 s{sT1}, s{sWave}, 3")
        a(f"s_add_u32 s{sT0}, s{sT0}, s{sT1}")
        a(f"s_mul_i32 s{sT0}, s{sT0}, {ns*128}")
        a(f"s_add_u32 s{sT0}, s{sT0}, {OPT['pfn']*128*4000}")
        a(f"s_add_u32 s{sPx}, s{sX}, s{sT0}\ns_addc_u32 s{sPx+1}, s{sX+1}, 0")
    a(f"s_add_u32 s{sC}, s{sWs}, {WS_CONST}\ns_addc_u32 s{sC+1}, s{sWs+1}, 0")
    a(f"s_add_u32 s{sKS}, s{sWs}, {WS_KS}\ns_addc_u32 s{sKS+1}, s{sWs+1}, 0")
    a(f"s_add_u32 s{sEA}, s{sWs}, {WS_EA}\ns_addc_u32 s{sEA+1}, s{sWs+1}, 0")
    a(f"s_mov_b32 s{sOsrd}, s{sOut}\ns_mov_b32 s{sOsrd+1}, s{sOut+1}\ns_mov_b32 s{sOsrd+2}, {NN*512}\ns_mov_b32 s{sOsrd+3}, 0x20000")
    a(f"s_mov_b32 s{sBase}, 0\ns_mov_b32 s{sL}, {CAP}\ns_mov_b32 s{sFirst}, 1")
    a(f"s_mov_b32 s{sEx}, 0x0f0f0f0f\ns_mov_b32 s{sEx+1}, 0xf0f0f0f0")
    a(f"s_mov_b32 s{sC0}, {0xc000 if OPT['fma']=='pk' else 0x8000}")
    a(f"s_mul_i32 s{sReg}, s{sWave}, {REG}")
    a(f"s_lshl_b32 s{sEm}, s{sWave}, 11")
    a(f"s_add_u32 s{sEm}, s{sEm}, {EA0}")
    a(f"v_and_b32 v{vS16}, 1, v{vLane}")
    a(f"v_and_b32 v{vF}, 0x3c1, v0")
    a(f"v_bfe_u32 v82, v{vLane}, 1, 1")
    a(f"v_lshl_add_u32 v{vF}, v82, 5, v{vF}")
    a(f"v_lshrrev_b32 v82, 2, v{vLane}")
    a(f"v_lshl_add_u32 v{vF}, v82, 1, v{vF}")
    a(f"v_lshlrev_b32 v{vS16}, 4, v{vS16}")
    a(f"s_cmp_ge_u32 s{sWave}, 2")
    a("s_cbranch_scc1 Lk2_noinit")
    a("v_lshlrev_b32 v77, 2, v0")
    a("v_sub_u32 v78, 0x7f, v0")
    a("v_mov_b32 v79, 0x7f000000")
    a(f"ds_write_b32 v77, v78 offset:{DEG}")
    a(f"ds_write_b32 v77, v79 offset:{INVM}")
    a("v_mov_b32 v80, 0")
    a(f"ds_write_b32 v77, v80 offset:{MAP}")
    a("Lk2_noinit:")
    a(f"v_lshl_add_u32 v82, v{vLane}, 2, s{sReg}")
    a("v_mov_b32 v83, 0")
    a(f"ds_write_b32 v82, v83 offset:{HISTO}")
    if OPT["zearly"]:
        a(f"s_cmp_eq_u32 s{sFirst}, 0")
        a("s_cbranch_scc1 Lk2_nozero")
        for i in range(32):
            a(f"v_mov_b32 v{ACC+i}, 0")
        a("Lk2_nozero:")
    if OPT["kpf"]:
        a(f"s_mov_b32 s88, s{sKS}\ns_mov_b32 s89, s{sKS+1}\ns_mov_b32 s90, {NE*12}\ns_mov_b32 s91, 0x20000")
        a(f"s_lshr_b32 s{sT1}, s{sWave}, 2")
        a(f"s_lshl_b32 s{sT1}, s{sT1}, 7")
    a(f"s_waitcnt vmcnt({npre}) lgkmcnt(0)")
    if OPT["kpf"]:
        a(f"s_cmp_ge_u32 s{sWave}, {4*OPT['kpf']}")
        a("s_cbranch_scc1 Lk2_nokpf")
        a("v_lshrrev_b32 v85, 20, v84")
        a("v_and_b32 v84, 0xfffff, v84")
        a("v_mad_u32_u24 v85, v85, 12, -4")
        a(f"v_min_i32 v85, s{sT1}, v85")
        a("v_mad_u32_u24 v84, v84, 12, v85")
        a(f"buffer_load_dword v{vK}, v84, s[88:91], 0 offen")
        a("Lk2_nokpf:")
    stamp(1)
    a("s_mov_b32 exec_lo, 0x80800000\ns_mov_b32 exec_hi, 0x80808080")
    a("v_mov_b32 v55, 0")
    a("s_mov_b64 exec, -1")
    def consts():
        for i in range(2):
            a(f"global_load_dwordx4 v[{vWr+4*i}:{vWr+4*i+3}], v81, s[{sC}:{sC+1}] offset:{i*1024}")
            a(f"global_load_dwordx4 v[{vCg+4*i}:{vCg+4*i+3}], v81, s[{sC}:{sC+1}] offset:{2048+i*1024}")
    if not OPT["clate"]: consts()
    for j in range(4):
        a(f"v_lshrrev_b32 v{56+j}, 20, v{52+j}")
    a("v_add_u32 v76, v56, v57")
    a("v_add_u32 v77, v76, v58")
    a("v_add_u32 v79, v77, v59")
    a("v_mov_b32 v78, v79")
    fill = [f"v_and_b32 v{60+j}, 0xfffff, v{52+j}" for j in range(4)] + ["v_max_u32 v80, v56, v57", "v_max3_u32 v80, v58, v59, v80"]
    for d, rm in (("row_shr:1","0xf"), ("row_shr:2","0xf"), ("row_shr:4","0xf"), ("row_shr:8","0xf"), ("row_bcast:15","0xa"), ("row_bcast:31","0xc")):
        a(fill.pop(0)); nop(1)
        a(f"v_add_u32_dpp v78, v78, v78 {d} row_mask:{rm} bank_mask:0xf")
    a("v_sub_u32 v64, v78, v79")
    a(f"v_readlane_b32 s{sTot}, v78, 63")
    a("v_add_u32 v65, v64, v56")
    a("v_add_u32 v66, v64, v76")
    a("v_add_u32 v67, v64, v77")
    a(f"s_sub_u32 s{sN}, s{sTot}, s{sBase}")
    a(f"s_min_u32 s{sN}, s{sN}, s{sL}")
    a(f"s_cmp_lg_u32 s{sN}, s{sTot}")
    a("s_cbranch_scc1 Lk2_clip")
    a("Lk2_noclip:")
    a(f"s_mov_b32 s{sT0}, s{sWave}")
    for j in range(4):
        a(f"v_sub_u32 v{60+j}, v{60+j}, v{64+j}")
        a(f"v_add_lshl_u32 v{64+j}, v{64+j}, s{sWave}, 2")
    a("Lk2_exp:")
    for it in range(2):
        for j in range(4):
            a(f"v_cmp_lt_u32 s[{sMk+2*j}:{sMk+2*j+1}], s{sT0}, v{56+j}")
        a(f"s_add_u32 s{sT0}, s{sT0}, 16")
        a(f"v_cmp_lt_u32 vcc, s{sT0}, v80")
        for j in range(4):
            a(f"s_mov_b64 exec, s[{sMk+2*j}:{sMk+2*j+1}]")
            a(f"ds_write_b32 v{64+j}, v{60+j} offset:{EA0+64*it}")
        a("s_mov_b64 exec, -1")
        a("s_cbranch_vccz Lk2_expdone" if it == 0 else "s_cbranch_vccnz Lk2_expmore")
    a("Lk2_expdone:")
    a(f"s_max_u32 s{sT0}, s{sN}, 1")
    a(f"s_sub_u32 s{sT0}, s{sT0}, 1")
    for k in range(4):
        a(f"v_add_u32 v{vS+k}, {1024*k}, v{vF}")
        a(f"v_cmp_gt_u32 s[{sMk+2*k}:{sMk+2*k+1}], s{sN}, v{vS+k}")
        a(f"v_min_u32 v{vS+k}, s{sT0}, v{vS+k}")
        a(f"v_lshlrev_b32 v{vPos+k}, 2, v{vS+k}")
    a(f"s_cmp_eq_u32 s{sN}, 0")
    a("s_cbranch_scc1 Lk2_empty")
    a("Lk2_nonempty:")
    a("s_waitcnt lgkmcnt(0)")
    a("s_barrier")
    fst("A")
    for k in KORD:
        a(f"ds_read_b32 v{vG+k}, v{vPos+k} offset:{EA0}")
    def skip3(tag):
        a(f"s_cmp_eq_u64 s[{sMk+6}:{sMk+7}], 0")
        a(f"s_cbranch_scc1 Lk2_s3{tag}")
    tagn = [0]
    def recs(fn):
        for k in range(3): fn(k)
        if OPT["sk3"]:
            tagn[0] += 1
            skip3(f"r{tagn[0]}")
        fn(3)
        if OPT["sk3"]: a(f"Lk2_s3r{tagn[0]}:")
    for i, k in enumerate(KORD):
        a(f"s_waitcnt lgkmcnt({3-i})")
        a(f"v_add_u32 v{vG+k}, v{vG+k}, v{vS+k}")
        if OPT["safe"]: a(f"v_min_u32 v{vG+k}, {NE-1}, v{vG+k}")
        a(f"v_mul_u32_u24 v{vPos+k}, 12, v{vG+k}")
        if k == 3: skip3("a")
        a(f"global_load_dwordx3 v[{vKS+4*k}:{vKS+2+4*k}], v{vPos+k}, s[{sKS}:{sKS+1}]{fl(OPT['ksld'])}")
        if k == 3: a("Lk2_s3a:")
    for k in range(4):
        a(f"v_lshlrev_b32 v{vG+k}, 5, v{vG+k}")
    a("s_barrier")
    def eadma(n):
        k, h = n // 2, n % 2
        a(f"s_add_u32 m0, s{sEm}, {k*32768 + h*1024}")
        a(f"v_add_u32_dpp v{vAdr}, v{vG+k}, v{vS16} quad_perm:[{2*h},{2*h},{2*h+1},{2*h+1}] {DPPM}")
        a(f"global_load_lds_dwordx4 v{vAdr}, s[{sEA}:{sEA+1}]{fl(OPT['eald'])}")
    sched = [int(c) for c in str(OPT["easched"]).lstrip("s")]
    sched += [0]*(10-len(sched))
    assert sum(sched) == 6
    nxt = [0]
    def ea_stage(i):
        for _ in range(sched[i]):
            eadma(nxt[0]); nxt[0] += 1
    ea_stage(0)
    fst(2)
    a(f"s_cmp_ge_u32 s{sWave}, 2")
    a("s_cbranch_scc1 Lk2_nort")
    a("v_mov_b32 v76, v0")
    a("v_lshlrev_b32 v77, 2, v0")
    a(f"v_subrev_u32 v78, {BAND}, v76")
    a(f"v_cmp_le_u32 vcc, {BAND+14}, v76")
    a("v_cmp_gt_u32 s[58:59], 14, v78")
    a("v_subrev_u32 v79, 14, v76")
    a("v_lshrrev_b32 v80, 1, v78")
    a("v_cndmask_b32 v76, v76, v79, vcc")
    a("v_mul_u32_u24 v79, 147, v76")
    a("v_lshrrev_b32 v79, 11, v79")
    a("v_mad_i32_i24 v76, v79, -14, v76")
    a("v_and_b32 v82, 1, v79")
    a("v_cmp_eq_u32 vcc, 1, v82")
    a("v_sub_u32 v82, 13, v76")
    a("v_xor_b32 v78, v78, v80")
    a("v_and_or_b32 v78, v78, 1, 14")
    a("v_cndmask_b32 v76, v76, v82, vcc")
    a("v_cndmask_b32 v79, v79, v80, s[58:59]")
    a("v_cndmask_b32 v76, v76, v78, s[58:59]")
    a(f"v_mul_u32_u24 v78, {REG + (32 << 16)}, v76")
    a("v_lshl_or_b32 v78, v79, 2, v78")
    a("v_and_b32 v82, 1, v79")
    a("v_lshl_add_u32 v78, v82, 20, v78")
    a("v_lshrrev_b32 v79, 1, v79")
    a("v_lshl_add_u32 v78, v79, 18, v78")
    a(f"ds_write_b32 v77, v78 offset:{RT}")
    a("Lk2_nort:")
    a("v_lshrrev_b32 v76, 3, v0")
    a("v_lshlrev_b32 v15, 2, v76")
    a("v_and_b32 v16, 7, v0")
    a("v_lshlrev_b32 v16, 6, v16")
    a("v_mov_b32 v83, 0x80")
    a(f"s_waitcnt vmcnt({sched[0]})")
    fst(3)
    for k in range(4):
        a(f"v_and_b32 v{vKS+3+4*k}, 0x1fc, v{vKS+4*k}")
    a(f"s_cmp_eq_u32 s{sFirst}, 0")
    a("s_cbranch_scc1 Lk2_latermap")
    a(f"s_mov_b32 s{sFirst}, 0")
    def f(k):
        a(f"s_mov_b64 exec, s[{sMk+2*k}:{sMk+2*k+1}]")
        a(f"ds_add_u32 v{vKS+3+4*k}, v83 offset:{DEG}")
    recs(f)
    a("s_mov_b64 exec, -1")
    n1 = nxt[0]
    ea_stage(1)
    for i in range(0 if OPT["zearly"] else 16):
        a(f"v_mov_b32 v{ACC+i}, 0")
    a("s_waitcnt lgkmcnt(0)")
    a("s_barrier")
    fst("B1")
    a(f"s_cmp_ge_u32 s{sWave}, 13")
    a("s_cbranch_scc1 Lk2_norank")
    a(f"ds_read_b32 v77, v15 offset:{DEG}")
    for i in range(4):
        a(f"ds_read_b128 v[{52+4*i}:{55+4*i}], v16 offset:{DEG+16*i}")
    a("v_mov_b32 v78, 0")
    a(f"v_cmp_gt_u32 vcc, {NPB}, v76")
    a("v_lshlrev_b32 v76, 9, v76")
    for i in range(16):
        if i % 4 == 0: a(f"s_waitcnt lgkmcnt({3-i//4})")
        a(f"v_sub_u32 v{52+i}, v77, v{52+i}")
        a(f"v_alignbit_b32 v78, v78, v{52+i}, 31")
    a("v_bcnt_u32_b32 v78, v78, 0")
    a("v_lshlrev_b32 v78, 2, v78")
    for d in ("quad_perm:[1,0,3,2]", "quad_perm:[2,3,0,1]", "row_half_mirror"):
        nop(2)
        a(f"v_add_u32_dpp v78, v78, v78 {d} {DPPM}")
    a(f"ds_read_b32 v78, v78 offset:{RT}")
    a("s_mov_b64 exec, vcc")
    a("s_waitcnt lgkmcnt(0)")
    a("v_lshrrev_b32 v79, 16, v78")
    a("v_and_b32 v78, 0xffff, v78")
    a(f"ds_write_b32 v79, v76 offset:{INVM}")
    a(f"ds_write_b32 v15, v78 offset:{MAP}")
    a("s_mov_b64 exec, -1")
    a("Lk2_norank:")
    ea_stage(2)
    later = list(range(n1, nxt[0]))
    for i in range(16, 16 if OPT["zearly"] else 32):
        a(f"v_mov_b32 v{ACC+i}, 0")
    a("s_waitcnt lgkmcnt(0)")
    a("s_barrier")
    fst("B2")
    a("Lk2_havemap:")
    if OPT["clate"] == 1: consts()
    def f(k):
        a(f"ds_read_b32 v{76+k}, v{vKS+3+4*k} offset:{MAP}")
        a(f"v_lshrrev_b32 v{52+k}, {17+PH-2}, v{vKS+4*k}")
        a(f"v_lshlrev_b32 v{vS+k}, 5, v{vS+k}")
    recs(f)
    a("v_mov_b32 v83, 12")
    a(f"s_mov_b32 s{sT0}, {0x3c if PH == 11 else 0x7c}")
    a(f"s_mov_b32 s{sT1}, 0xfffe0000")
    a("s_waitcnt lgkmcnt(0)")
    def f(k):
        a(f"s_mov_b64 exec, s[{sMk+2*k}:{sMk+2*k+1}]")
        a(f"v_bfi_b32 v{vKS+3+4*k}, s{sT0}, v{52+k}, v{76+k}")
        a(f"ds_add_rtn_u32 v{vPos+k}, v{vKS+3+4*k}, v83 offset:{HISTO}")
        a(f"v_bfi_b32 v{vS+k}, 28, v{76+k}, v{vS+k}")
        a(f"v_bfi_b32 v{vKS+4*k}, s{sT1}, v{vKS+4*k}, v{vS+k}")
    recs(f)
    a("s_mov_b64 exec, -1")
    ea_stage(3)
    def scan_own():
        a(f"v_and_b32 v14, 31, v{vLane}")
        a(f"v_lshl_add_u32 v14, v14, 2, s{sReg}")
        a(f"v_mad_u32_u24 v17, v{vLane}, 12, s{sReg}")
        a("s_waitcnt lgkmcnt(0)")
        a("s_barrier")
        fst("B3")
        a(f"ds_read_b32 v52, v14 offset:{HISTO}")
        fill = [f"v_and_b32 v12, 3, v{vLane}", f"v_bfe_u32 v13, v{vLane}, 2, 1", "v_lshl_add_u32 v12, v13, 3, v12",
                f"v_bfe_u32 v13, v{vLane}, 3, 1", "v_lshl_add_u32 v12, v13, 2, v12", f"v_bfe_u32 v13, v{vLane}, 4, 1",
                "v_lshl_add_u32 v12, v12, 1, v13", f"v_mad_u32_u24 v12, v12, 12, s{sReg}",
                f"v_lshrrev_b32 v13, 2, v{vLane}", f"v_bfe_u32 v15, v{vLane}, 1, 1", "v_lshl_add_u32 v13, v15, 4, v13",
                f"v_mad_u32_u24 v13, v13, 12, s{sReg}", f"v_lshrrev_b32 v15, 2, v{vS16}", "v_add3_u32 v13, v13, v15, 4"]
        for _ in range(6): a(fill.pop(0))
        a("v_mov_b32 v83, 28")
        a("v_mov_b32 v54, 0")
        a("s_waitcnt lgkmcnt(0)")
        a(f"v_sub_u32 v53, s{sReg}, v52")
        for d, rm in (("row_shr:1","0xf"), ("row_shr:2","0xf"), ("row_shr:4","0xf"), ("row_shr:8","0xf"), ("row_bcast:15","0xa")):
            a(f"v_add_u32_dpp v52, v52, v52 {d} row_mask:{rm} bank_mask:0xf")
            if fill: a(fill.pop(0)); a(fill.pop(0))
        a("v_add_u32 v53, v53, v52")
        a(f"v_readlane_b32 s{sCnt}, v52, 31")
        a(f"ds_write_b32 v14, v53 offset:{HISTO}")
        a("s_mov_b64 exec, 63")
        a(f"s_cmp_gt_u32 s{sCnt}, {NB*32*12}")
        a("s_cbranch_scc1 Lk2_over")
        a(f"v_add_u32 v17, s{sCnt}, v17")
        a("ds_write_b32 v17, v83")
        a("Lk2_overb:")
        a("s_mov_b64 exec, -1")
        a(f"s_add_u32 s{sR}, s{sCnt}, 12")
        a(f"s_mul_i32 s{sR}, s{sR}, 2731")
        a(f"s_lshr_b32 s{sCnt}, s{sR}, 16")
        a(f"s_min_u32 s{sTail}, s{sCnt}, 3")
        a(f"s_sub_u32 s{sR}, s{sCnt}, s{sTail}")
        a("s_waitcnt lgkmcnt(0)")
        a("s_barrier")
        a(f"ds_read_b32 v54, v54 offset:{MAP+504}")
        recs(lambda k: a(f"ds_read_b32 v{vKS+3+4*k}, v{vKS+3+4*k} offset:{HISTO}"))
        ea_stage(9)
        a("s_waitcnt lgkmcnt(0)")
        a("v_cmp_ne_u32 vcc, 0, v54")
        a("s_cbranch_vccnz Lk2_slow")
    def scan_all():
        a(f"v_lshrrev_b32 v80, 2, v{vLane}")
        a(f"v_mul_u32_u24 v80, {REG}, v80")
        a(f"v_and_b32 v14, 3, v{vLane}")
        a(f"v_lshl_add_u32 v14, v14, {4 if NPL == 4 else 5}, v80")
        a(f"v_bfe_i32 v81, v{vLane}, 0, 1")
        a(f"v_bfe_i32 v82, v{vLane}, 1, 1")
        a(f"s_lshl_b32 s{sT1}, s{sWave}, 2")
        a("s_waitcnt lgkmcnt(0)")
        a("s_barrier")
        fst("B3")
        for i in range(NPL//4):
            a(f"ds_read_b128 v[{52+4*i}:{55+4*i}], v14 offset:{HISTO+16*i}")
        a(f"v_and_b32 v12, 3, v{vLane}")
        a(f"v_bfe_u32 v13, v{vLane}, 2, 1")
        a("v_lshl_add_u32 v12, v13, 3, v12")
        a(f"v_bfe_u32 v13, v{vLane}, 3, 1")
        a("v_lshl_add_u32 v12, v13, 2, v12")
        a(f"v_bfe_u32 v13, v{vLane}, 4, 1")
        a("v_lshl_add_u32 v12, v12, 1, v13")
        a(f"v_mad_u32_u24 v12, v12, 12, s{sReg}")
        a(f"v_mad_u32_u24 v17, v{vLane}, 12, s{sReg}")
        a("s_waitcnt lgkmcnt(0)")
        for i in range(1, NPL):
            a(f"v_add_u32 v{52+i}, v{52+i}, v{51+i}")
        tot = 51 + NPL
        a(f"v_lshrrev_b32 v13, 2, v{vLane}")
        a(f"v_bfe_u32 v15, v{vLane}, 1, 1")
        a(f"v_and_b32_dpp v76, v{tot}, v81 quad_perm:[1,0,3,2] {DPPM}")
        a(f"v_add_u32_dpp v77, v{tot}, v{tot} quad_perm:[1,0,3,2] {DPPM}")
        a("v_lshl_add_u32 v13, v15, 4, v13")
        a(f"v_mad_u32_u24 v13, v13, 12, s{sReg}")
        a(f"v_and_b32_dpp v78, v77, v82 quad_perm:[2,3,0,1] {DPPM}")
        a(f"v_add_u32_dpp v79, v77, v77 quad_perm:[2,3,0,1] {DPPM}")
        a("v_add3_u32 v60, v76, v78, v80")
        for i in range(1, NPL):
            a(f"v_add_u32 v{60+i}, v60, v{51+i}")
        for i in range(NPL//4):
            a(f"ds_write_b128 v14, v[{60+4*i}:{63+4*i}] offset:{BASEO+16*i}")
        recs(lambda k: a(f"ds_read_b32 v{vKS+3+4*k}, v{vKS+3+4*k} offset:{BASEO}"))
        a(f"v_cmp_lt_u32 vcc, {NB*32*12}, v79")
        a(f"v_readlane_b32 s{sCnt}, v79, s{sT1}")
        a(f"v_lshrrev_b32 v15, 2, v{vS16}")
        a("v_add3_u32 v13, v13, v15, 4")
        a("s_cbranch_vccnz Lk2_slow")
        a(f"v_add_u32 v17, s{sCnt}, v17")
        a("v_mov_b32 v83, 28")
        a(f"s_add_u32 s{sR}, s{sCnt}, 12")
        a(f"s_mul_i32 s{sR}, s{sR}, 2731")
        a(f"s_lshr_b32 s{sCnt}, s{sR}, 16")
        a(f"s_min_u32 s{sTail}, s{sCnt}, 3")
        a(f"s_sub_u32 s{sR}, s{sCnt}, s{sTail}")
        a("s_mov_b64 exec, 63")
        a("ds_write_b32 v17, v83")
        a("s_waitcnt lgkmcnt(1)")
    scan_own() if OPT["own"] else scan_all()
    def f(k):
        a(f"s_mov_b64 exec, s[{sMk+2*k}:{sMk+2*k+1}]")
        a(f"v_add_u32 v{vPos+k}, v{vPos+k}, v{vKS+3+4*k}")
        a(f"ds_write_b32 v{vPos+k}, v{vKS+4*k}")
        a(f"ds_write2_b32 v{vPos+k}, v{vKS+1+4*k}, v{vKS+2+4*k} offset0:1 offset1:2")
    recs(f)
    a("s_mov_b64 exec, -1")
    ea_stage(4)
    if OPT["clate"] == 2:
        a(f"v_lshlrev_b32 v81, 4, v{vLane}")
        consts()
    skip3("b")
    eadma(6); eadma(7)
    a("Lk2_s3b:")
    a(f"v_bfe_u32 v14, v{vLane}, 2, 2")
    a(f"v_and_b32 v15, 3, v{vLane}")
    a(f"v_lshrrev_b32 v16, 5, v{vLane}")
    a(f"v_lshlrev_b32 v{vLs}, 7, v14")
    a(f"v_lshl_add_u32 v{vLs}, v15, 4, v{vLs}")
    a(f"v_lshrrev_b32 v{vT[0]}, 1, v{vLs}")
    a(f"v_lshl_add_u32 v{vLs}, v16, 6, v{vLs}")
    a(f"v_lshl_add_u32 v{vT[0]}, v16, 9, v{vT[0]}")
    a(f"v_bfe_u32 v14, v{vLane}, 4, 1")
    a(f"v_lshl_add_u32 v{vT[0]}, v14, 5, v{vT[0]}")
    a(f"v_add_u32 v{vT[0]}, s{sReg}, v{vT[0]}")
    a("s_waitcnt lgkmcnt(0)")
    a("s_barrier")
    fst(4)
    for b in range(NB):
        a(f"ds_read_b32 v{vPr+b}, v12 offset:{b*384}")
    for b in range(NB):
        a(f"ds_read_b32 v{vSr+b}, v13 offset:{b*384}")
    ea_stage(5)
    a(f"v_add_u32 v{vT[1]}, 1024, v{vT[0]}")
    a(f"v_add_u32 v{vT[2]}, 2048, v{vT[0]}")
    a(f"v_mov_b32 v{vEm}, 0x1ffe0")
    a(f"s_mov_b32 s{sM0[0]}, s{sReg}")
    a(f"s_add_u32 s{sM0[1]}, s{sReg}, 1024")
    a(f"s_add_u32 s{sM0[2]}, s{sReg}, 2048")
    for i in range(8):
        a(f"v_mov_b32 v{vEaA+i}, 0")
    a(f"s_mov_b32 s{sBlk}, 0x1000")
    a(f"s_mov_b32 s{sGi}, 0x1000")
    a("s_waitcnt lgkmcnt(0)")
    def adr(n):
        a(f"v_add_u32_dpp v{vAdr}, v{vK}, v{vLs} row_newbcast:{LN(n)} {DPPM}")
    DMA = f"global_load_lds_dwordx4 v{vAdr}, s[{sX}:{sX+1}]{fl(OPT['xfl'])}"
    def rowoff():
        a(f"v_lshrrev_b32 v{vK}, 8, v{vP}")
        a(f"v_and_b32 v{vK}, 0xfffe00, v{vK}")
        if OPT["safe"]: a(f"v_min_u32 v{vK}, {(NN-1)*512}, v{vK}")
    def idx_pack_a():
        a(f"v_and_or_b32 v{vI}, v{vP}, 28, s{sC0}")
        a(f"v_lshlrev_b32 v{vI}, v{vS16}, v{vI}")
    def idx_pack_b():
        a(f"v_or_b32_dpp v{vI}, v{vI}, v{vI} quad_perm:[1,0,3,2] {DPPM}")
    def idx_read(p):
        a(f"v_readlane_b32 s{sI}, v{vI}, {LN(p)}")
        a(f"v_readlane_b32 s{sI+1}, v{vI}, {16+LN(p)}")
    def ea_adr(g, half):
        lo, hi = ("quad_perm:[0,1,2,3]", "row_shr:4") if g == 0 else ("row_shl:4", "quad_perm:[0,1,2,3]")
        if half == 0: a(f"v_and_b32_dpp v{vE}, v{vP}, v{vEm} {lo} row_mask:0x3 bank_mask:0xf")
        else:         a(f"v_and_b32_dpp v{vE}, v{vP}, v{vEm} {hi} row_mask:0xc bank_mask:0xf")
    def abuild(src, g, dst):
        q0, q1 = 2*g, 2*g+1
        a(f"v_mov_b32_dpp v{vD+4}, v{src} quad_perm:[{q0},{q0},{q0},{q0}] {DPPM}")
        a(f"v_mov_b32_dpp v{vD+5}, v{src} quad_perm:[{q1},{q1},{q1},{q1}] {DPPM}")
        for u in range(4):
            a(f"v_dot2_f32_bf16 v{vD+u}, v{vD+4}, v{vCg+u}, 0")
        for u in range(4):
            a(f"v_dot2_f32_bf16 v{vD+u}, v{vD+5}, v{vCg+4+u}, v{vD+u}")
        nop(1)
        a(f"v_cvt_pk_bf16_f32 v{dst}, v{vD}, v{vD+1}")
        nop(1)
        a(f"v_cvt_pk_bf16_f32 v{dst+1}, v{vD+2}, v{vD+3}")
    a(f"v_mov_b32 v{vP}, v{vPr}")
    rowoff()
    idx_pack_a()
    def xfirst():
        for p in range(3):
            a(f"s_mov_b32 m0, s{sM0[p]}")
            adr(p)
            a(DMA)
    if OPT["xg"] < 0: xfirst()
    else: nop(2)
    idx_pack_b()
    ea_adr(0, 0)
    nop(1)
    idx_read(0)
    ea_adr(0, 1)
    fst(5)
    if APRE:
        for gi in range(2*NB):
            if gi >= 2*NB-2:
                a(f"s_cmp_le_u32 s{sCnt}, {8*gi}")
                a("s_cbranch_scc1 Lk2_abuilt")
            if gi in (0, 4, 8): ea_stage(6 + gi//4)
            if gi == OPT["xg"]: xfirst()
            abuild(vSr + gi//2, gi % 2, vAr + 2*gi)
        a("Lk2_abuilt:")
    else:
        for i in (6, 7, 8): ea_stage(i)
        a(f"v_mov_b32 v{vSH}, v{vSr}")
    adr(3)
    a("s_waitcnt vmcnt(0)" if any(sched[6+i] and 4*i > OPT["xg"] for i in range(3)) else "s_waitcnt vmcnt(3)")
    a("s_barrier")
    fst(6)
    if OPT["stamps"]: a("s_memtime s[94:95]")
    def ea_reads():
        a(f"s_mov_b64 exec, s[{sEx}:{sEx+1}]")
        a(f"ds_read_b128 v[{vEaA}:{vEaA+3}], v{vE} offset:{EA0}")
        a(f"ds_read_b128 v[{vEaA+4}:{vEaA+7}], v{vE} offset:{EA0+16}")
        a("s_mov_b64 exec, -1")
    def tr(sl):
        a(f"ds_read_b64_tr_b16 v[{vB}:{vB+1}], v{vT[sl]}")
        a(f"ds_read_b64_tr_b16 v[{vB+2}:{vB+3}], v{vT[sl]} offset:256")
    def afetch():
        a(f"s_mov_b32 m0, s{sGi}")
        a(f"v_mov_b32 v{vA}, v{vAr}")
        a(f"v_mov_b32 v{vA+1}, v{vAr+1}")
        a(f"s_add_u32 s{sGi}, s{sGi}, 2")
    if OPT["lprio"]: a("s_setprio 1")
    ea_reads()
    a(f"s_set_gpr_idx_on s{sM0[0]}, 0")
    if APRE: afetch()
    a(f"s_mov_b32 m0, s{sM0[0]}")
    a("s_waitcnt vmcnt(2)")
    tr(0)
    a(".p2align 6")
    a("Lk2_blk:")
    ORD = OPT["ord"]
    for p in range(16):
        g, pp = p // 8, p % 8
        def nexttr():
            a("s_waitcnt vmcnt(2)")
            tr((p+1) % 3)
            if pp == 7: ea_reads()
        a(f"s_sub_u32 s{sR}, s{sR}, 1")
        a("s_waitcnt lgkmcnt(0)")
        a(f"s_cbranch_scc1 Lk2_tail{p}")
        a("s_nop 0" if OPT["nodma"] else DMA)
        a(f"Lk2_back{p}:")
        if pp == 0:
            a(f"v_mfma_f32_32x32x16_bf16 v[{vRw}:{vRw+15}], v[{vEaA}:{vEaA+3}], v[{vWr}:{vWr+3}], 0")
            a(f"v_mfma_f32_32x32x16_bf16 v[{vRw}:{vRw+15}], v[{vEaA+4}:{vEaA+7}], v[{vWr+4}:{vWr+7}], v[{vRw}:{vRw+15}]")
            if not APRE:
                abuild(vSH, g, vA)
                nop(2)
        for s in range(2):
            a(f"v_mfma_f32_4x4x4_16b_bf16 v[{vD+4*s}:{vD+4*s+3}], v[{vA}:{vA+1}], v[{vB+2*s}:{vB+2*s+1}], 0 cbsz:4 abid:{2*pp+s}")
        gap = 9 if (pp == 0 and APRE) else 3
        if ORD == 1:
            nexttr(); gap -= 3
        if gap > 0: nop(gap)
        for s in range(2):
            a(f"s_lshr_b32 m0, s{sI+s}, 16" if p % 2 else f"s_mov_b32 m0, s{sI+s}")
            if OPT["fma"] == "pk":
                sel = "op_sel_hi:[1,0,1]" if pp % 2 == 0 else "op_sel:[0,1,0] op_sel_hi:[1,1,1]"
                r = vRw + 8*s + (pp & ~1)
                for h in range(2):
                    a(f"v_pk_fma_f32 v[{ACC+2*h}:{ACC+2*h+1}], v[{vD+4*s+2*h}:{vD+4*s+2*h+1}], v[{r}:{r+1}], v[{ACC+2*h}:{ACC+2*h+1}] {sel}")
            else:
                for w in range(4):
                    a(f"v_fmac_f32 v{ACC+w}, v{vD+4*s+w}, v{vRw+8*s+pp}")
        if ORD == 2: nexttr()
        if p == 12:
            a(f"s_add_u32 s{sBlk}, s{sBlk}, 1")
            a(f"s_mov_b32 m0, s{sBlk}")
            a(f"v_mov_b32 v{vP}, v{vPr}")
            if not APRE: a(f"v_mov_b32 v{vSH}, v{vSr}")
        if pp == 7 and APRE: afetch()
        a(f"s_mov_b32 m0, s{sM0[(p+1)%3]}")
        if p == 12:
            rowoff()
            nop(2)
        if p == 14: idx_pack_a()
        if pp == 5: ea_adr(1-g, 0)
        if pp == 6: ea_adr(1-g, 1)
        adr(p+4)
        if p == 14: idx_pack_b()
        if p % 2: idx_read((p+1) % 16)
        if pp == 7 and OPT["spf"]:
            a(f"s_sub_u32 s{sPf}, s{sPf}, 1")
            a(f"s_cbranch_scc1 Lk2_spf{g}")
            a(f"Lk2_spfb{g}:")
    a(f"v_swap_b32 v{vT[0]}, v{vT[1]}")
    a(f"v_swap_b32 v{vT[1]}, v{vT[2]}")
    a(f"s_mov_b32 s{sT0}, s{sM0[0]}\ns_mov_b32 s{sM0[0]}, s{sM0[1]}\ns_mov_b32 s{sM0[1]}, s{sM0[2]}\ns_mov_b32 s{sM0[2]}, s{sT0}")
    a("s_branch Lk2_blk")
    a("Lk2_loopend:")
    for p in range(16):
        a(f"Lk2_tail{p}:")
        a(f"s_mov_b32 s{sR}, 0")
        a(f"s_sub_u32 s{sTail}, s{sTail}, 1")
        a("s_cbranch_scc1 Lk2_exit")
        a("s_waitcnt vmcnt(0)")
        a(f"s_branch Lk2_back{p}")
    if OPT["spf"]:
        for g in range(2):
            a(f"Lk2_spf{g}:")
            for i in range(25 - OPT["pfn"]):
                a(f"s_load_dwordx2 s[62:63], s[{sPx}:{sPx+1}], {i*128+60}")
            a(f"s_branch Lk2_spfb{g}")
    a("Lk2_expmore:")
    a("s_waitcnt lgkmcnt(0)")
    for j in range(4):
        a(f"v_add_u32 v{64+j}, 128, v{64+j}")
    a("s_branch Lk2_exp")
    a("Lk2_empty:")
    a("v_mov_b32 v60, 0")
    a(f"ds_write_b32 v60, v60 offset:{EA0}")
    a("s_branch Lk2_nonempty")
    a("Lk2_clip:")
    a(f"s_add_u32 s{sT0}, s{sBase}, s{sN}")
    for j in range(4):
        a(f"v_add_u32 v76, v{64+j}, v{56+j}")
        a(f"v_min_u32 v76, s{sT0}, v76")
        a(f"v_max_u32 v77, s{sBase}, v{64+j}")
        a(f"v_sub_u32 v76, v76, v77")
        a(f"v_max_i32 v{56+j}, 0, v76")
        a(f"v_sub_u32 v76, v77, v{64+j}")
        a(f"v_add_u32 v{60+j}, v{60+j}, v76")
        a(f"v_subrev_u32 v{64+j}, s{sBase}, v77")
    a("v_max_u32 v80, v56, v57")
    a("v_max3_u32 v80, v58, v59, v80")
    a("s_branch Lk2_noclip")
    a("Lk2_latermap:")
    for n in later: eadma(n)
    a("s_branch Lk2_havemap")
    if OPT["own"]:
        a("Lk2_over:")
        a(f"ds_write_b32 v54, v83 offset:{MAP+504}")
        a("s_branch Lk2_overb")
    a("Lk2_slow:")
    a(f"s_mov_b32 s{sL}, {NB*32}")
    a("Lk2_round:")
    a("s_waitcnt vmcnt(0) lgkmcnt(0)")
    a("s_barrier")
    a("v_mov_b32 v80, 0")
    a(f"ds_write_b32 v80, v80 offset:{MAP+504}")
    a(f"v_lshlrev_b32 v81, 4, v{vLane}")
    a(f"buffer_load_dwordx4 v[52:55], v81, s[{sTab}:{sTab+3}], 0 offen")
    a("s_waitcnt vmcnt(0)")
    a("s_branch Lk2_noinit")
    a("Lk2_exit:")
    a("s_set_gpr_idx_off")
    if OPT["lprio"]: a("s_setprio 0")
    fst(7)
    if OPT["stamps"]: a("s_memtime s[92:93]")
    a(f"s_add_u32 s{sBase}, s{sBase}, s{sN}")
    a(f"s_cmp_lt_u32 s{sBase}, s{sTot}")
    a("s_cbranch_scc1 Lk2_round")
    def epi1():
        a(f"v_lshlrev_b32 v16, 4, v{vLane}")
        a("s_waitcnt vmcnt(0)")
        a(f"s_cmp_ge_u32 s{sWave}, 8")
        a("s_cbranch_scc1 Lk2_now")
        a(f"s_add_u32 m0, s{sReg}, 2048")
        a(f"s_lshl_b32 s{sT0}, s{sWave}, 10")
        a(f"s_add_u32 s{sT0}, s{sT0}, 4096")
        a(f"v_add_u32 v12, s{sT0}, v16")
        a(f"global_load_lds_dwordx4 v12, s[{sC}:{sC+1}]")
        a("Lk2_now:")
        a(f"v_lshrrev_b32 v13, 5, v{vLane}")
        a(f"s_lshl_b32 s{sT1}, s{sWave}, 5")
        a(f"v_lshl_add_u32 v14, v13, 4, s{sT1}")
        a(f"ds_read_b128 v[84:87], v14 offset:{INVM}")
        a(f"v_and_b32 v15, 31, v{vLane}")
        a(f"v_mad_u32_u24 v12, v15, 56, s{sReg}")
        a(f"v_bfe_u32 v14, v{vLane}, 2, 2")
        a("v_lshl_add_u32 v13, v13, 3, v14")
        a(f"v_mad_u32_u24 v13, v13, 56, s{sReg}")
        a(f"v_bfe_u32 v14, v{vLane}, 4, 1")
        a("v_lshl_add_u32 v13, v14, 5, v13")
        a(f"v_and_b32 v14, 3, v{vLane}")
        a("v_lshl_add_u32 v13, v14, 3, v13")
        for i in range(14):
            a(f"v_cvt_pk_bf16_f32 v{68+i}, v{ACC+2*i}, v{ACC+2*i+1}")
        for h in range(2):
            a("s_mov_b32 exec_hi, 0" if h == 0 else "s_mov_b32 exec_lo, 0")
            if h: a("s_waitcnt lgkmcnt(4)")
            for i in range(7):
                a(f"ds_write_b64 v12, v[{68+2*i}:{69+2*i}] offset:{8*i}")
            a("s_mov_b64 exec, -1")
            for s in range(2):
                for m in range(2):
                    a(f"ds_read_b64_tr_b16 v[{20+8*h+4*s+2*m}:{21+8*h+4*s+2*m}], v13 offset:{(16*s+4*m)*56}")
        a(f"s_mul_i32 s{sT1}, s{sBin}, {NPB*512}")
        a(f"v_lshl_add_u32 v15, v15, 2, s{sT1}")
        for q in range(4):
            a(f"v_add_u32 v{84+q}, v{84+q}, v15")
        a("v_mov_b32 v14, 0")
        a(f"s_cmp_ge_u32 s{sWave}, 8")
        a("s_cbranch_scc1 Lk2_wpoll")
        a("v_mov_b32 v17, 1")
        a("s_waitcnt vmcnt(0) lgkmcnt(0)")
        a("s_mov_b64 exec, 1")
        a(f"ds_add_u32 v14, v17 offset:{MAP+508}")
        a("s_mov_b64 exec, -1")
        a("Lk2_wpoll:")
        a("s_waitcnt lgkmcnt(0)")
        a(f"ds_read_b32 v17, v14 offset:{MAP+508}")
        for i in range(8):
            a(f"ds_read_b128 v[{36+4*i}:{39+4*i}], v16 offset:{REG*i+2048}")
        a("s_waitcnt lgkmcnt(8)")
        a(f"v_readfirstlane_b32 s{sT0}, v17")
        a(f"s_cmp_eq_u32 s{sT0}, 8")
        a("s_cbranch_scc1 Lk2_wok")
        a("Lk2_wwait:")
        a("s_sleep 2")
        a(f"ds_read_b32 v17, v14 offset:{MAP+508}")
        a("s_waitcnt lgkmcnt(0)")
        a(f"v_readfirstlane_b32 s{sT0}, v17")
        a(f"s_cmp_eq_u32 s{sT0}, 8")
        a("s_cbranch_scc0 Lk2_wwait")
        a("s_branch Lk2_wpoll")
        a("Lk2_wok:")
        fst(8)
        for s in range(4):
            a(f"s_waitcnt lgkmcnt({6-2*s})")
            for t in range(2):
                c = "0" if s == 0 else f"v[{ACC+16*t}:{ACC+16*t+15}]"
                a(f"v_mfma_f32_32x32x16_bf16 v[{ACC+16*t}:{ACC+16*t+15}], v[{20+4*s}:{23+4*s}], v[{36+8*s+4*t}:{39+8*s+4*t}], {c}")
    def epi0():
        a(f"v_lshlrev_b32 v16, 4, v{vLane}")
        a(f"s_cmp_ge_u32 s{sWave}, 4")
        a("s_cbranch_scc1 Lk2_now")
        a("s_waitcnt vmcnt(0)")
        a(f"s_mov_b32 m0, s{sReg}")
        a(f"s_lshl_b32 s{sT0}, s{sWave}, 11")
        a(f"s_add_u32 s{sT0}, s{sT0}, 4096")
        a(f"v_add_u32 v12, s{sT0}, v16")
        a(f"global_load_lds_dwordx4 v12, s[{sC}:{sC+1}]")
        a(f"global_load_lds_dwordx4 v12, s[{sC}:{sC+1}] offset:1024")
        a("Lk2_now:")
        a(f"v_lshrrev_b32 v13, 5, v{vLane}")
        a(f"s_lshl_b32 s{sT1}, s{sWave}, 5")
        a(f"v_lshl_add_u32 v14, v13, 4, s{sT1}")
        a(f"ds_read_b128 v[84:87], v14 offset:{INVM}")
        for i in range(14):
            a(f"v_cvt_pk_bf16_f32 v{68+i}, v{ACC+2*i}, v{ACC+2*i+1}")
        a(f"s_mul_i32 s{sT0}, s{sWave}, 4608")
        a(f"s_add_u32 s{sT0}, s{sT0}, {EA0}")
        a(f"v_mul_u32_u24 v12, 72, v{vLane}")
        a(f"v_add_u32 v12, s{sT0}, v12")
        a(f"v_bfe_u32 v14, v{vLane}, 2, 2")
        a("v_lshl_add_u32 v13, v13, 3, v14")
        a("v_mul_u32_u24 v13, 72, v13")
        a(f"v_bfe_u32 v14, v{vLane}, 4, 1")
        a("v_lshl_add_u32 v13, v14, 5, v13")
        a(f"v_and_b32 v14, 3, v{vLane}")
        a("v_lshl_add_u32 v13, v14, 3, v13")
        a(f"v_add_u32 v13, s{sT0}, v13")
        a(f"s_mul_i32 s{sT1}, s{sBin}, {NPB*512}")
        a(f"v_and_b32 v15, 31, v{vLane}")
        a(f"v_lshl_add_u32 v15, v15, 2, s{sT1}")
        a("s_waitcnt vmcnt(0) lgkmcnt(0)")
        for q in range(4):
            a(f"v_add_u32 v{84+q}, v{84+q}, v15")
        a("s_barrier")
        fst(8)
        for i in range(7):
            a(f"ds_write_b64 v12, v[{68+2*i}:{69+2*i}] offset:{8*i}")
        for s in range(4):
            if s == 2: a("s_waitcnt lgkmcnt(7)")
            for m in range(2):
                a(f"ds_read_b64_tr_b16 v[{ACC-76+4*s+2*m}:{ACC-75+4*s+2*m}], v13 offset:{(16*s+4*m)*72}")
            for t in range(2):
                a(f"ds_read_b128 v[{36+8*s+4*t}:{39+8*s+4*t}], v16 offset:{REG*s+1024*t}")
        for s in range(4):
            a(f"s_waitcnt lgkmcnt({12-4*s})")
            for t in range(2):
                c = "0" if s == 0 else f"v[{ACC+16*t}:{ACC+16*t+15}]"
                a(f"v_mfma_f32_32x32x16_bf16 v[{ACC+16*t}:{ACC+16*t+15}], v[{20+4*s}:{23+4*s}], v[{36+8*s+4*t}:{39+8*s+4*t}], {c}")
    epi1() if OPT["epi"] else epi0()
    nop(12)
    for r in range(16):
        q, t = r // 4, r % 4
        if r == 12:
            a(f"s_cmp_lt_u32 s{sWave}, 14")
            a("s_cbranch_scc1 Lk2_fin")
        a(f"v_cvt_pk_bf16_f32 v{36+r}, v{ACC+r}, v{ACC+16+r}")
        a(f"buffer_store_dword v{36+r}, v{84+q}, s[{sOsrd}:{sOsrd+3}], 0 offen offset:{t*128}{fl(OPT['outst'])}")
    a("Lk2_fin:")
    if OPT["xcc"]:
        a("s_cmp_ge_u32 s2, 16\ns_cbranch_scc1 Lk2_end")
        a("s_load_dwordx2 s[62:63], s[0:1], 72")
        a("s_getreg_b32 s40, hwreg(20, 0, 4)")
        a(f"s_lshl_b32 s41, s2, 2\ns_add_u32 s42, s41, {WS_STAMP}")
        a("v_mov_b32 v1, s42")
        a(f"global_load_dword v2, v1, s[{sWs}:{sWs+1}]")
        a("v_mov_b32 v1, s41\ns_mul_i32 s40, s40, 10\ns_add_u32 s40, s40, 100")
        a("s_waitcnt vmcnt(0) lgkmcnt(0)")
        a("v_add_u32 v2, s40, v2")
        a("global_store_dword v1, v2, s[62:63]")
    if OPT["stamps"]:
        fst(9)
        a("s_waitcnt vmcnt(0)")
        stamp(10)
        a("s_waitcnt lgkmcnt(0)")
        a("s_sub_u32 s86, s92, s94")
        a("s_mul_hi_u32 s86, s86, 429496730")
        a("s_add_u32 s86, s86, s84")
        stamp_out(1, 12, sWs, sWave)
    a("Lk2_end:")
    a("s_endpgm")

hdr = open("standalone__tensor_product_equiv_mace__graph.s.ref").read().split("; Override launch")[0]
out = hdr
if OPT["fuse"] == 1:
    out += f"; @launch grid=(256,1,1) block=(1024,1,1) lds={K2_LDS}\n"
elif OPT["fuse"] == 2:
    out += f"; @launch kernel={KN} grid=(256,1,1) block=(1024,1,1) lds={K2_LDS}\n"
else:
    out += f"; @launch kernel=mace_bin_kernel grid=({NCH+1},1,1) block=(640,1,1) lds={K1_LDS}\n"
    out += f"; @launch kernel=mace_main_kernel grid=(256,1,1) block=(1024,1,1) lds={K2_LDS}\n"
out += '.amdgcn_target "amdgcn-amd-amdhsa--gfx950"\n.text\n'
k1(); k2()
if OPT["drop"]:
    i0, i1 = L.index("Lk2_blk:"), L.index("Lk2_loopend:")
    pats = {"tr":"ds_read_b64_tr", "pk":"v_pk_fma", "tp":"v_mfma_f32_4x4x4", "rw":"v_mfma_f32_32x32", "dot":"v_dot2", "rl":"v_readlane", "ea":"ds_read_b128", "fm":"v_fmac", "m0":"m0, s4", "lgkm":"lgkmcnt"}
    for t in OPT["drop"].split(","):
        L[i0:i1] = [("s_nop 0" if False else None) if pats[t] in l else l for l in L[i0:i1]]
        L[:] = [l for l in L if l is not None]
        i1 = L.index("Lk2_loopend:")
out += "\n".join(("    " + l if l and not l.endswith(":") and not l.startswith(".") else l) for l in L) + "\n"
if OPT["fuse"]: out += '.section .rodata,"a"\n.p2align 6\n' + kd(KN, 128)
else: out += '.section .rodata,"a"\n.p2align 6\n' + kd("mace_bin_kernel", 80) + ".p2align 6\n" + kd("mace_main_kernel", 128)
open(sys.argv[1], "w").write(out)
```

```python
import sys
OPT = dict(spin0=0, k1m=0, xg=-1, own=1, keep="off", xcc=0, lprio=1, sk3=1, epi=0, fine=0, kpf=0, clate=0, cpf=0, zearly=1, ph=10, apre=0, tperm=1, tabst="", ord=2, k1ord=0, spf=1, pfn=10, easched=1111100001, k2bar=1, k1bar=1, drop="", nodma=0, fuse=0, spin=-1, dbgwg=-1, safe=0, stamps=0, ntl=1, nts="sc1", pf=1, fma="pk", ksld="", eald="", outst="sc1", xfl="")
for a in sys.argv[2:]:
    k, v = a.split("=")
    OPT[k] = int(v) if v.lstrip("-").isdigit() else v
for k in ("tabst","nts","ksld","eald","outst","xfl"):
    OPT[k] = "" if OPT[k] in (0,"") else str(OPT[k]).replace("+"," ")

KN = "standalone__tensor_product_equiv_mace__graph_kernel"
NN, NE = 25000, 800000
CH, NCH = 3200, 250
NPB = 98
MAGIC, MSH = 42800, 22
assert all((d*MAGIC) >> MSH == d//NPB for d in range(NN))
WS_FLAG, SPIN = 0x50000, 400000
WS_TAB, WS_CONST, WS_KS, WS_EA, WS_STAMP = 0, 0x40000, 0x100000, 0xB00000, 128 << 20
CAP, NB = 3552, 7

L = []
def a(s):
    for ln in s.split("\n"):
        L.append(ln)
def nop(n):
    a(f"s_nop {n-1}")
NT = " nt" if OPT["ntl"] else ""
def fl(x): return (" " + x) if x else ""

def stamp(i):
    if OPT["stamps"]:
        a(f"s_memrealtime s[{64+2*i}:{65+2*i}]")
def stamp_out(k, n, sws, swave, tag=''):
    if not OPT["stamps"]: return
    a(f"s_cmp_lg_u32 s{swave}, {OPT['stamps']-1}")
    a(f"s_cbranch_scc1 Lnostamp{k}{tag}")
    if OPT["dbgwg"] >= 0 and k == 1:
        a(f"s_cmp_lg_u32 s2, {OPT['dbgwg']}")
        a(f"s_cbranch_scc1 Lnostamp{k}{tag}")
        a("s_load_dwordx2 s[62:63], s[0:1], 72")
        a("s_waitcnt lgkmcnt(0)")
        a("s_mov_b64 exec, 1")
        a(f"v_mov_b32 v1, {WS_STAMP + OPT['dbgwg']*64}")
        a(f"global_load_dwordx4 v[4:7], v1, s[{sws}:{sws+1}]")
        a(f"global_load_dword v8, v1, s[{sws}:{sws+1}] offset:20")
        a("v_mov_b32 v1, 0")
        a("s_waitcnt vmcnt(0)")
        if OPT["spin"] >= 0:
            j = OPT["spin"]
            j0 = OPT["spin0"]
            a(f"v_mov_b32 v9, v{4+j0}" if j0 < 5 else f"v_mov_b32 v9, s{64+2*(j0-5)}")
            a(f"v_sub_u32 v2, v{4+j}, v9" if j < 5 else f"v_sub_u32 v2, s{64+2*(j-5)}, v9")
            a("s_nop 1")
            a("v_readfirstlane_b32 s60, v2")
            a("s_min_u32 s60, s60, 10000")
            a("s_lshl_b32 s60, s60, 4")
            a("Lspin:")
            a("s_memrealtime s[58:59]")
            a("s_waitcnt lgkmcnt(0)")
            a("s_sub_u32 s58, s58, s84")
            a("s_cmp_lt_u32 s58, s60")
            a("s_cbranch_scc1 Lspin")
        for j in range(1,5):
            a(f"v_sub_u32 v2, v{4+j}, v4")
            a(f"global_store_dword v1, v2, s[62:63] offset:{4*j}")
        for j in range(11):
            a(f"v_sub_u32 v2, s{64+2*j}, v4")
            a(f"global_store_dword v1, v2, s[62:63] offset:{4*(j+5)}")
        a(f"Lnostamp{k}{tag}:")
        return
    a("s_waitcnt lgkmcnt(0)")
    a("s_mov_b64 exec, 1")
    a(f"s_lshl_b32 s62, s2, 6\ns_add_u32 s62, s62, {WS_STAMP + k*256*64}")
    a("v_mov_b32 v1, s62")
    for i in range(n):
        a(f"v_mov_b32 v2, s{64+2*i}")
        a(f"global_store_dword v1, v2, s[{sws}:{sws+1}] offset:{4*i}")
    a(f"Lnostamp{k}{tag}:")

def scan(c, s1, s2, x, tot):
    a(f"v_add_u32 v{s1}, v{c}, v{c+1}")
    a(f"v_add_u32 v{s2}, v{s1}, v{c+2}")
    a(f"v_add_u32 v{tot}, v{s2}, v{c+3}")
    a(f"v_mov_b32 v{x}, v{tot}")
    for d in ("row_shr:1", "row_shr:2", "row_shr:4", "row_shr:8"):
        nop(2)
        a(f"v_add_u32_dpp v{x}, v{x}, v{x} {d} row_mask:0xf bank_mask:0xf")
    nop(2)
    a(f"v_add_u32_dpp v{x}, v{x}, v{x} row_bcast:15 row_mask:0xa bank_mask:0xf")
    nop(2)
    a(f"v_add_u32_dpp v{x}, v{x}, v{x} row_bcast:31 row_mask:0xc bank_mask:0xf")

def kd(name, vg, sg=96):
    return f""".amdhsa_kernel {name}
  .amdhsa_next_free_vgpr {vg}
  .amdhsa_next_free_sgpr {sg}
  .amdhsa_accum_offset {vg}
  .amdhsa_group_segment_fixed_size 0
  .amdhsa_kernarg_size 88
  .amdhsa_user_sgpr_count 2
  .amdhsa_user_sgpr_kernarg_segment_ptr 1
  .amdhsa_system_sgpr_workgroup_id_x 1
  .amdhsa_float_denorm_mode_32 3
.end_amdhsa_kernel
"""

K1_HIST, K1_BASE, K1_INV, K1_KS, K1_EA, K1_LDS = 0, 1024, 2048, 14848, 53248, 155648
def k1():
    if OPT["fuse"]:
        a(f".globl {KN}\n.p2align 8\n.type {KN},@function\n{KN}:")
        stamp(0)
        a("s_cmp_ge_u32 s2, 256")
        a("s_cbranch_scc1 Lk2_end")
        a("v_readfirstlane_b32 s14, v0")
        a("s_cmp_ge_u32 s14, 640")
        a("s_cbranch_scc1 Lk1_spare")
    else:
        a(".globl mace_bin_kernel\n.p2align 8\n.type mace_bin_kernel,@function\nmace_bin_kernel:")
        stamp(0)
    a(f"s_cmp_gt_u32 s2, {NCH}")
    a("s_cbranch_scc1 Lk1_spare1" if OPT["fuse"] else "s_cbranch_scc1 Lk1_end")
    a(f"s_cmp_eq_u32 s2, {NCH}")
    a("s_cbranch_scc1 Lk1_prep")
    a("s_load_dwordx4 s[4:7], s[0:1], 8")
    a("s_load_dwordx4 s[8:11], s[0:1], 24")
    a("s_load_dwordx2 s[12:13], s[0:1], 80")
    a("s_load_dwordx2 s[30:31], s[0:1], 0")
    a("v_lshrrev_b32 v1, 6, v0")
    a("v_and_b32 v2, 63, v0")
    a("v_readfirstlane_b32 s14, v1")
    a("v_lshlrev_b32 v3, 2, v0")
    a("v_mov_b32 v4, 0")
    a("ds_write_b32 v3, v4")
    a("v_lshlrev_b32 v3, 2, v2")
    a("v_lshlrev_b32 v4, 3, v2")
    a("v_lshlrev_b32 v5, 4, v2")
    a(f"s_mul_i32 s15, s2, {CH}")
    a("s_mul_i32 s16, s14, 320")
    a("s_add_u32 s15, s15, s16")
    a("s_lshl_b32 s17, s15, 2")
    a("s_lshl_b32 s18, s15, 3")
    a("s_lshl_b32 s19, s15, 5")
    a("s_waitcnt lgkmcnt(0)")
    a("s_add_u32 s6, s6, s17\ns_addc_u32 s7, s7, 0")
    for k in range(5):
        a(f"global_load_dword v{10+k}, v3, s[6:7] offset:{k*256}{NT}")
    a("s_add_u32 s4, s4, s17\ns_addc_u32 s5, s5, 0")
    for k in range(5):
        a(f"global_load_dword v{15+k}, v3, s[4:5] offset:{k*256}{NT}")
    a("s_add_u32 s8, s8, s18\ns_addc_u32 s9, s9, 0")
    for k in range(5):
        a(f"global_load_dwordx2 v[{20+2*k}:{21+2*k}], v4, s[8:9] offset:{k*512}{NT}")
    if OPT["k1bar"]: a("s_barrier")
    def k1dma():
        a("s_add_u32 s10, s10, s19\ns_addc_u32 s11, s11, 0")
        a("s_lshl_b32 s20, s16, 5")
        a(f"s_add_u32 s20, s20, {K1_EA}")
        for i in range(10):
            if i % 4 == 0:
                a(f"s_add_u32 m0, s20, {i*1024}")
                a(f"v_add_u32 v6, {i*1024}, v5")
            a(f"global_load_lds_dwordx4 v6, s[10:11] offset:{(i%4)*1024}{NT}")
    if not OPT["k1ord"]: k1dma()
    if not OPT["k1bar"]: a("s_barrier")
    a(f"s_mov_b32 s21, {MAGIC}")
    a(f"s_mov_b32 s22, {-NPB}")
    a("v_mov_b32 v7, 1")
    a("s_waitcnt vmcnt(10)" if OPT["k1ord"] else "s_waitcnt vmcnt(20)")
    stamp(1)
    for k in range(5):
        a(f"v_mul_u32_u24 v{30+k}, s21, v{10+k}")
        a(f"v_lshrrev_b32 v{30+k}, {MSH}, v{30+k}")
        a(f"v_mad_i32_i24 v{10+k}, v{30+k}, s22, v{10+k}")
        a(f"v_lshlrev_b32 v{30+k}, 2, v{30+k}")
        a(f"ds_add_rtn_u32 v{35+k}, v{30+k}, v7 offset:{K1_HIST}")
    a("s_waitcnt lgkmcnt(0)")
    a("s_barrier")
    a(f"ds_read_b128 v[40:43], v5 offset:{K1_HIST}")
    if OPT["k1ord"]: k1dma()
    if not OPT['fuse']:
        a("s_mul_i32 s23, s14, 26")
        a("v_add_u32 v48, s23, v2")
        a("v_cmp_gt_u32 s[24:25], 26, v2")
        a("v_cmp_gt_u32 vcc, 0x100, v48")
        a("s_and_b64 s[24:25], s[24:25], vcc")
        a("v_and_b32 v48, 0xff, v48")
        a("v_lshlrev_b32 v49, 2, v48")
        a("v_lshlrev_b32 v48, 10, v48")
        if OPT["tperm"]:
            a("s_and_b32 s23, s2, 7\ns_lshl_b32 s23, s23, 5\ns_lshr_b32 s26, s2, 3\ns_add_u32 s23, s23, s26\ns_lshl_b32 s23, s23, 2")
        else:
            a("s_lshl_b32 s23, s2, 2")
        a("v_add_u32 v48, s23, v48")
    a("s_waitcnt lgkmcnt(0)")
    scan(40, 44, 45, 46, 47)
    KEEP = OPT["keep"] != "off"
    kfl = "" if OPT["keep"] == "plain" else " " + str(OPT["keep"])
    if KEEP:
        a("s_and_b32 s34, s2, 7\ns_lshl_b32 s34, s34, 3\ns_add_u32 s35, s34, 7")
        a("v_readlane_b32 s33, v46, s35")
    a("v_sub_u32 v46, v46, v47")
    a("v_add_u32 v41, v46, v40")
    a("v_add_u32 v42, v46, v44")
    a("v_add_u32 v43, v46, v45")
    a("v_mov_b32 v40, v46")
    if KEEP:
        a("v_readlane_b32 s32, v46, s34")
        a("s_sub_u32 s33, s33, s32")
        a("s_sub_u32 s32, s16, s32")
    kn = [0]
    def kstore(text, mid):
        if not KEEP:
            a(text + fl(OPT['nts'])); return
        kn[0] += 1
        a(f"s_add_u32 s34, s32, {mid}")
        a("s_cmp_lt_u32 s34, s33")
        a(f"s_cbranch_scc1 Lk1_k{kn[0]}")
        a(text + fl(OPT['nts']))
        a(f"s_branch Lk1_kd{kn[0]}")
        a(f"Lk1_k{kn[0]}:")
        a(text + kfl)
        a(f"Lk1_kd{kn[0]}:")
    a(f"ds_write_b128 v5, v[40:43] offset:{K1_BASE}")
    for k in range(5):
        a(f"ds_read_b32 v{30+k}, v{30+k} offset:{K1_BASE}")
    if not OPT["fuse"]:
        a(f"ds_read_b32 v50, v49 offset:{K1_BASE}")
        a(f"ds_read_b32 v51, v49 offset:{K1_HIST}")
    a("s_waitcnt vmcnt(10)")
    for k in range(5):
        a(f"v_lshlrev_b32 v{10+k}, 2, v{10+k}")
        a(f"v_lshl_or_b32 v{15+k}, v{15+k}, 17, v{10+k}")
    a("v_lshl_add_u32 v53, v2, 5, s20")
    a("s_waitcnt lgkmcnt(0)")
    if not OPT["fuse"]:
        a(f"s_mul_i32 s23, s2, {CH}")
        a("v_add_u32 v50, s23, v50")
        a("v_lshl_or_b32 v50, v51, 20, v50")
        a("s_mov_b64 exec, s[24:25]")
        a(f"global_store_dword v48, v50, s[12:13]{fl(OPT['tabst'])}")
        a("s_mov_b64 exec, -1")
    for k in range(5):
        a(f"v_add_u32 v{30+k}, v{30+k}, v{35+k}")
        a(f"v_lshlrev_b32 v{35+k}, 2, v{30+k}")
        a(f"v_mul_u32_u24 v{30+k}, 12, v{30+k}")
        if k: a(f"v_add_u32 v{53+k}, {k*2048}, v53")
        a(f"ds_write_b32 v{35+k}, v{53+k} offset:{K1_INV}")
        a(f"v_add_u32 v{30+k}, {K1_KS}, v{30+k}")
        a(f"ds_write_b32 v{30+k}, v{15+k}")
        a(f"ds_write2_b32 v{30+k}, v{20+2*k}, v{21+2*k} offset0:1 offset1:2")
    a("s_waitcnt vmcnt(1) lgkmcnt(0)" if OPT["k1m"] == 1 else "s_waitcnt lgkmcnt(0)")
    a("s_barrier")
    stamp(2)
    a("s_mul_i32 s23, s14, 3840")
    a("v_add_u32 v8, s23, v5")
    for i in range(4):
        a(f"ds_read_b128 v[{12+4*i}:{15+4*i}], v8 offset:{K1_KS+i*1024}")
    a("v_lshrrev_b32 v9, 1, v2")
    a("v_add_u32 v9, s16, v9")
    a("v_lshlrev_b32 v9, 2, v9")
    for i in range(10):
        a(f"ds_read_b32 v{30+i}, v9 offset:{K1_INV+i*128}")
    a(f"s_mul_i32 s23, s2, {CH*12}")
    a(f"s_add_u32 s23, s23, {WS_KS}")
    a("s_add_u32 s26, s12, s23\ns_addc_u32 s27, s13, 0")
    a(f"s_add_u32 s19, s19, {WS_EA}")
    a("s_add_u32 s28, s12, s19\ns_addc_u32 s29, s13, 0")
    a("v_and_b32 v10, 1, v2")
    a("v_lshlrev_b32 v10, 4, v10")
    def ksout():
        for i in range(4):
            if i == 3: a("s_mov_b32 exec_hi, 0xffff")
            kstore(f"global_store_dwordx4 v8, v[{12+4*i}:{15+4*i}], s[26:27] offset:{i*1024}", (i*1024+(512 if i < 3 else 384))//12)
        a("s_mov_b64 exec, -1")
    if OPT["k1m"] == 0:
        a("s_waitcnt lgkmcnt(10)")
        ksout()
    a("s_waitcnt lgkmcnt(0)")
    for i in range(10):
        a(f"v_add_u32 v{30+i}, v{30+i}, v10")
    def k1pf():
        a("s_mul_i32 s23, s2, 10")
        a("s_add_u32 s23, s23, s14")
        a("s_mul_i32 s23, s23, 5120")
        a("v_min_u32 v11, 39, v2")
        a("v_lshl_add_u32 v11, v11, 7, s23")
        a("global_load_dword v11, v11, s[30:31]")
    if OPT["pf"] == 2: k1pf()
    if OPT["k1m"] != 1:
        a("s_waitcnt vmcnt(5)" if OPT["k1m"] == 0 else "s_waitcnt vmcnt(1)")
        a("s_barrier")
    stamp(3)
    for i in range(10):
        a(f"ds_read_b128 v[{40+4*i}:{43+4*i}], v{30+i}")
    if OPT["k1m"]: ksout()
    a("v_add_u32 v6, 4096, v5")
    a("v_add_u32 v7, 8192, v5")
    for i in range(10):
        a(f"s_waitcnt lgkmcnt({9-i})")
        kstore(f"global_store_dwordx4 v{5+i//4}, v[{40+4*i}:{43+4*i}], s[28:29] offset:{(i%4)*1024}", 32*i+16)
    if OPT["pf"] == 3: k1pf()
    if OPT["stamps"]:
        stamp(4)
        a("s_waitcnt vmcnt(0)")
        stamp(5)
        stamp_out(0, 6, 12, 14)
    if OPT["xcc"]:
        a("s_getreg_b32 s40, hwreg(20, 0, 4)")
        a(f"s_lshl_b32 s41, s2, 2\ns_add_u32 s41, s41, {WS_STAMP}")
        a("v_mov_b32 v1, s41\nv_mov_b32 v2, s40")
        a("global_store_dword v1, v2, s[12:13]")
    a("Lk1_end:")
    a("s_mov_b64 exec, -1\ns_branch Lk2_join" if OPT["fuse"] else "s_endpgm")
    a("Lk1_prep:")
    a("s_load_dwordx4 s[4:7], s[0:1], 40")
    a("s_load_dwordx2 s[8:9], s[0:1], 56")
    a("s_load_dwordx2 s[12:13], s[0:1], 80")
    a("v_lshrrev_b32 v1, 6, v0")
    a("v_and_b32 v2, 63, v0")
    a("v_readfirstlane_b32 s14, v1")
    a("v_lshlrev_b32 v5, 4, v2")
    a("s_waitcnt lgkmcnt(0)")
    a(f"s_add_u32 s12, s12, {WS_CONST}\ns_addc_u32 s13, s13, 0")
    def gather8(base, offs, dstoff_s):
        for k in range(8):
            a(f"global_load_ushort v{10+k}, v3, s[{base}:{base+1}] offset:{offs[k]}")
        a("s_waitcnt vmcnt(0)")
        for k in range(4):
            a(f"v_lshl_or_b32 v{20+k}, v{11+2*k}, 16, v{10+2*k}")
        a(f"v_add_u32 v6, s{dstoff_s}, v5")
        a("global_store_dwordx4 v6, v[20:23], s[12:13]" + (" sc1" if OPT["fuse"] else ""))
        a("s_waitcnt vmcnt(0)")
    a("s_cmp_ge_u32 s14, 8")
    a("s_cbranch_scc1 Lk1_prep2")
    a("s_lshr_b32 s15, s14, 1")
    a("s_and_b32 s16, s14, 1")
    a("s_lshl_b32 s15, s15, 11")
    a("s_lshl_b32 s16, s16, 1")
    a("s_add_u32 s15, s15, s16")
    a("v_lshrrev_b32 v3, 5, v2")
    a("v_lshlrev_b32 v3, 10, v3")
    a("v_and_b32 v4, 31, v2")
    a("v_lshl_add_u32 v3, v4, 2, v3")
    a("v_add_u32 v3, s15, v3")
    a("s_lshl_b32 s17, s14, 10")
    a("s_add_u32 s17, s17, 4096")
    gather8(8, [k*128 for k in range(8)], 17)
    a("s_barrier\ns_branch Lk2_join" if OPT["fuse"] else "s_endpgm")
    a("Lk1_prep2:")
    a("s_sub_u32 s14, s14, 8")
    a("s_lshl_b32 s17, s14, 10")
    a("v_lshl_add_u32 v3, v2, 1, s17")
    gather8(6, [k*128 for k in range(8)], 17)
    a("s_lshl_b32 s15, s14, 4")
    a("v_and_b32 v3, 3, v2")
    a("v_lshl_add_u32 v3, v3, 1, s15")
    a("s_add_u32 s17, s17, 2048")
    gather8(4, [(k//2)*32 + (k%2)*8 for k in range(8)], 17)
    a("s_endpgm")

MAP, INVM, EA0, K2_LDS = 49152, 49664, 50176, 163840
assert EA0 + CAP*32 == K2_LDS
REG = 3072
HISTO, BASEO = 2784, 2912
DEG, RT = 0, 512
BAND = 70
PH = OPT["ph"]; NPL = 4 if PH == 11 else 8
assert all((r*147) >> 11 == r//14 for r in range(128))
assert all(((x*12+12)*2731) >> 16 == (x+1)//2 for x in range(NB*32+1))
APRE = OPT["apre"]
vLs, vT, vEm, vS16, vK, vP, vE, vAdr, vI = 1, [2,3,4], 5, 6, 7, 8, 9, 10, 11
vA, vB, vLane, vF = 12, 14, 18, 19
vWr, vEaA, vD, vRw, vPr, vSH, vAr, ACC = 20, 28, 36, 44, 60, 67, 68, 96
vCg, vSr = (44, 52) if APRE else (68, 76)
vKS, vS, vPos, vG = 28, 84, 88, 92
sX, sOut, sKS, sEA, sC, sWs = 4, 6, 8, 10, 12, 14
sTab, sOsrd = 16, 20
sWave, sBin, sTot, sBase, sL, sN, sReg, sCnt, sR, sTail, sGi, sFirst, sBlk = 24,25,26,27,28,29,30,31,32,33,34,35,36
sM0 = [37,38,39]
sI, sC0, sEm, sPf, sPx = 40, 42, 43, 45, 46
sMk = 48
sEx = 56
sT0, sT1, sT2, sT3 = 58, 59, 60, 61
KORD = (3, 0, 1, 2)
def LN(tau):
    tau %= 16
    return (tau & 3) | ((tau & 4) << 1) | ((tau & 8) >> 1)
DPPM = "row_mask:0xf bank_mask:0xf"

def fst(i):
    m = {"A":2, 3:3, "B1":4, "B2":5, "B3":6, 4:7, 6:8, 7:9} if OPT["fine"] else {k:k for k in range(12)}
    if i in m: stamp(m[i])
def k2():
    a(".globl mace_main_kernel\n.p2align 8\n.type mace_main_kernel,@function\nmace_main_kernel:")
    stamp(0)
    a("s_cmp_ge_u32 s2, 256")
    a("s_cbranch_scc1 Lk2_end")
    a(f"s_load_dwordx2 s[{sWs}:{sWs+1}], s[0:1], 80")
    a(f"s_load_dwordx2 s[{sX}:{sX+1}], s[0:1], 0")
    a(f"s_load_dwordx2 s[{sOut}:{sOut+1}], s[0:1], 64")
    a(f"v_lshrrev_b32 v81, 6, v0")
    a(f"v_and_b32 v{vLane}, 63, v0")
    a(f"v_readfirstlane_b32 s{sWave}, v81")
    a(f"s_and_b32 s{sBin}, s2, 7")
    a(f"s_lshl_b32 s{sBin}, s{sBin}, 5")
    a(f"s_lshr_b32 s{sT0}, s2, 3")
    a(f"s_add_u32 s{sBin}, s{sBin}, s{sT0}")
    a(f"s_lshl_b32 s{sT0}, s{sBin}, 10")
    a(f"v_lshlrev_b32 v81, 4, v{vLane}")
    a(f"s_mov_b32 s{sTab+2}, 1024")
    a(f"s_mov_b32 s{sTab+3}, 0x20000")
    a("s_waitcnt lgkmcnt(0)")
    a(f"s_add_u32 s{sTab}, s{sWs}, s{sT0}")
    a(f"s_addc_u32 s{sTab+1}, s{sWs+1}, 0")
    a(f"buffer_load_dwordx4 v[52:55], v81, s[{sTab}:{sTab+3}], 0 offen")
    npre = 0
    if OPT["kpf"]:
        a(f"s_and_b32 s{sT1}, s{sWave}, 3")
        a(f"s_lshl_b32 s{sT1}, s{sT1}, 2")
        a(f"buffer_load_dword v84, v81, s[{sTab}:{sTab+3}], s{sT1} offen")
    if OPT["cpf"]:
        a("s_getpc_b64 s[62:63]")
        a(f"v_lshlrev_b32 v{vK}, 7, v{vLane}")
        a(f"v_min_u32 v{vK}, Lk2_end-mace_main_kernel-256, v{vK}")
        a(f"s_cmp_lg_u32 s{sWave}, 15")
        a("s_cbranch_scc1 Lk2_nocpf")
        a(f"global_load_dword v{vP}, v{vK}, s[62:63]")
        a("Lk2_nocpf:")
    if OPT["pf"] == 1:
        a(f"s_min_u32 s{sT0}, s2, 249")
        a(f"s_lshl_b32 s{sT0}, s{sT0}, 4")
        a(f"s_add_u32 s{sT0}, s{sT0}, s{sWave}")
        a(f"s_mul_i32 s{sT0}, s{sT0}, {OPT['pfn']*128}")
        a(f"v_min_u32 v{vE}, {OPT['pfn']-1}, v{vLane}")
        a(f"v_lshl_add_u32 v{vE}, v{vE}, 7, s{sT0}")
        a(f"global_load_dword v{vI}, v{vE}, s[{sX}:{sX+1}]")
        npre += 1
    if OPT["spf"]:
        ns = 25 - OPT["pfn"]
        a(f"s_lshr_b32 s{sPf}, s{sWave}, 2")
        a(f"s_mul_i32 s{sT0}, s{sPf}, 1000")
        a(f"s_min_u32 s{sT1}, s2, 249")
        a(f"s_lshl_b32 s{sT1}, s{sT1}, 2")
        a(f"s_add_u32 s{sT0}, s{sT0}, s{sT1}")
        a(f"s_and_b32 s{sT1}, s{sWave}, 3")
        a(f"s_add_u32 s{sT0}, s{sT0}, s{sT1}")
        a(f"s_mul_i32 s{sT0}, s{sT0}, {ns*128}")
        a(f"s_add_u32 s{sT0}, s{sT0}, {OPT['pfn']*128*4000}")
        a(f"s_add_u32 s{sPx}, s{sX}, s{sT0}\ns_addc_u32 s{sPx+1}, s{sX+1}, 0")
    a(f"s_add_u32 s{sC}, s{sWs}, {WS_CONST}\ns_addc_u32 s{sC+1}, s{sWs+1}, 0")
    a(f"s_add_u32 s{sKS}, s{sWs}, {WS_KS}\ns_addc_u32 s{sKS+1}, s{sWs+1}, 0")
    a(f"s_add_u32 s{sEA}, s{sWs}, {WS_EA}\ns_addc_u32 s{sEA+1}, s{sWs+1}, 0")
    a(f"s_mov_b32 s{sOsrd}, s{sOut}\ns_mov_b32 s{sOsrd+1}, s{sOut+1}\ns_mov_b32 s{sOsrd+2}, {NN*512}\ns_mov_b32 s{sOsrd+3}, 0x20000")
    a(f"s_mov_b32 s{sBase}, 0\ns_mov_b32 s{sL}, {CAP}\ns_mov_b32 s{sFirst}, 1")
    a(f"s_mov_b32 s{sEx}, 0x0f0f0f0f\ns_mov_b32 s{sEx+1}, 0xf0f0f0f0")
    a(f"s_mov_b32 s{sC0}, {0xc000 if OPT['fma']=='pk' else 0x8000}")
    a(f"s_mul_i32 s{sReg}, s{sWave}, {REG}")
    a(f"s_lshl_b32 s{sEm}, s{sWave}, 11")
    a(f"s_add_u32 s{sEm}, s{sEm}, {EA0}")
    a(f"v_and_b32 v{vS16}, 1, v{vLane}")
    a(f"v_and_b32 v{vF}, 0x3c1, v0")
    a(f"v_bfe_u32 v82, v{vLane}, 1, 1")
    a(f"v_lshl_add_u32 v{vF}, v82, 5, v{vF}")
    a(f"v_lshrrev_b32 v82, 2, v{vLane}")
    a(f"v_lshl_add_u32 v{vF}, v82, 1, v{vF}")
    a(f"v_lshlrev_b32 v{vS16}, 4, v{vS16}")
    a(f"s_cmp_ge_u32 s{sWave}, 2")
    a("s_cbranch_scc1 Lk2_noinit")
    a("v_lshlrev_b32 v77, 2, v0")
    a("v_sub_u32 v78, 0x7f, v0")
    a("v_mov_b32 v79, 0x7f000000")
    a(f"ds_write_b32 v77, v78 offset:{DEG}")
    a(f"ds_write_b32 v77, v79 offset:{INVM}")
    a("v_mov_b32 v80, 0")
    a(f"ds_write_b32 v77, v80 offset:{MAP}")
    a("Lk2_noinit:")
    a(f"v_lshl_add_u32 v82, v{vLane}, 2, s{sReg}")
    a("v_mov_b32 v83, 0")
    a(f"ds_write_b32 v82, v83 offset:{HISTO}")
    if OPT["zearly"]:
        a(f"s_cmp_eq_u32 s{sFirst}, 0")
        a("s_cbranch_scc1 Lk2_nozero")
        for i in range(32):
            a(f"v_mov_b32 v{ACC+i}, 0")
        a("Lk2_nozero:")
    if OPT["kpf"]:
        a(f"s_mov_b32 s88, s{sKS}\ns_mov_b32 s89, s{sKS+1}\ns_mov_b32 s90, {NE*12}\ns_mov_b32 s91, 0x20000")
        a(f"s_lshr_b32 s{sT1}, s{sWave}, 2")
        a(f"s_lshl_b32 s{sT1}, s{sT1}, 7")
    a(f"s_waitcnt vmcnt({npre}) lgkmcnt(0)")
    if OPT["kpf"]:
        a(f"s_cmp_ge_u32 s{sWave}, {4*OPT['kpf']}")
        a("s_cbranch_scc1 Lk2_nokpf")
        a("v_lshrrev_b32 v85, 20, v84")
        a("v_and_b32 v84, 0xfffff, v84")
        a("v_mad_u32_u24 v85, v85, 12, -4")
        a(f"v_min_i32 v85, s{sT1}, v85")
        a("v_mad_u32_u24 v84, v84, 12, v85")
        a(f"buffer_load_dword v{vK}, v84, s[88:91], 0 offen")
        a("Lk2_nokpf:")
    stamp(1)
    a("s_mov_b32 exec_lo, 0x80800000\ns_mov_b32 exec_hi, 0x80808080")
    a("v_mov_b32 v55, 0")
    a("s_mov_b64 exec, -1")
    def consts():
        for i in range(2):
            a(f"global_load_dwordx4 v[{vWr+4*i}:{vWr+4*i+3}], v81, s[{sC}:{sC+1}] offset:{i*1024}")
            a(f"global_load_dwordx4 v[{vCg+4*i}:{vCg+4*i+3}], v81, s[{sC}:{sC+1}] offset:{2048+i*1024}")
    if not OPT["clate"]: consts()
    for j in range(4):
        a(f"v_lshrrev_b32 v{56+j}, 20, v{52+j}")
    a("v_add_u32 v76, v56, v57")
    a("v_add_u32 v77, v76, v58")
    a("v_add_u32 v79, v77, v59")
    a("v_mov_b32 v78, v79")
    fill = [f"v_and_b32 v{60+j}, 0xfffff, v{52+j}" for j in range(4)] + ["v_max_u32 v80, v56, v57", "v_max3_u32 v80, v58, v59, v80"]
    for d, rm in (("row_shr:1","0xf"), ("row_shr:2","0xf"), ("row_shr:4","0xf"), ("row_shr:8","0xf"), ("row_bcast:15","0xa"), ("row_bcast:31","0xc")):
        a(fill.pop(0)); nop(1)
        a(f"v_add_u32_dpp v78, v78, v78 {d} row_mask:{rm} bank_mask:0xf")
    a("v_sub_u32 v64, v78, v79")
    a(f"v_readlane_b32 s{sTot}, v78, 63")
    a("v_add_u32 v65, v64, v56")
    a("v_add_u32 v66, v64, v76")
    a("v_add_u32 v67, v64, v77")
    a(f"s_sub_u32 s{sN}, s{sTot}, s{sBase}")
    a(f"s_min_u32 s{sN}, s{sN}, s{sL}")
    a(f"s_cmp_lg_u32 s{sN}, s{sTot}")
    a("s_cbranch_scc1 Lk2_clip")
    a("Lk2_noclip:")
    a(f"s_mov_b32 s{sT0}, s{sWave}")
    for j in range(4):
        a(f"v_sub_u32 v{60+j}, v{60+j}, v{64+j}")
        a(f"v_add_lshl_u32 v{64+j}, v{64+j}, s{sWave}, 2")
    a("Lk2_exp:")
    for it in range(2):
        for j in range(4):
            a(f"v_cmp_lt_u32 s[{sMk+2*j}:{sMk+2*j+1}], s{sT0}, v{56+j}")
        a(f"s_add_u32 s{sT0}, s{sT0}, 16")
        a(f"v_cmp_lt_u32 vcc, s{sT0}, v80")
        for j in range(4):
            a(f"s_mov_b64 exec, s[{sMk+2*j}:{sMk+2*j+1}]")
            a(f"ds_write_b32 v{64+j}, v{60+j} offset:{EA0+64*it}")
        a("s_mov_b64 exec, -1")
        a("s_cbranch_vccz Lk2_expdone" if it == 0 else "s_cbranch_vccnz Lk2_expmore")
    a("Lk2_expdone:")
    a(f"s_max_u32 s{sT0}, s{sN}, 1")
    a(f"s_sub_u32 s{sT0}, s{sT0}, 1")
    for k in range(4):
        a(f"v_add_u32 v{vS+k}, {1024*k}, v{vF}")
        a(f"v_cmp_gt_u32 s[{sMk+2*k}:{sMk+2*k+1}], s{sN}, v{vS+k}")
        a(f"v_min_u32 v{vS+k}, s{sT0}, v{vS+k}")
        a(f"v_lshlrev_b32 v{vPos+k}, 2, v{vS+k}")
    a(f"s_cmp_eq_u32 s{sN}, 0")
    a("s_cbranch_scc1 Lk2_empty")
    a("Lk2_nonempty:")
    a("s_waitcnt lgkmcnt(0)")
    a("s_barrier")
    fst("A")
    for k in KORD:
        a(f"ds_read_b32 v{vG+k}, v{vPos+k} offset:{EA0}")
    def skip3(tag):
        a(f"s_cmp_eq_u64 s[{sMk+6}:{sMk+7}], 0")
        a(f"s_cbranch_scc1 Lk2_s3{tag}")
    tagn = [0]
    def recs(fn):
        for k in range(3): fn(k)
        if OPT["sk3"]:
            tagn[0] += 1
            skip3(f"r{tagn[0]}")
        fn(3)
        if OPT["sk3"]: a(f"Lk2_s3r{tagn[0]}:")
    for i, k in enumerate(KORD):
        a(f"s_waitcnt lgkmcnt({3-i})")
        a(f"v_add_u32 v{vG+k}, v{vG+k}, v{vS+k}")
        if OPT["safe"]: a(f"v_min_u32 v{vG+k}, {NE-1}, v{vG+k}")
        a(f"v_mul_u32_u24 v{vPos+k}, 12, v{vG+k}")
        if k == 3: skip3("a")
        a(f"global_load_dwordx3 v[{vKS+4*k}:{vKS+2+4*k}], v{vPos+k}, s[{sKS}:{sKS+1}]{fl(OPT['ksld'])}")
        if k == 3: a("Lk2_s3a:")
    for k in range(4):
        a(f"v_lshlrev_b32 v{vG+k}, 5, v{vG+k}")
    a("s_barrier")
    def eadma(n):
        k, h = n // 2, n % 2
        a(f"s_add_u32 m0, s{sEm}, {k*32768 + h*1024}")
        a(f"v_add_u32_dpp v{vAdr}, v{vG+k}, v{vS16} quad_perm:[{2*h},{2*h},{2*h+1},{2*h+1}] {DPPM}")
        a(f"global_load_lds_dwordx4 v{vAdr}, s[{sEA}:{sEA+1}]{fl(OPT['eald'])}")
    sched = [int(c) for c in str(OPT["easched"]).lstrip("s")]
    sched += [0]*(10-len(sched))
    assert sum(sched) == 6
    nxt = [0]
    def ea_stage(i):
        for _ in range(sched[i]):
            eadma(nxt[0]); nxt[0] += 1
    ea_stage(0)
    fst(2)
    a(f"s_cmp_ge_u32 s{sWave}, 2")
    a("s_cbranch_scc1 Lk2_nort")
    a("v_mov_b32 v76, v0")
    a("v_lshlrev_b32 v77, 2, v0")
    a(f"v_subrev_u32 v78, {BAND}, v76")
    a(f"v_cmp_le_u32 vcc, {BAND+14}, v76")
    a("v_cmp_gt_u32 s[58:59], 14, v78")
    a("v_subrev_u32 v79, 14, v76")
    a("v_lshrrev_b32 v80, 1, v78")
    a("v_cndmask_b32 v76, v76, v79, vcc")
    a("v_mul_u32_u24 v79, 147, v76")
    a("v_lshrrev_b32 v79, 11, v79")
    a("v_mad_i32_i24 v76, v79, -14, v76")
    a("v_and_b32 v82, 1, v79")
    a("v_cmp_eq_u32 vcc, 1, v82")
    a("v_sub_u32 v82, 13, v76")
    a("v_xor_b32 v78, v78, v80")
    a("v_and_or_b32 v78, v78, 1, 14")
    a("v_cndmask_b32 v76, v76, v82, vcc")
    a("v_cndmask_b32 v79, v79, v80, s[58:59]")
    a("v_cndmask_b32 v76, v76, v78, s[58:59]")
    a(f"v_mul_u32_u24 v78, {REG + (32 << 16)}, v76")
    a("v_lshl_or_b32 v78, v79, 2, v78")
    a("v_and_b32 v82, 1, v79")
    a("v_lshl_add_u32 v78, v82, 20, v78")
    a("v_lshrrev_b32 v79, 1, v79")
    a("v_lshl_add_u32 v78, v79, 18, v78")
    a(f"ds_write_b32 v77, v78 offset:{RT}")
    a("Lk2_nort:")
    a("v_lshrrev_b32 v76, 3, v0")
    a("v_lshlrev_b32 v15, 2, v76")
    a("v_and_b32 v16, 7, v0")
    a("v_lshlrev_b32 v16, 6, v16")
    a("v_mov_b32 v83, 0x80")
    a(f"s_waitcnt vmcnt({sched[0]})")
    fst(3)
    for k in range(4):
        a(f"v_and_b32 v{vKS+3+4*k}, 0x1fc, v{vKS+4*k}")
    a(f"s_cmp_eq_u32 s{sFirst}, 0")
    a("s_cbranch_scc1 Lk2_latermap")
    a(f"s_mov_b32 s{sFirst}, 0")
    def f(k):
        a(f"s_mov_b64 exec, s[{sMk+2*k}:{sMk+2*k+1}]")
        a(f"ds_add_u32 v{vKS+3+4*k}, v83 offset:{DEG}")
    recs(f)
    a("s_mov_b64 exec, -1")
    n1 = nxt[0]
    ea_stage(1)
    for i in range(0 if OPT["zearly"] else 16):
        a(f"v_mov_b32 v{ACC+i}, 0")
    a("s_waitcnt lgkmcnt(0)")
    a("s_barrier")
    fst("B1")
    a(f"s_cmp_ge_u32 s{sWave}, 13")
    a("s_cbranch_scc1 Lk2_norank")
    a(f"ds_read_b32 v77, v15 offset:{DEG}")
    for i in range(4):
        a(f"ds_read_b128 v[{52+4*i}:{55+4*i}], v16 offset:{DEG+16*i}")
    a("v_mov_b32 v78, 0")
    a(f"v_cmp_gt_u32 vcc, {NPB}, v76")
    a("v_lshlrev_b32 v76, 9, v76")
    for i in range(16):
        if i % 4 == 0: a(f"s_waitcnt lgkmcnt({3-i//4})")
        a(f"v_sub_u32 v{52+i}, v77, v{52+i}")
        a(f"v_alignbit_b32 v78, v78, v{52+i}, 31")
    a("v_bcnt_u32_b32 v78, v78, 0")
    a("v_lshlrev_b32 v78, 2, v78")
    for d in ("quad_perm:[1,0,3,2]", "quad_perm:[2,3,0,1]", "row_half_mirror"):
        nop(2)
        a(f"v_add_u32_dpp v78, v78, v78 {d} {DPPM}")
    a(f"ds_read_b32 v78, v78 offset:{RT}")
    a("s_mov_b64 exec, vcc")
    a("s_waitcnt lgkmcnt(0)")
    a("v_lshrrev_b32 v79, 16, v78")
    a("v_and_b32 v78, 0xffff, v78")
    a(f"ds_write_b32 v79, v76 offset:{INVM}")
    a(f"ds_write_b32 v15, v78 offset:{MAP}")
    a("s_mov_b64 exec, -1")
    a("Lk2_norank:")
    ea_stage(2)
    later = list(range(n1, nxt[0]))
    for i in range(16, 16 if OPT["zearly"] else 32):
        a(f"v_mov_b32 v{ACC+i}, 0")
    a("s_waitcnt lgkmcnt(0)")
    a("s_barrier")
    fst("B2")
    a("Lk2_havemap:")
    if OPT["clate"] == 1: consts()
    def f(k):
        a(f"ds_read_b32 v{76+k}, v{vKS+3+4*k} offset:{MAP}")
        a(f"v_lshrrev_b32 v{52+k}, {17+PH-2}, v{vKS+4*k}")
        a(f"v_lshlrev_b32 v{vS+k}, 5, v{vS+k}")
    recs(f)
    a("v_mov_b32 v83, 12")
    a(f"s_mov_b32 s{sT0}, {0x3c if PH == 11 else 0x7c}")
    a(f"s_mov_b32 s{sT1}, 0xfffe0000")
    a("s_waitcnt lgkmcnt(0)")
    def f(k):
        a(f"s_mov_b64 exec, s[{sMk+2*k}:{sMk+2*k+1}]")
        a(f"v_bfi_b32 v{vKS+3+4*k}, s{sT0}, v{52+k}, v{76+k}")
        a(f"ds_add_rtn_u32 v{vPos+k}, v{vKS+3+4*k}, v83 offset:{HISTO}")
        a(f"v_bfi_b32 v{vS+k}, 28, v{76+k}, v{vS+k}")
        a(f"v_bfi_b32 v{vKS+4*k}, s{sT1}, v{vKS+4*k}, v{vS+k}")
    recs(f)
    a("s_mov_b64 exec, -1")
    ea_stage(3)
    def scan_own():
        a(f"v_and_b32 v14, 31, v{vLane}")
        a(f"v_lshl_add_u32 v14, v14, 2, s{sReg}")
        a(f"v_mad_u32_u24 v17, v{vLane}, 12, s{sReg}")
        a("s_waitcnt lgkmcnt(0)")
        a("s_barrier")
        fst("B3")
        a(f"ds_read_b32 v52, v14 offset:{HISTO}")
        fill = [f"v_and_b32 v12, 3, v{vLane}", f"v_bfe_u32 v13, v{vLane}, 2, 1", "v_lshl_add_u32 v12, v13, 3, v12",
                f"v_bfe_u32 v13, v{vLane}, 3, 1", "v_lshl_add_u32 v12, v13, 2, v12", f"v_bfe_u32 v13, v{vLane}, 4, 1",
                "v_lshl_add_u32 v12, v12, 1, v13", f"v_mad_u32_u24 v12, v12, 12, s{sReg}",
                f"v_lshrrev_b32 v13, 2, v{vLane}", f"v_bfe_u32 v15, v{vLane}, 1, 1", "v_lshl_add_u32 v13, v15, 4, v13",
                f"v_mad_u32_u24 v13, v13, 12, s{sReg}", f"v_lshrrev_b32 v15, 2, v{vS16}", "v_add3_u32 v13, v13, v15, 4"]
        for _ in range(6): a(fill.pop(0))
        a("v_mov_b32 v83, 28")
        a("v_mov_b32 v54, 0")
        a("s_waitcnt lgkmcnt(0)")
        a(f"v_sub_u32 v53, s{sReg}, v52")
        for d, rm in (("row_shr:1","0xf"), ("row_shr:2","0xf"), ("row_shr:4","0xf"), ("row_shr:8","0xf"), ("row_bcast:15","0xa")):
            a(f"v_add_u32_dpp v52, v52, v52 {d} row_mask:{rm} bank_mask:0xf")
            if fill: a(fill.pop(0)); a(fill.pop(0))
        a("v_add_u32 v53, v53, v52")
        a(f"v_readlane_b32 s{sCnt}, v52, 31")
        a(f"ds_write_b32 v14, v53 offset:{HISTO}")
        a("s_mov_b64 exec, 63")
        a(f"s_cmp_gt_u32 s{sCnt}, {NB*32*12}")
        a("s_cbranch_scc1 Lk2_over")
        a(f"v_add_u32 v17, s{sCnt}, v17")
        a("ds_write_b32 v17, v83")
        a("Lk2_overb:")
        a("s_mov_b64 exec, -1")
        a(f"s_add_u32 s{sR}, s{sCnt}, 12")
        a(f"s_mul_i32 s{sR}, s{sR}, 2731")
        a(f"s_lshr_b32 s{sCnt}, s{sR}, 16")
        a(f"s_min_u32 s{sTail}, s{sCnt}, 3")
        a(f"s_sub_u32 s{sR}, s{sCnt}, s{sTail}")
        a("s_waitcnt lgkmcnt(0)")
        a("s_barrier")
        a(f"ds_read_b32 v54, v54 offset:{MAP+504}")
        recs(lambda k: a(f"ds_read_b32 v{vKS+3+4*k}, v{vKS+3+4*k} offset:{HISTO}"))
        ea_stage(9)
        a("s_waitcnt lgkmcnt(0)")
        a("v_cmp_ne_u32 vcc, 0, v54")
        a("s_cbranch_vccnz Lk2_slow")
    def scan_all():
        a(f"v_lshrrev_b32 v80, 2, v{vLane}")
        a(f"v_mul_u32_u24 v80, {REG}, v80")
        a(f"v_and_b32 v14, 3, v{vLane}")
        a(f"v_lshl_add_u32 v14, v14, {4 if NPL == 4 else 5}, v80")
        a(f"v_bfe_i32 v81, v{vLane}, 0, 1")
        a(f"v_bfe_i32 v82, v{vLane}, 1, 1")
        a(f"s_lshl_b32 s{sT1}, s{sWave}, 2")
        a("s_waitcnt lgkmcnt(0)")
        a("s_barrier")
        fst("B3")
        for i in range(NPL//4):
            a(f"ds_read_b128 v[{52+4*i}:{55+4*i}], v14 offset:{HISTO+16*i}")
        a(f"v_and_b32 v12, 3, v{vLane}")
        a(f"v_bfe_u32 v13, v{vLane}, 2, 1")
        a("v_lshl_add_u32 v12, v13, 3, v12")
        a(f"v_bfe_u32 v13, v{vLane}, 3, 1")
        a("v_lshl_add_u32 v12, v13, 2, v12")
        a(f"v_bfe_u32 v13, v{vLane}, 4, 1")
        a("v_lshl_add_u32 v12, v12, 1, v13")
        a(f"v_mad_u32_u24 v12, v12, 12, s{sReg}")
        a(f"v_mad_u32_u24 v17, v{vLane}, 12, s{sReg}")
        a("s_waitcnt lgkmcnt(0)")
        for i in range(1, NPL):
            a(f"v_add_u32 v{52+i}, v{52+i}, v{51+i}")
        tot = 51 + NPL
        a(f"v_lshrrev_b32 v13, 2, v{vLane}")
        a(f"v_bfe_u32 v15, v{vLane}, 1, 1")
        a(f"v_and_b32_dpp v76, v{tot}, v81 quad_perm:[1,0,3,2] {DPPM}")
        a(f"v_add_u32_dpp v77, v{tot}, v{tot} quad_perm:[1,0,3,2] {DPPM}")
        a("v_lshl_add_u32 v13, v15, 4, v13")
        a(f"v_mad_u32_u24 v13, v13, 12, s{sReg}")
        a(f"v_and_b32_dpp v78, v77, v82 quad_perm:[2,3,0,1] {DPPM}")
        a(f"v_add_u32_dpp v79, v77, v77 quad_perm:[2,3,0,1] {DPPM}")
        a("v_add3_u32 v60, v76, v78, v80")
        for i in range(1, NPL):
            a(f"v_add_u32 v{60+i}, v60, v{51+i}")
        for i in range(NPL//4):
            a(f"ds_write_b128 v14, v[{60+4*i}:{63+4*i}] offset:{BASEO+16*i}")
        recs(lambda k: a(f"ds_read_b32 v{vKS+3+4*k}, v{vKS+3+4*k} offset:{BASEO}"))
        a(f"v_cmp_lt_u32 vcc, {NB*32*12}, v79")
        a(f"v_readlane_b32 s{sCnt}, v79, s{sT1}")
        a(f"v_lshrrev_b32 v15, 2, v{vS16}")
        a("v_add3_u32 v13, v13, v15, 4")
        a("s_cbranch_vccnz Lk2_slow")
        a(f"v_add_u32 v17, s{sCnt}, v17")
        a("v_mov_b32 v83, 28")
        a(f"s_add_u32 s{sR}, s{sCnt}, 12")
        a(f"s_mul_i32 s{sR}, s{sR}, 2731")
        a(f"s_lshr_b32 s{sCnt}, s{sR}, 16")
        a(f"s_min_u32 s{sTail}, s{sCnt}, 3")
        a(f"s_sub_u32 s{sR}, s{sCnt}, s{sTail}")
        a("s_mov_b64 exec, 63")
        a("ds_write_b32 v17, v83")
        a("s_waitcnt lgkmcnt(1)")
    scan_own() if OPT["own"] else scan_all()
    def f(k):
        a(f"s_mov_b64 exec, s[{sMk+2*k}:{sMk+2*k+1}]")
        a(f"v_add_u32 v{vPos+k}, v{vPos+k}, v{vKS+3+4*k}")
        a(f"ds_write_b32 v{vPos+k}, v{vKS+4*k}")
        a(f"ds_write2_b32 v{vPos+k}, v{vKS+1+4*k}, v{vKS+2+4*k} offset0:1 offset1:2")
    recs(f)
    a("s_mov_b64 exec, -1")
    ea_stage(4)
    if OPT["clate"] == 2:
        a(f"v_lshlrev_b32 v81, 4, v{vLane}")
        consts()
    skip3("b")
    eadma(6); eadma(7)
    a("Lk2_s3b:")
    a(f"v_bfe_u32 v14, v{vLane}, 2, 2")
    a(f"v_and_b32 v15, 3, v{vLane}")
    a(f"v_lshrrev_b32 v16, 5, v{vLane}")
    a(f"v_lshlrev_b32 v{vLs}, 7, v14")
    a(f"v_lshl_add_u32 v{vLs}, v15, 4, v{vLs}")
    a(f"v_lshrrev_b32 v{vT[0]}, 1, v{vLs}")
    a(f"v_lshl_add_u32 v{vLs}, v16, 6, v{vLs}")
    a(f"v_lshl_add_u32 v{vT[0]}, v16, 9, v{vT[0]}")
    a(f"v_bfe_u32 v14, v{vLane}, 4, 1")
    a(f"v_lshl_add_u32 v{vT[0]}, v14, 5, v{vT[0]}")
    a(f"v_add_u32 v{vT[0]}, s{sReg}, v{vT[0]}")
    a("s_waitcnt lgkmcnt(0)")
    a("s_barrier")
    fst(4)
    for b in range(NB):
        a(f"ds_read_b32 v{vPr+b}, v12 offset:{b*384}")
    for b in range(NB):
        a(f"ds_read_b32 v{vSr+b}, v13 offset:{b*384}")
    ea_stage(5)
    a(f"v_add_u32 v{vT[1]}, 1024, v{vT[0]}")
    a(f"v_add_u32 v{vT[2]}, 2048, v{vT[0]}")
    a(f"v_mov_b32 v{vEm}, 0x1ffe0")
    a(f"s_mov_b32 s{sM0[0]}, s{sReg}")
    a(f"s_add_u32 s{sM0[1]}, s{sReg}, 1024")
    a(f"s_add_u32 s{sM0[2]}, s{sReg}, 2048")
    for i in range(8):
        a(f"v_mov_b32 v{vEaA+i}, 0")
    a(f"s_mov_b32 s{sBlk}, 0x1000")
    a(f"s_mov_b32 s{sGi}, 0x1000")
    a("s_waitcnt lgkmcnt(0)")
    def adr(n):
        a(f"v_add_u32_dpp v{vAdr}, v{vK}, v{vLs} row_newbcast:{LN(n)} {DPPM}")
    DMA = f"global_load_lds_dwordx4 v{vAdr}, s[{sX}:{sX+1}]{fl(OPT['xfl'])}"
    def rowoff():
        a(f"v_lshrrev_b32 v{vK}, 8, v{vP}")
        a(f"v_and_b32 v{vK}, 0xfffe00, v{vK}")
        if OPT["safe"]: a(f"v_min_u32 v{vK}, {(NN-1)*512}, v{vK}")
    def idx_pack_a():
        a(f"v_and_or_b32 v{vI}, v{vP}, 28, s{sC0}")
        a(f"v_lshlrev_b32 v{vI}, v{vS16}, v{vI}")
    def idx_pack_b():
        a(f"v_or_b32_dpp v{vI}, v{vI}, v{vI} quad_perm:[1,0,3,2] {DPPM}")
    def idx_read(p):
        a(f"v_readlane_b32 s{sI}, v{vI}, {LN(p)}")
        a(f"v_readlane_b32 s{sI+1}, v{vI}, {16+LN(p)}")
    def ea_adr(g, half):
        lo, hi = ("quad_perm:[0,1,2,3]", "row_shr:4") if g == 0 else ("row_shl:4", "quad_perm:[0,1,2,3]")
        if half == 0: a(f"v_and_b32_dpp v{vE}, v{vP}, v{vEm} {lo} row_mask:0x3 bank_mask:0xf")
        else:         a(f"v_and_b32_dpp v{vE}, v{vP}, v{vEm} {hi} row_mask:0xc bank_mask:0xf")
    def abuild(src, g, dst):
        q0, q1 = 2*g, 2*g+1
        a(f"v_mov_b32_dpp v{vD+4}, v{src} quad_perm:[{q0},{q0},{q0},{q0}] {DPPM}")
        a(f"v_mov_b32_dpp v{vD+5}, v{src} quad_perm:[{q1},{q1},{q1},{q1}] {DPPM}")
        for u in range(4):
            a(f"v_dot2_f32_bf16 v{vD+u}, v{vD+4}, v{vCg+u}, 0")
        for u in range(4):
            a(f"v_dot2_f32_bf16 v{vD+u}, v{vD+5}, v{vCg+4+u}, v{vD+u}")
        nop(1)
        a(f"v_cvt_pk_bf16_f32 v{dst}, v{vD}, v{vD+1}")
        nop(1)
        a(f"v_cvt_pk_bf16_f32 v{dst+1}, v{vD+2}, v{vD+3}")
    a(f"v_mov_b32 v{vP}, v{vPr}")
    rowoff()
    idx_pack_a()
    def xfirst():
        for p in range(3):
            a(f"s_mov_b32 m0, s{sM0[p]}")
            adr(p)
            a(DMA)
    if OPT["xg"] < 0: xfirst()
    else: nop(2)
    idx_pack_b()
    ea_adr(0, 0)
    nop(1)
    idx_read(0)
    ea_adr(0, 1)
    fst(5)
    if APRE:
        for gi in range(2*NB):
            if gi >= 2*NB-2:
                a(f"s_cmp_le_u32 s{sCnt}, {8*gi}")
                a("s_cbranch_scc1 Lk2_abuilt")
            if gi in (0, 4, 8): ea_stage(6 + gi//4)
            if gi == OPT["xg"]: xfirst()
            abuild(vSr + gi//2, gi % 2, vAr + 2*gi)
        a("Lk2_abuilt:")
    else:
        for i in (6, 7, 8): ea_stage(i)
        a(f"v_mov_b32 v{vSH}, v{vSr}")
    adr(3)
    a("s_waitcnt vmcnt(0)" if any(sched[6+i] and 4*i > OPT["xg"] for i in range(3)) else "s_waitcnt vmcnt(3)")
    a("s_barrier")
    fst(6)
    if OPT["stamps"]: a("s_memtime s[94:95]")
    def ea_reads():
        a(f"s_mov_b64 exec, s[{sEx}:{sEx+1}]")
        a(f"ds_read_b128 v[{vEaA}:{vEaA+3}], v{vE} offset:{EA0}")
        a(f"ds_read_b128 v[{vEaA+4}:{vEaA+7}], v{vE} offset:{EA0+16}")
        a("s_mov_b64 exec, -1")
    def tr(sl):
        a(f"ds_read_b64_tr_b16 v[{vB}:{vB+1}], v{vT[sl]}")
        a(f"ds_read_b64_tr_b16 v[{vB+2}:{vB+3}], v{vT[sl]} offset:256")
    def afetch():
        a(f"s_mov_b32 m0, s{sGi}")
        a(f"v_mov_b32 v{vA}, v{vAr}")
        a(f"v_mov_b32 v{vA+1}, v{vAr+1}")
        a(f"s_add_u32 s{sGi}, s{sGi}, 2")
    if OPT["lprio"]: a("s_setprio 1")
    ea_reads()
    a(f"s_set_gpr_idx_on s{sM0[0]}, 0")
    if APRE: afetch()
    a(f"s_mov_b32 m0, s{sM0[0]}")
    a("s_waitcnt vmcnt(2)")
    tr(0)
    a(".p2align 6")
    a("Lk2_blk:")
    ORD = OPT["ord"]
    for p in range(16):
        g, pp = p // 8, p % 8
        def nexttr():
            a("s_waitcnt vmcnt(2)")
            tr((p+1) % 3)
            if pp == 7: ea_reads()
        a(f"s_sub_u32 s{sR}, s{sR}, 1")
        a("s_waitcnt lgkmcnt(0)")
        a(f"s_cbranch_scc1 Lk2_tail{p}")
        a("s_nop 0" if OPT["nodma"] else DMA)
        a(f"Lk2_back{p}:")
        if pp == 0:
            a(f"v_mfma_f32_32x32x16_bf16 v[{vRw}:{vRw+15}], v[{vEaA}:{vEaA+3}], v[{vWr}:{vWr+3}], 0")
            a(f"v_mfma_f32_32x32x16_bf16 v[{vRw}:{vRw+15}], v[{vEaA+4}:{vEaA+7}], v[{vWr+4}:{vWr+7}], v[{vRw}:{vRw+15}]")
            if not APRE:
                abuild(vSH, g, vA)
                nop(2)
        for s in range(2):
            a(f"v_mfma_f32_4x4x4_16b_bf16 v[{vD+4*s}:{vD+4*s+3}], v[{vA}:{vA+1}], v[{vB+2*s}:{vB+2*s+1}], 0 cbsz:4 abid:{2*pp+s}")
        gap = 9 if (pp == 0 and APRE) else 3
        if ORD == 1:
            nexttr(); gap -= 3
        if gap > 0: nop(gap)
        for s in range(2):
            a(f"s_lshr_b32 m0, s{sI+s}, 16" if p % 2 else f"s_mov_b32 m0, s{sI+s}")
            if OPT["fma"] == "pk":
                sel = "op_sel_hi:[1,0,1]" if pp % 2 == 0 else "op_sel:[0,1,0] op_sel_hi:[1,1,1]"
                r = vRw + 8*s + (pp & ~1)
                for h in range(2):
                    a(f"v_pk_fma_f32 v[{ACC+2*h}:{ACC+2*h+1}], v[{vD+4*s+2*h}:{vD+4*s+2*h+1}], v[{r}:{r+1}], v[{ACC+2*h}:{ACC+2*h+1}] {sel}")
            else:
                for w in range(4):
                    a(f"v_fmac_f32 v{ACC+w}, v{vD+4*s+w}, v{vRw+8*s+pp}")
        if ORD == 2: nexttr()
        if p == 12:
            a(f"s_add_u32 s{sBlk}, s{sBlk}, 1")
            a(f"s_mov_b32 m0, s{sBlk}")
            a(f"v_mov_b32 v{vP}, v{vPr}")
            if not APRE: a(f"v_mov_b32 v{vSH}, v{vSr}")
        if pp == 7 and APRE: afetch()
        a(f"s_mov_b32 m0, s{sM0[(p+1)%3]}")
        if p == 12:
            rowoff()
            nop(2)
        if p == 14: idx_pack_a()
        if pp == 5: ea_adr(1-g, 0)
        if pp == 6: ea_adr(1-g, 1)
        adr(p+4)
        if p == 14: idx_pack_b()
        if p % 2: idx_read((p+1) % 16)
        if pp == 7 and OPT["spf"]:
            a(f"s_sub_u32 s{sPf}, s{sPf}, 1")
            a(f"s_cbranch_scc1 Lk2_spf{g}")
            a(f"Lk2_spfb{g}:")
    a(f"v_swap_b32 v{vT[0]}, v{vT[1]}")
    a(f"v_swap_b32 v{vT[1]}, v{vT[2]}")
    a(f"s_mov_b32 s{sT0}, s{sM0[0]}\ns_mov_b32 s{sM0[0]}, s{sM0[1]}\ns_mov_b32 s{sM0[1]}, s{sM0[2]}\ns_mov_b32 s{sM0[2]}, s{sT0}")
    a("s_branch Lk2_blk")
    a("Lk2_loopend:")
    for p in range(16):
        a(f"Lk2_tail{p}:")
        a(f"s_mov_b32 s{sR}, 0")
        a(f"s_sub_u32 s{sTail}, s{sTail}, 1")
        a("s_cbranch_scc1 Lk2_exit")
        a("s_waitcnt vmcnt(0)")
        a(f"s_branch Lk2_back{p}")
    if OPT["spf"]:
        for g in range(2):
            a(f"Lk2_spf{g}:")
            for i in range(25 - OPT["pfn"]):
                a(f"s_load_dwordx2 s[62:63], s[{sPx}:{sPx+1}], {i*128+60}")
            a(f"s_branch Lk2_spfb{g}")
    a("Lk2_expmore:")
    a("s_waitcnt lgkmcnt(0)")
    for j in range(4):
        a(f"v_add_u32 v{64+j}, 128, v{64+j}")
    a("s_branch Lk2_exp")
    a("Lk2_empty:")
    a("v_mov_b32 v60, 0")
    a(f"ds_write_b32 v60, v60 offset:{EA0}")
    a("s_branch Lk2_nonempty")
    a("Lk2_clip:")
    a(f"s_add_u32 s{sT0}, s{sBase}, s{sN}")
    for j in range(4):
        a(f"v_add_u32 v76, v{64+j}, v{56+j}")
        a(f"v_min_u32 v76, s{sT0}, v76")
        a(f"v_max_u32 v77, s{sBase}, v{64+j}")
        a(f"v_sub_u32 v76, v76, v77")
        a(f"v_max_i32 v{56+j}, 0, v76")
        a(f"v_sub_u32 v76, v77, v{64+j}")
        a(f"v_add_u32 v{60+j}, v{60+j}, v76")
        a(f"v_subrev_u32 v{64+j}, s{sBase}, v77")
    a("v_max_u32 v80, v56, v57")
    a("v_max3_u32 v80, v58, v59, v80")
    a("s_branch Lk2_noclip")
    a("Lk2_latermap:")
    for n in later: eadma(n)
    a("s_branch Lk2_havemap")
    if OPT["own"]:
        a("Lk2_over:")
        a(f"ds_write_b32 v54, v83 offset:{MAP+504}")
        a("s_branch Lk2_overb")
    a("Lk2_slow:")
    a(f"s_mov_b32 s{sL}, {NB*32}")
    a("Lk2_round:")
    a("s_waitcnt vmcnt(0) lgkmcnt(0)")
    a("s_barrier")
    a("v_mov_b32 v80, 0")
    a(f"ds_write_b32 v80, v80 offset:{MAP+504}")
    a(f"v_lshlrev_b32 v81, 4, v{vLane}")
    a(f"buffer_load_dwordx4 v[52:55], v81, s[{sTab}:{sTab+3}], 0 offen")
    a("s_waitcnt vmcnt(0)")
    a("s_branch Lk2_noinit")
    a("Lk2_exit:")
    a("s_set_gpr_idx_off")
    if OPT["lprio"]: a("s_setprio 0")
    fst(7)
    if OPT["stamps"]: a("s_memtime s[92:93]")
    a(f"s_add_u32 s{sBase}, s{sBase}, s{sN}")
    a(f"s_cmp_lt_u32 s{sBase}, s{sTot}")
    a("s_cbranch_scc1 Lk2_round")
    def epi1():
        a(f"v_lshlrev_b32 v16, 4, v{vLane}")
        a("s_waitcnt vmcnt(0)")
        a(f"s_cmp_ge_u32 s{sWave}, 8")
        a("s_cbranch_scc1 Lk2_now")
        a(f"s_add_u32 m0, s{sReg}, 2048")
        a(f"s_lshl_b32 s{sT0}, s{sWave}, 10")
        a(f"s_add_u32 s{sT0}, s{sT0}, 4096")
        a(f"v_add_u32 v12, s{sT0}, v16")
        a(f"global_load_lds_dwordx4 v12, s[{sC}:{sC+1}]")
        a("Lk2_now:")
        a(f"v_lshrrev_b32 v13, 5, v{vLane}")
        a(f"s_lshl_b32 s{sT1}, s{sWave}, 5")
        a(f"v_lshl_add_u32 v14, v13, 4, s{sT1}")
        a(f"ds_read_b128 v[84:87], v14 offset:{INVM}")
        a(f"v_and_b32 v15, 31, v{vLane}")
        a(f"v_mad_u32_u24 v12, v15, 56, s{sReg}")
        a(f"v_bfe_u32 v14, v{vLane}, 2, 2")
        a("v_lshl_add_u32 v13, v13, 3, v14")
        a(f"v_mad_u32_u24 v13, v13, 56, s{sReg}")
        a(f"v_bfe_u32 v14, v{vLane}, 4, 1")
        a("v_lshl_add_u32 v13, v14, 5, v13")
        a(f"v_and_b32 v14, 3, v{vLane}")
        a("v_lshl_add_u32 v13, v14, 3, v13")
        for i in range(14):
            a(f"v_cvt_pk_bf16_f32 v{68+i}, v{ACC+2*i}, v{ACC+2*i+1}")
        for h in range(2):
            a("s_mov_b32 exec_hi, 0" if h == 0 else "s_mov_b32 exec_lo, 0")
            if h: a("s_waitcnt lgkmcnt(4)")
            for i in range(7):
                a(f"ds_write_b64 v12, v[{68+2*i}:{69+2*i}] offset:{8*i}")
            a("s_mov_b64 exec, -1")
            for s in range(2):
                for m in range(2):
                    a(f"ds_read_b64_tr_b16 v[{20+8*h+4*s+2*m}:{21+8*h+4*s+2*m}], v13 offset:{(16*s+4*m)*56}")
        a(f"s_mul_i32 s{sT1}, s{sBin}, {NPB*512}")
        a(f"v_lshl_add_u32 v15, v15, 2, s{sT1}")
        for q in range(4):
            a(f"v_add_u32 v{84+q}, v{84+q}, v15")
        a("v_mov_b32 v14, 0")
        a(f"s_cmp_ge_u32 s{sWave}, 8")
        a("s_cbranch_scc1 Lk2_wpoll")
        a("v_mov_b32 v17, 1")
        a("s_waitcnt vmcnt(0) lgkmcnt(0)")
        a("s_mov_b64 exec, 1")
        a(f"ds_add_u32 v14, v17 offset:{MAP+508}")
        a("s_mov_b64 exec, -1")
        a("Lk2_wpoll:")
        a("s_waitcnt lgkmcnt(0)")
        a(f"ds_read_b32 v17, v14 offset:{MAP+508}")
        for i in range(8):
            a(f"ds_read_b128 v[{36+4*i}:{39+4*i}], v16 offset:{REG*i+2048}")
        a("s_waitcnt lgkmcnt(8)")
        a(f"v_readfirstlane_b32 s{sT0}, v17")
        a(f"s_cmp_eq_u32 s{sT0}, 8")
        a("s_cbranch_scc1 Lk2_wok")
        a("Lk2_wwait:")
        a("s_sleep 2")
        a(f"ds_read_b32 v17, v14 offset:{MAP+508}")
        a("s_waitcnt lgkmcnt(0)")
        a(f"v_readfirstlane_b32 s{sT0}, v17")
        a(f"s_cmp_eq_u32 s{sT0}, 8")
        a("s_cbranch_scc0 Lk2_wwait")
        a("s_branch Lk2_wpoll")
        a("Lk2_wok:")
        fst(8)
        for s in range(4):
            a(f"s_waitcnt lgkmcnt({6-2*s})")
            for t in range(2):
                c = "0" if s == 0 else f"v[{ACC+16*t}:{ACC+16*t+15}]"
                a(f"v_mfma_f32_32x32x16_bf16 v[{ACC+16*t}:{ACC+16*t+15}], v[{20+4*s}:{23+4*s}], v[{36+8*s+4*t}:{39+8*s+4*t}], {c}")
    def epi0():
        a(f"v_lshlrev_b32 v16, 4, v{vLane}")
        a(f"s_cmp_ge_u32 s{sWave}, 4")
        a("s_cbranch_scc1 Lk2_now")
        a("s_waitcnt vmcnt(0)")
        a(f"s_mov_b32 m0, s{sReg}")
        a(f"s_lshl_b32 s{sT0}, s{sWave}, 11")
        a(f"s_add_u32 s{sT0}, s{sT0}, 4096")
        a(f"v_add_u32 v12, s{sT0}, v16")
        a(f"global_load_lds_dwordx4 v12, s[{sC}:{sC+1}]")
        a(f"global_load_lds_dwordx4 v12, s[{sC}:{sC+1}] offset:1024")
        a("Lk2_now:")
        a(f"v_lshrrev_b32 v13, 5, v{vLane}")
        a(f"s_lshl_b32 s{sT1}, s{sWave}, 5")
        a(f"v_lshl_add_u32 v14, v13, 4, s{sT1}")
        a(f"ds_read_b128 v[84:87], v14 offset:{INVM}")
        for i in range(14):
            a(f"v_cvt_pk_bf16_f32 v{68+i}, v{ACC+2*i}, v{ACC+2*i+1}")
        a(f"s_mul_i32 s{sT0}, s{sWave}, 4608")
        a(f"s_add_u32 s{sT0}, s{sT0}, {EA0}")
        a(f"v_mul_u32_u24 v12, 72, v{vLane}")
        a(f"v_add_u32 v12, s{sT0}, v12")
        a(f"v_bfe_u32 v14, v{vLane}, 2, 2")
        a("v_lshl_add_u32 v13, v13, 3, v14")
        a("v_mul_u32_u24 v13, 72, v13")
        a(f"v_bfe_u32 v14, v{vLane}, 4, 1")
        a("v_lshl_add_u32 v13, v14, 5, v13")
        a(f"v_and_b32 v14, 3, v{vLane}")
        a("v_lshl_add_u32 v13, v14, 3, v13")
        a(f"v_add_u32 v13, s{sT0}, v13")
        a(f"s_mul_i32 s{sT1}, s{sBin}, {NPB*512}")
        a(f"v_and_b32 v15, 31, v{vLane}")
        a(f"v_lshl_add_u32 v15, v15, 2, s{sT1}")
        a("s_waitcnt vmcnt(0) lgkmcnt(0)")
        for q in range(4):
            a(f"v_add_u32 v{84+q}, v{84+q}, v15")
        a("s_barrier")
        fst(8)
        for i in range(7):
            a(f"ds_write_b64 v12, v[{68+2*i}:{69+2*i}] offset:{8*i}")
        for s in range(4):
            if s == 2: a("s_waitcnt lgkmcnt(7)")
            for m in range(2):
                a(f"ds_read_b64_tr_b16 v[{ACC-76+4*s+2*m}:{ACC-75+4*s+2*m}], v13 offset:{(16*s+4*m)*72}")
            for t in range(2):
                a(f"ds_read_b128 v[{36+8*s+4*t}:{39+8*s+4*t}], v16 offset:{REG*s+1024*t}")
        for s in range(4):
            a(f"s_waitcnt lgkmcnt({12-4*s})")
            for t in range(2):
                c = "0" if s == 0 else f"v[{ACC+16*t}:{ACC+16*t+15}]"
                a(f"v_mfma_f32_32x32x16_bf16 v[{ACC+16*t}:{ACC+16*t+15}], v[{20+4*s}:{23+4*s}], v[{36+8*s+4*t}:{39+8*s+4*t}], {c}")
    epi1() if OPT["epi"] else epi0()
    nop(12)
    for r in range(16):
        q, t = r // 4, r % 4
        if r == 12:
            a(f"s_cmp_lt_u32 s{sWave}, 14")
            a("s_cbranch_scc1 Lk2_fin")
        a(f"v_cvt_pk_bf16_f32 v{36+r}, v{ACC+r}, v{ACC+16+r}")
        a(f"buffer_store_dword v{36+r}, v{84+q}, s[{sOsrd}:{sOsrd+3}], 0 offen offset:{t*128}{fl(OPT['outst'])}")
    a("Lk2_fin:")
    if OPT["xcc"]:
        a("s_cmp_ge_u32 s2, 16\ns_cbranch_scc1 Lk2_end")
        a("s_load_dwordx2 s[62:63], s[0:1], 72")
        a("s_getreg_b32 s40, hwreg(20, 0, 4)")
        a(f"s_lshl_b32 s41, s2, 2\ns_add_u32 s42, s41, {WS_STAMP}")
        a("v_mov_b32 v1, s42")
        a(f"global_load_dword v2, v1, s[{sWs}:{sWs+1}]")
        a("v_mov_b32 v1, s41\ns_mul_i32 s40, s40, 10\ns_add_u32 s40, s40, 100")
        a("s_waitcnt vmcnt(0) lgkmcnt(0)")
        a("v_add_u32 v2, s40, v2")
        a("global_store_dword v1, v2, s[62:63]")
    if OPT["stamps"]:
        fst(9)
        a("s_waitcnt vmcnt(0)")
        stamp(10)
        a("s_waitcnt lgkmcnt(0)")
        a("s_sub_u32 s86, s92, s94")
        a("s_mul_hi_u32 s86, s86, 429496730")
        a("s_add_u32 s86, s86, s84")
        stamp_out(1, 12, sWs, sWave)
    a("Lk2_end:")
    a("s_endpgm")

hdr = open("standalone__tensor_product_equiv_mace__graph.s.ref").read().split("; Override launch")[0]
out = hdr
if OPT["fuse"] == 1:
    out += f"; @launch grid=(256,1,1) block=(1024,1,1) lds={K2_LDS}\n"
elif OPT["fuse"] == 2:
    out += f"; @launch kernel={KN} grid=(256,1,1) block=(1024,1,1) lds={K2_LDS}\n"
else:
    out += f"; @launch kernel=mace_bin_kernel grid=({NCH+1},1,1) block=(640,1,1) lds={K1_LDS}\n"
    out += f"; @launch kernel=mace_main_kernel grid=(256,1,1) block=(1024,1,1) lds={K2_LDS}\n"
out += '.amdgcn_target "amdgcn-amd-amdhsa--gfx950"\n.text\n'
k1(); k2()
if OPT["drop"]:
    i0, i1 = L.index("Lk2_blk:"), L.index("Lk2_loopend:")
    pats = {"tr":"ds_read_b64_tr", "pk":"v_pk_fma", "tp":"v_mfma_f32_4x4x4", "rw":"v_mfma_f32_32x32", "dot":"v_dot2", "rl":"v_readlane", "ea":"ds_read_b128", "fm":"v_fmac", "m0":"m0, s4", "lgkm":"lgkmcnt"}
    for t in OPT["drop"].split(","):
        L[i0:i1] = [("s_nop 0" if False else None) if pats[t] in l else l for l in L[i0:i1]]
        L[:] = [l for l in L if l is not None]
        i1 = L.index("Lk2_loopend:")
out += "\n".join(("    " + l if l and not l.endswith(":") and not l.startswith(".") else l) for l in L) + "\n"
if OPT["fuse"]: out += '.section .rodata,"a"\n.p2align 6\n' + kd(KN, 128)
else: out += '.section .rodata,"a"\n.p2align 6\n' + kd("mace_bin_kernel", 80) + ".p2align 6\n" + kd("mace_main_kernel", 128)
open(sys.argv[1], "w").write(out)
```

```python
import sys
OPT = dict(nocnt=0, csh=3, nbr=1, itn=1, tb=1, pn=10, slim=3, klim=0, isleep=0, gate=0, gn=0, k1n=10, cpos=4, kwait=1, gpos="B1", easched="B1:2,S2:1,S3:1,B4:1,S4:1", pfn=10, pfpos="B1", apre=0, ph=10, lprio=1, mid=1, ord=5, fsh=4, tsleep=16, csleep=4, ksleep=4,
           psleep=0, gsleep=2, spf=1, drop="", nodma=0, spin=-1, spin0=0, dbgwg=-1, safe=0, stamps=0, ntl=1, nts="sc1", hld="sc1", outst="sc1", lst=0)
for a in sys.argv[2:]:
    k, v = a.split("=")
    assert k in OPT, k
    OPT[k] = int(v) if v.lstrip("-").isdigit() else v
for k in ("nts", "hld", "outst"):
    OPT[k] = "" if OPT[k] in (0, "") else " " + str(OPT[k]).replace("+", " ")

KN = "standalone__tensor_product_equiv_mace__graph_kernel"
NN, NE = 25000, 800000
CH, NCH = 3200, 250
NPB = 98
MAGIC, MSH = 42800, 22
assert all((d*MAGIC) >> MSH == d//NPB for d in range(NN))
SPIN = 400000
WS_TAB, WS_CONST, WS_FLAG, WS_KS, WS_EA, WS_STAMP = 0, 0x40000, 0x50000, 0x100000, 0xB00000, 128 << 20
CAP, NB = 3552, 7
XT0 = (256-NCH)*15*OPT["itn"]*8192
XT1 = XT0 + OPT["pfn"]*512000
NSP = -(-(NN*512 - XT1) // 512000)
NT = " nt" if OPT["ntl"] else ""
NTS, HLD = OPT["nts"], OPT["hld"]
DPPM = "row_mask:0xf bank_mask:0xf"

L = []
def a(s):
    for ln in s.split("\n"):
        L.append(ln)
def nop(n):
    a(f"s_nop {n-1}")
def stamp(i):
    if OPT["stamps"]:
        a(f"s_memrealtime s[{64+2*i}:{65+2*i}]")
def stamp_out(k, n, sws, swave, tag=''):
    if not OPT["stamps"]: return
    a(f"s_cmp_lg_u32 s{swave}, {OPT['stamps']-1}")
    a(f"s_cbranch_scc1 Lnostamp{k}{tag}")
    if OPT["dbgwg"] >= 0 and k == 1:
        a(f"s_cmp_lg_u32 s2, {OPT['dbgwg']}")
        a(f"s_cbranch_scc1 Lnostamp{k}{tag}")
        a("s_waitcnt lgkmcnt(0)")
        a("s_mov_b64 exec, 1")
        a(f"v_mov_b32 v1, {WS_STAMP + OPT['dbgwg']*64}")
        a(f"global_load_dwordx4 v[4:7], v1, s[{sws}:{sws+1}] sc1")
        a(f"global_load_dword v8, v1, s[{sws}:{sws+1}] offset:16 sc1")
        a("s_waitcnt vmcnt(0)")
        j, j0 = OPT["spin"], OPT["spin0"]
        a(f"v_mov_b32 v9, v{4+j0}" if j0 < 5 else f"v_mov_b32 v9, s{64+2*(j0-5)}")
        a(f"v_sub_u32 v2, v{4+j}, v9" if j < 5 else f"v_sub_u32 v2, s{64+2*(j-5)}, v9")
        a("s_nop 1")
        a("v_readfirstlane_b32 s60, v2")
        a("s_min_u32 s60, s60, 10000")
        a("s_lshl_b32 s60, s60, 4")
        a("Lspin:")
        a("s_memrealtime s[58:59]")
        a("s_waitcnt lgkmcnt(0)")
        a("s_sub_u32 s58, s58, s84")
        a("s_cmp_lt_u32 s58, s60")
        a("s_cbranch_scc1 Lspin")
        a(f"Lnostamp{k}{tag}:")
        return
    a("s_waitcnt lgkmcnt(0)")
    a("s_mov_b64 exec, 1")
    a(f"s_lshl_b32 s62, s2, 6\ns_add_u32 s62, s62, {WS_STAMP + k*256*64}")
    a("v_mov_b32 v1, s62")
    for i in range(n):
        a(f"v_mov_b32 v2, s{64+2*i}")
        a(f"global_store_dword v1, v2, s[{sws}:{sws+1}] offset:{4*i}")
    a("s_mov_b64 exec, -1")
    a(f"Lnostamp{k}{tag}:")
def wavescan(x, fill=()):
    fill = list(fill)
    for d, rm in (("row_shr:1","0xf"), ("row_shr:2","0xf"), ("row_shr:4","0xf"), ("row_shr:8","0xf"), ("row_bcast:15","0xa"), ("row_bcast:31","0xc")):
        if fill: a(fill.pop(0)); nop(1)
        else: nop(2)
        a(f"v_add_u32_dpp v{x}, v{x}, v{x} {d} row_mask:{rm} bank_mask:0xf")
def scan4(c, s1, s2, x, tot, fill=()):
    a(f"v_add_u32 v{s1}, v{c}, v{c+1}")
    a(f"v_add_u32 v{s2}, v{s1}, v{c+2}")
    a(f"v_add_u32 v{tot}, v{s2}, v{c+3}")
    a(f"v_mov_b32 v{x}, v{tot}")
    wavescan(x, fill)

K1_HIST, K1_BASE, K1_INV, K1_KS, K1_EA, K1_END = 0, 1024, 2048, 14848, 53248, 155648
TABL, TABOK, KCNT, PCNT = K1_END, K1_END + 1024, K1_END + 1028, K1_END + 1032
MAP, INVM, EA0, LDS = 49152, 49664, 50176, 163840
GO, TOT, OVER = MAP + 496, MAP + 500, MAP + 504
assert EA0 + CAP*32 == LDS
REG = 3072
HISTO = 2784
DEG, RT, DD = 0, 512, 14848
CW = 10
assert DD + CAP*4 <= CW*REG
BAND = 70
PH = OPT["ph"]
APRE = OPT["apre"]
assert all((r*147) >> 11 == r//14 for r in range(128))
assert all(((x*12+12)*2731) >> 16 == (x+1)//2 for x in range(NB*32+1))
vLs, vT, vEm, vS16, vK, vP, vE, vAdr, vI = 1, [2,3,4], 5, 6, 7, 8, 9, 10, 11
vA, vB, vLane, vF = 12, 14, 18, 19
vWr, vEaA, vD, vRw, vPr, vSH, vAr, ACC = 20, 28, 36, 44, 60, 67, 68, 96
vCg, vSr = (44, 52) if APRE else (68, 76)
vKS, vS, vPos, vG = 28, 84, 88, 92
vSink = 67 if APRE else 44
sX, sOut, sKS, sEA, sC, sWs = 4, 6, 8, 10, 12, 14
sTab, sOsrd = 16, 20
sWave, sBin, sTot, sBase, sL, sN, sReg, sCnt, sR, sTail, sGi, sFirst, sBlk = 24,25,26,27,28,29,30,31,32,33,34,35,36
sM0 = [37,38,39]
sGoal, sPoll, sC0, sEm, sPf, sPx = 40, 41, 42, 43, 45, 46
sMk = 48
sI = 48
sEx = 56
sT0, sT1, sT2, sT3 = 58, 59, 60, 61
KORD = (3, 0, 1, 2)
def LN(tau):
    tau %= 16
    return (tau & 3) | ((tau & 4) << 1) | ((tau & 8) >> 1)

def phase1():
    a(f".globl {KN}\n.p2align 8\n.type {KN},@function\n{KN}:")
    stamp(0)
    a("s_cmp_ge_u32 s2, 256")
    a("s_cbranch_scc1 Lend")
    a("v_readfirstlane_b32 s14, v0")
    a("s_cmp_ge_u32 s14, 640")
    a("s_cbranch_scc1 Lspare")
    a(f"s_cmp_ge_u32 s2, {NCH}")
    a("s_cbranch_scc1 Lnochunk")
    a("s_load_dwordx4 s[4:7], s[0:1], 8")
    a("s_load_dwordx4 s[8:11], s[0:1], 24")
    a("s_load_dwordx2 s[12:13], s[0:1], 80")
    a("s_lshr_b32 s14, s14, 6")
    a("v_and_b32 v2, 63, v0")
    a("v_lshlrev_b32 v3, 2, v0")
    a("v_mov_b32 v4, 0")
    a("ds_write_b32 v3, v4")
    a("v_lshlrev_b32 v3, 2, v2")
    a("v_lshlrev_b32 v4, 3, v2")
    a("v_lshlrev_b32 v5, 4, v2")
    a(f"s_mul_i32 s15, s2, {CH}")
    a("s_mul_i32 s16, s14, 320")
    a("s_add_u32 s15, s15, s16")
    a("s_lshl_b32 s17, s15, 2")
    a("s_lshl_b32 s18, s15, 3")
    a("s_lshl_b32 s19, s15, 5")
    a("s_waitcnt lgkmcnt(0)")
    a("s_add_u32 s6, s6, s17\ns_addc_u32 s7, s7, 0")
    for k in range(5):
        a(f"global_load_dword v{10+k}, v3, s[6:7] offset:{k*256}{NT}")
    a("s_add_u32 s4, s4, s17\ns_addc_u32 s5, s5, 0")
    for k in range(5):
        a(f"global_load_dword v{15+k}, v3, s[4:5] offset:{k*256}{NT}")
    a("s_add_u32 s8, s8, s18\ns_addc_u32 s9, s9, 0")
    for k in range(5):
        a(f"global_load_dwordx2 v[{20+2*k}:{21+2*k}], v4, s[8:9] offset:{k*512}{NT}")
    a("s_barrier")
    a("s_add_u32 s10, s10, s19\ns_addc_u32 s11, s11, 0")
    a("s_lshl_b32 s20, s16, 5")
    a(f"s_add_u32 s20, s20, {K1_EA}")
    def bulk(lo, hi):
        for i in range(lo, hi):
            if i % 4 == 0:
                a(f"s_add_u32 m0, s20, {i*1024}")
                a(f"v_add_u32 v6, {i*1024}, v5")
            a(f"global_load_lds_dwordx4 v6, s[10:11] offset:{(i%4)*1024}{NT}")
    bulk(0, OPT["k1n"])
    a(f"s_mov_b32 s21, {MAGIC}")
    a(f"s_mov_b32 s22, {-NPB}")
    a("v_mov_b32 v7, 1")
    a(f"s_waitcnt vmcnt({10+OPT['k1n']})")
    stamp(1)
    for k in range(5):
        a(f"v_mul_u32_u24 v{30+k}, s21, v{10+k}")
        a(f"v_lshrrev_b32 v{30+k}, {MSH}, v{30+k}")
        a(f"v_mad_i32_i24 v{10+k}, v{30+k}, s22, v{10+k}")
        a(f"v_lshlrev_b32 v{30+k}, 2, v{30+k}")
        a(f"ds_add_rtn_u32 v{35+k}, v{30+k}, v7 offset:{K1_HIST}")
    a("s_waitcnt lgkmcnt(0)")
    a("s_barrier")
    a(f"ds_read_b128 v[40:43], v5 offset:{K1_HIST}")
    bulk(OPT["k1n"], 10)
    a("s_waitcnt vmcnt(10)")
    for k in range(5):
        a(f"v_lshlrev_b32 v{10+k}, 2, v{10+k}")
        a(f"v_lshl_or_b32 v{15+k}, v{15+k}, 17, v{10+k}")
    a("v_lshl_add_u32 v53, v2, 5, s20")
    a("s_waitcnt lgkmcnt(0)")
    scan4(40, 44, 45, 46, 47, [f"v_add_u32 v{53+k}, {k*2048}, v53" for k in range(1, 5)])
    a("v_sub_u32 v46, v46, v47")
    a("v_add_u32 v41, v46, v40")
    a("v_add_u32 v42, v46, v44")
    a("v_add_u32 v43, v46, v45")
    a("v_mov_b32 v40, v46")
    a(f"ds_write_b128 v5, v[40:43] offset:{K1_BASE}")
    for k in range(5):
        a(f"ds_read_b32 v{30+k}, v{30+k} offset:{K1_BASE}")
    a(f"s_mov_b32 s23, {K1_KS}")
    for k in range(5):
        a(f"s_waitcnt lgkmcnt({4-k+3*k})")
        a(f"v_add_u32 v{30+k}, v{30+k}, v{35+k}")
        a(f"v_lshlrev_b32 v{35+k}, 2, v{30+k}")
        a(f"v_mad_u32_u24 v{30+k}, v{30+k}, 12, s23")
        a(f"ds_write_b32 v{35+k}, v{53+k} offset:{K1_INV}")
        a(f"ds_write_b32 v{30+k}, v{15+k}")
        a(f"ds_write2_b32 v{30+k}, v{20+2*k}, v{21+2*k} offset0:1 offset1:2")
    a("s_mul_i32 s23, s14, 3840")
    a("v_add_u32 v8, s23, v5")
    a("v_lshrrev_b32 v9, 1, v2")
    a("v_add_lshl_u32 v9, v9, s16, 2")
    a(f"s_mul_i32 s23, s2, {CH*12}")
    a(f"s_add_u32 s23, s23, {WS_KS}")
    a("s_add_u32 s26, s12, s23\ns_addc_u32 s27, s13, 0")
    a(f"s_add_u32 s19, s19, {WS_EA}")
    a("s_add_u32 s28, s12, s19\ns_addc_u32 s29, s13, 0")
    a("v_and_b32 v10, 1, v2")
    a("v_lshlrev_b32 v10, 4, v10")
    a("v_add_u32 v6, 4096, v5")
    a("v_add_u32 v7, 8192, v5")
    a("s_waitcnt lgkmcnt(0)")
    a("s_barrier")
    stamp(2)
    for i in range(4):
        a(f"ds_read_b128 v[{12+4*i}:{15+4*i}], v8 offset:{K1_KS+i*1024}")
    for i in range(10):
        a(f"ds_read_b32 v{30+i}, v9 offset:{K1_INV+i*128}")
    for i in range(4):
        a(f"s_waitcnt lgkmcnt({13-i})")
        if i == 3: a("s_mov_b32 exec_hi, 0xffff")
        a(f"global_store_dwordx4 v8, v[{12+4*i}:{15+4*i}], s[26:27] offset:{i*1024}{NTS}")
    a("s_mov_b64 exec, -1")
    a("s_waitcnt lgkmcnt(0)")
    for i in range(10):
        a(f"v_add_u32 v{30+i}, v{30+i}, v10")
    a("s_waitcnt vmcnt(0)")
    a("s_barrier")
    stamp(3)
    for i in range(10):
        a(f"ds_read_b128 v[{40+4*i}:{43+4*i}], v{30+i}")
    for i in range(10):
        if OPT["gate"] and i == OPT["gn"]: a("s_barrier")
        a(f"s_waitcnt vmcnt({OPT['slim']-1}) lgkmcnt({9-i})" if OPT["slim"] and i >= OPT["slim"] else f"s_waitcnt lgkmcnt({9-i})")
        a(f"global_store_dwordx4 v{5+i//4}, v[{40+4*i}:{43+4*i}], s[28:29] offset:{(i%4)*1024}{NTS}")
        if i + 1 == OPT["csh"] and OPT["cpos"] == 5:
            a("s_waitcnt lgkmcnt(0)")
            a(f"v_mov_b32 v9, {PCNT+4}")
            a("ds_write_b32 v9, v9")
        if i + 1 == OPT["pn"]:
            a("s_waitcnt lgkmcnt(0)")
            a(f"v_mov_b32 v9, {PCNT}")
            a("v_mov_b32 v11, 1")
            a("s_mov_b64 exec, 1")
            a("ds_add_u32 v9, v11")
            a("s_mov_b64 exec, -1")
    stamp(4)
    stamp_out(0, 5, 12, 14)
    a("s_branch Ljoin")
    a("Lnochunk:")
    a(f"s_cmp_gt_u32 s2, {NCH}")
    a("s_cbranch_scc1 Lprep3")
    a("s_load_dwordx4 s[4:7], s[0:1], 40")
    a("s_load_dwordx2 s[8:9], s[0:1], 56")
    a("s_load_dwordx2 s[12:13], s[0:1], 80")
    a("s_lshr_b32 s14, s14, 6")
    a("v_and_b32 v2, 63, v0")
    a("v_lshlrev_b32 v5, 4, v2")
    a("s_waitcnt lgkmcnt(0)")
    a(f"s_add_u32 s12, s12, {WS_CONST}\ns_addc_u32 s13, s13, 0")
    def gather8(base, offs, dstoff_s):
        for k in range(8):
            a(f"global_load_ushort v{10+k}, v3, s[{base}:{base+1}] offset:{offs[k]}")
        a("s_waitcnt vmcnt(0)")
        for k in range(4):
            a(f"v_lshl_or_b32 v{20+k}, v{11+2*k}, 16, v{10+2*k}")
        a(f"v_add_u32 v6, s{dstoff_s}, v5")
        a("global_store_dwordx4 v6, v[20:23], s[12:13] sc1")
        a("s_waitcnt vmcnt(0)")
    a("s_cmp_ge_u32 s14, 8")
    a("s_cbranch_scc1 Lprep2")
    a("s_lshr_b32 s15, s14, 1")
    a("s_and_b32 s16, s14, 1")
    a("s_lshl_b32 s15, s15, 11")
    a("s_lshl_b32 s16, s16, 1")
    a("s_add_u32 s15, s15, s16")
    a("v_lshrrev_b32 v3, 5, v2")
    a("v_lshlrev_b32 v3, 10, v3")
    a("v_and_b32 v4, 31, v2")
    a("v_lshl_add_u32 v3, v4, 2, v3")
    a("v_add_u32 v3, s15, v3")
    a("s_lshl_b32 s17, s14, 10")
    a("s_add_u32 s17, s17, 4096")
    gather8(8, [k*128 for k in range(8)], 17)
    a("s_branch Lprep3")
    a("Lprep2:")
    a("s_sub_u32 s14, s14, 8")
    a("s_lshl_b32 s17, s14, 10")
    a("v_lshl_add_u32 v3, v2, 1, s17")
    gather8(6, [k*128 for k in range(8)], 17)
    a("s_lshl_b32 s15, s14, 4")
    a("v_and_b32 v3, 3, v2")
    a("v_lshl_add_u32 v3, v3, 1, s15")
    a("s_add_u32 s17, s17, 2048")
    gather8(4, [(k//2)*32 + (k%2)*8 for k in range(8)], 17)
    a("Lprep3:")
    a("s_barrier")
    a("Lidle:")
    if OPT["itn"]:
        a("s_load_dwordx2 s[4:5], s[0:1], 0")
        a(f"s_sub_u32 s15, s2, {NCH}")
        a("s_mul_i32 s15, s15, 960")
        a("v_add_lshl_u32 v3, v0, s15, 7")
        a("s_waitcnt lgkmcnt(0)")
        for i in range(OPT["itn"]):
            if i: a(f"v_add_u32 v3, {(256-NCH)*15*8192}, v3")
            a("global_load_dword v4, v3, s[4:5]")
        a("s_waitcnt vmcnt(0)")
        a("s_barrier")
    a("s_branch Ljoin")
    a("Lspare:")
    a("s_cmp_ge_u32 s14, 960")
    a("s_cbranch_scc1 Lw15")
    a("s_barrier")
    a(f"s_cmp_ge_u32 s2, {NCH}")
    a("s_cbranch_scc1 Lidle")
    def xtouch1():
        a("s_cmp_ge_u32 s14, 896")
        a("s_cbranch_scc1 Lnotouch1")
        a("global_load_dword v44, v3, s[4:5]")
        a("Lnotouch1:")
    if OPT["pfpos"] in ("P2", "P3", "P4"):
        a("s_load_dwordx2 s[4:5], s[0:1], 0")
        a("s_lshr_b32 s15, s14, 6")
        a("s_lshl_b32 s16, s2, 2")
        a("s_add_u32 s15, s15, s16")
        a("s_sub_u32 s15, s15, 10")
        a(f"s_mul_i32 s15, s15, {OPT['pfn']*512}")
        a("v_and_b32 v3, 63, v0")
        a(f"v_min_u32 v3, {4*OPT['pfn']-1}, v3")
        a("v_lshl_add_u32 v3, v3, 7, s15")
        a("s_waitcnt lgkmcnt(0)")
    for i in (2, 3, 4):
        a("s_barrier")
        if OPT["pfpos"] == f"P{i}": xtouch1()
    if OPT["gate"]: a("s_barrier")
    a("s_branch Ljoin")
    a("Lw15:")
    a("s_setprio 3")
    a("s_load_dwordx2 s[12:13], s[0:1], 80")
    a("s_load_dwordx2 s[4:5], s[0:1], 72")
    a("v_and_b32 v2, 63, v0")
    a("s_and_b32 s15, s2, 7\ns_lshl_b32 s15, s15, 5\ns_lshr_b32 s16, s2, 3\ns_add_u32 s15, s15, s16")
    TB = OPT["tb"]; PB = 128 // TB
    def colbase(sb, st):
        a(f"s_lshl_b32 s{st}, s{sb}, 2")
        if TB > 1:
            a(f"s_and_b32 s62, s{st}, {PB-1}")
            a(f"s_sub_u32 s{st}, s{st}, s62")
            a(f"s_mul_i32 s{st}, s{st}, {TB}")
            a(f"s_add_u32 s{st}, s{st}, s62")
    global COLBASE, COLOFF
    COLBASE = colbase
    COLOFF = [(j // TB) * TB * 1024 + (j % TB) * PB for j in range(4)]
    colbase(15, 15)
    a("v_lshl_add_u32 v14, v2, 12, s15")
    a(f"s_lshl_b32 s16, s2, {OPT['fsh']}")
    a(f"s_add_u32 s16, s16, {WS_FLAG}")
    a("v_mov_b32 v3, s16")
    for j in range(4): a(f"v_mov_b32 v{4+j}, -1")
    for j in range(4): a(f"v_mov_b32 v{24+j}, 0")
    a("s_and_b32 s16, s2, 3\ns_lshl_b32 s16, s16, 6")
    a("v_mov_b32 v9, s16\nv_mov_b32 v10, 1")
    a("v_lshlrev_b32 v11, 2, v2")
    a("v_lshlrev_b32 v12, 4, v2")
    a(f"s_and_b32 s16, s2, {TB-1}")
    a("s_sub_u32 s17, s2, s16")
    a("s_lshl_b32 s17, s17, 10")
    a(f"s_mul_i32 s16, s16, {PB}")
    a("s_add_u32 s17, s17, s16")
    a(f"v_and_b32 v1, {PB-1}, v12")
    a("v_sub_u32 v8, v12, v1")
    a(f"v_mad_u32_u24 v1, v8, {TB}, v1")
    a("v_add_u32 v1, s17, v1")
    a(f"v_mov_b32 v15, {TABOK}")
    a("ds_write_b128 v15, v[24:27]")
    a(f"s_mov_b32 s10, {256*1024}\ns_mov_b32 s11, 0x20000")
    a("s_waitcnt lgkmcnt(0)")
    a("s_mov_b32 s8, s12\ns_mov_b32 s9, s13")
    a("global_store_dwordx4 v1, v[4:7], s[12:13] sc1")
    a("s_mov_b64 exec, 1")
    a("global_store_dword v3, v4, s[12:13] sc1")
    a(f"s_cmp_ge_u32 s2, {NCH}")
    a("s_cbranch_scc1 Lw15_1")
    a("s_barrier")
    a("Lw15_1:")
    a("s_waitcnt vmcnt(0)")
    if OPT["nocnt"] < 2: a("global_atomic_add v9, v10, s[4:5] sc1")
    a("s_mov_b64 exec, -1")
    a(f"s_mov_b32 s17, {SPIN}")
    a("s_barrier")
    a(f"s_cmp_lt_u32 s2, {NCH}")
    a("s_cbranch_scc1 Lw15_a")
    a("global_store_dwordx4 v1, v[24:27], s[12:13] sc1")
    for i in range(OPT["isleep"]): a("s_sleep 100")
    if OPT["itn"]: a("s_barrier")
    a("s_branch Lw15_poll")
    a("Lw15_a:")
    a(f"ds_read_b128 v[16:19], v12 offset:{K1_HIST}")
    a(f"s_mul_i32 s16, s2, {CH}")
    a("s_waitcnt lgkmcnt(0)")
    scan4(16, 20, 21, 22, 23)
    a("v_sub_u32 v22, v22, v23")
    a("v_add_u32 v22, s16, v22")
    a("v_add_u32 v25, v22, v16")
    a("v_add_u32 v26, v22, v20")
    a("v_add_u32 v27, v22, v21")
    a("v_lshl_or_b32 v24, v16, 20, v22")
    for j in range(1, 4): a(f"v_lshl_or_b32 v{24+j}, v{16+j}, 20, v{24+j}")
    if OPT["cpos"] >= 3: a("s_barrier")
    if OPT["cpos"] == 4:
        a("s_barrier")
        a("global_store_dwordx4 v1, v[24:27], s[12:13] sc1")
    if OPT["cpos"] == 5:
        a("s_barrier")
        a("global_store_dwordx4 v1, v[24:27], s[12:13] sc1")
        a("Lw15_q:")
        a("s_sleep 2")
        a("ds_read_b32 v22, v15 offset:12")
        a("s_waitcnt lgkmcnt(0)")
        a("v_readfirstlane_b32 s18, v22")
        a("s_cmp_eq_u32 s18, 0")
        a("s_cbranch_scc1 Lw15_q")
    stamp(1)
    a("s_branch Lw15_poll0")
    a("Lw15_poll:")
    a(f"s_sleep {OPT['tsleep']}")
    a("Lw15_poll0:")
    if OPT["nocnt"]: a("s_branch Lw15_cdone")
    a("global_load_dword v13, v11, s[4:5] sc1")
    a("s_sub_u32 s17, s17, 1")
    a("s_cbranch_scc1 Lend")
    a("s_waitcnt vmcnt(0)")
    for j in range(4): a(f"v_readlane_b32 s{18+j}, v13, {16*j}")
    a("s_add_u32 s18, s18, s19\ns_add_u32 s20, s20, s21\ns_add_u32 s18, s18, s20")
    a("s_cmp_lt_u32 s18, 256")
    a("s_cbranch_scc1 Lw15_poll")
    a("Lw15_cdone:")
    stamp(2)
    a(f"s_cmp_ge_u32 s2, {NCH}")
    a("s_cbranch_scc1 Lw15_n" if OPT["nbr"] else "s_cbranch_scc1 Lw15_c")
    if OPT["cpos"] < 3: a("s_barrier")
    if OPT["cpos"] < 4:
        a("s_barrier")
        a("global_store_dwordx4 v1, v[24:27], s[12:13] sc1")
    if OPT["kwait"]:
        a("Lw15_k:")
        a("s_sleep 2")
        a(f"ds_read_b32 v22, v15 offset:{8 if OPT['pn'] else 4}")
        a("s_waitcnt lgkmcnt(0)")
        a("v_readfirstlane_b32 s18, v22")
        a(f"s_cmp_lt_u32 s18, {OPT['kwait']}")
        a("s_cbranch_scc1 Lw15_k")
    a("Lw15_c:")
    stamp(3)
    def column():
        for j in range(4):
            a(f"buffer_load_dword v{16+j}, v14, s[8:11], 0 offen offset:{COLOFF[j]} sc1")
    column()
    a("Lw15_col:")
    a("s_waitcnt vmcnt(0)")
    a("v_max_u32 v20, v16, v17")
    a("v_max3_u32 v20, v18, v19, v20")
    a("v_cmp_eq_u32 vcc, -1, v20")
    a("s_and_b64 exec, exec, vcc")
    a("s_cbranch_scc0 Lw15_e")
    a(f"s_sleep {OPT['csleep']}")
    column()
    a("s_sub_u32 s17, s17, 1")
    a("s_cbranch_scc0 Lw15_col")
    a("s_endpgm")
    if OPT["nbr"]:
        a("Lw15_n:")
        a(f"global_load_dword v13, v3, s[12:13] offset:{-(8 << OPT['fsh'])} sc1")
        a("s_sub_u32 s17, s17, 1")
        a("s_cbranch_scc1 Lend")
        a("s_waitcnt vmcnt(0)")
        a("v_cmp_eq_u32 vcc, 0, v13")
        a("s_cbranch_vccnz Lw15_c")
        a(f"s_sleep {OPT['tsleep']}")
        a("s_branch Lw15_n")
    a("Lw15_e:")
    a("s_mov_b64 exec, -1")
    a(f"v_add_u32 v12, {TABL}, v12")
    a("v_lshlrev_b32 v13, 3, v2")
    a("v_mov_b32 v20, 0\nv_mov_b32 v21, 0")
    a("ds_write_b128 v12, v[16:19]")
    a(f"ds_write_b64 v13, v[20:21] offset:{MAP}")
    a("ds_write_b32 v15, v10")
    if OPT["gate"]:
        a(f"s_cmp_ge_u32 s2, {NCH}")
        a("s_cbranch_scc1 Lw15_h")
        a("s_barrier")
        a("Lw15_h:")
    a("s_setprio 0")
    stamp(4)
    if OPT["stamps"] == 16:
        a("s_mov_b32 s14, 15")
        stamp_out(0, 5, 12, 14, "w")
    a("s_waitcnt lgkmcnt(0)")

def phase2():
    sched = dict((k, int(v)) for k, v in (x.split(":") for x in OPT["easched"].split(",")))
    assert sum(sched.values()) == 6
    STAGES = ["B1", "S2", "B2", "S3", "B3", "B4", "S4", "C", "X", "A4", "A8"]
    GP = OPT["gpos"]
    assert all(STAGES.index(k) >= STAGES.index(GP) for k in sched), "no edge_attr load before the flags are checked"
    a("Ljoin:")
    a(f"s_load_dwordx2 s[{sWs}:{sWs+1}], s[0:1], 80")
    a(f"s_load_dwordx2 s[{sX}:{sX+1}], s[0:1], 0")
    a(f"s_load_dwordx2 s[{sOut}:{sOut+1}], s[0:1], 64")
    a(f"v_lshrrev_b32 v81, 6, v0")
    a(f"v_and_b32 v{vLane}, 63, v0")
    a(f"v_readfirstlane_b32 s{sWave}, v81")
    a(f"s_and_b32 s{sBin}, s2, 7")
    a(f"s_lshl_b32 s{sBin}, s{sBin}, 5")
    a(f"s_lshr_b32 s{sT0}, s2, 3")
    a(f"s_add_u32 s{sBin}, s{sBin}, s{sT0}")
    a(f"v_lshlrev_b32 v81, 4, v{vLane}")
    a(f"s_mov_b32 s{sTab+2}, {256*1024}")
    a(f"s_mov_b32 s{sTab+3}, 0x20000")
    a(f"s_mov_b32 s{sBase}, 0\ns_mov_b32 s{sL}, {CAP}\ns_mov_b32 s{sFirst}, 1\ns_mov_b32 s{sPoll}, 1\ns_mov_b32 s{sGoal}, 6")
    a(f"s_mov_b32 s{sEx}, 0x0f0f0f0f\ns_mov_b32 s{sEx+1}, 0xf0f0f0f0")
    a(f"s_mov_b32 s{sC0}, 0xc000")
    a(f"s_mul_i32 s{sReg}, s{sWave}, {REG}")
    a(f"s_lshl_b32 s{sEm}, s{sWave}, 11")
    a(f"s_add_u32 s{sEm}, s{sEm}, {EA0}")
    a(f"v_and_b32 v{vS16}, 1, v{vLane}")
    a(f"v_and_b32 v{vF}, 0x3c1, v0")
    a(f"v_bfe_u32 v82, v{vLane}, 1, 1")
    a(f"v_lshl_add_u32 v{vF}, v82, 5, v{vF}")
    a(f"v_lshrrev_b32 v82, 2, v{vLane}")
    a(f"v_lshl_add_u32 v{vF}, v82, 1, v{vF}")
    a(f"v_lshlrev_b32 v{vS16}, 4, v{vS16}")
    for i in range(32):
        a(f"v_mov_b32 v{ACC+i}, 0")
    a("s_waitcnt lgkmcnt(0)")
    a(f"s_mov_b32 s{sTab}, s{sWs}\ns_mov_b32 s{sTab+1}, s{sWs+1}")
    a(f"s_add_u32 s{sC}, s{sWs}, {WS_CONST}\ns_addc_u32 s{sC+1}, s{sWs+1}, 0")
    a(f"s_add_u32 s{sKS}, s{sWs}, {WS_KS}\ns_addc_u32 s{sKS+1}, s{sWs+1}, 0")
    a(f"s_add_u32 s{sEA}, s{sWs}, {WS_EA}\ns_addc_u32 s{sEA+1}, s{sWs+1}, 0")
    a(f"s_mov_b32 s{sOsrd}, s{sOut}\ns_mov_b32 s{sOsrd+1}, s{sOut+1}\ns_mov_b32 s{sOsrd+2}, {NN*512}\ns_mov_b32 s{sOsrd+3}, 0x20000")
    if OPT["spf"]:
        ns = NSP
        a(f"s_lshr_b32 s{sPf}, s{sWave}, 2")
        a(f"s_mul_i32 s{sT0}, s{sPf}, 1000")
        a(f"s_min_u32 s{sT1}, s2, 249")
        a(f"s_lshl_b32 s{sT1}, s{sT1}, 2")
        a(f"s_add_u32 s{sT0}, s{sT0}, s{sT1}")
        a(f"s_and_b32 s{sT1}, s{sWave}, 3")
        a(f"s_add_u32 s{sT0}, s{sT0}, s{sT1}")
        a(f"s_mul_i32 s{sT0}, s{sT0}, {ns*128}")
        a(f"s_add_u32 s{sT0}, s{sT0}, {NN*512 - NSP*512000}")
        a(f"s_add_u32 s{sPx}, s{sX}, s{sT0}\ns_addc_u32 s{sPx+1}, s{sX+1}, 0")
    def ldswait(tag, addr, cmp, two=False):
        a(f"v_mov_b32 v82, {addr}")
        a(f"s_mov_b32 s{sT1}, {SPIN*8}")
        a(f"Lw{tag}:")
        a("ds_read_b64 v[76:77], v82" if two else "ds_read_b32 v76, v82")
        a(f"s_sub_u32 s{sT1}, s{sT1}, 1")
        a("s_cbranch_scc1 Lend")
        a("s_waitcnt lgkmcnt(0)")
        a(f"v_readfirstlane_b32 s{sT0}, v76")
        a(cmp)
        a(f"s_cbranch_scc1 Lw{tag}d")
        a(f"s_sleep {OPT['gsleep']}")
        a(f"s_branch Lw{tag}")
        a(f"Lw{tag}d:")
    a(f"s_cmp_ge_u32 s{sWave}, 10")
    a("s_cbranch_scc1 Lhelper")
    a(f"v_mov_b32 v82, {KCNT}")
    a("v_mov_b32 v83, 1")
    a(f"s_lshl_b32 s{sT0}, s2, {OPT['fsh']}")
    a(f"s_add_u32 s{sT0}, s{sT0}, {WS_FLAG}")
    a(f"v_mov_b32 v84, s{sT0}")
    a("v_mov_b32 v85, 0")
    a("s_mov_b64 exec, 1")
    a("s_waitcnt vmcnt(0)")
    a("ds_add_rtn_u32 v83, v82, v83")
    a("s_waitcnt lgkmcnt(0)")
    a(f"v_readfirstlane_b32 s{sT0}, v83")
    a(f"s_cmp_lg_u32 s{sT0}, 9")
    a("s_cbranch_scc1 Lnoflag")
    a(f"global_store_dword v84, v85, s[{sWs}:{sWs+1}] sc1")
    a("Lnoflag:")
    a("s_mov_b64 exec, -1")
    a("s_branch Lgo")
    a("Lhelper:")
    a(f"s_cmp_lt_u32 s{sWave}, 15")
    a("s_cbranch_scc1 Lexpand")
    a(f"v_lshlrev_b32 v77, 1, v{vLane}")
    a("v_sub_u32 v78, 0x7f, v77")
    a("v_sub_u32 v79, 0x7e, v77")
    a("v_lshlrev_b32 v77, 2, v77")
    a("v_mov_b32 v82, 0x7f000000")
    a("v_mov_b32 v83, 0x7f000000")
    a(f"ds_write_b64 v77, v[78:79] offset:{DEG}")
    a(f"ds_write_b64 v77, v[82:83] offset:{INVM}")
    a("s_branch Lgo")
    a("Lexpand:")
    ldswait("tab", TABOK, f"s_cmp_lg_u32 s{sT0}, 0")
    a(f"v_add_u32 v82, {TABL}, v81")
    a("ds_read_b128 v[52:55], v82")
    a("s_waitcnt lgkmcnt(0)")
    a("Lhavetab:")
    a(f"s_sub_u32 s{sT2}, s{sWave}, 10")
    for j in range(4):
        a(f"v_lshrrev_b32 v{56+j}, 20, v{52+j}")
    scan4(56, 76, 77, 78, 79, [f"v_and_b32 v{60+j}, 0xfffff, v{52+j}" for j in range(4)])
    a("v_sub_u32 v64, v78, v79")
    a(f"v_readlane_b32 s{sTot}, v78, 63")
    a("v_add_u32 v65, v64, v56")
    a("v_add_u32 v66, v64, v76")
    a("v_add_u32 v67, v64, v77")
    a(f"s_sub_u32 s{sN}, s{sTot}, s{sBase}")
    a(f"s_min_u32 s{sN}, s{sN}, s{sL}")
    a(f"s_cmp_lg_u32 s{sN}, s{sTot}")
    a("s_cbranch_scc1 Lclip")
    a("Lnoclip:")
    a("v_max_u32 v80, v56, v57")
    a("v_max3_u32 v80, v58, v59, v80")
    for j in range(4):
        a(f"v_sub_u32 v{60+j}, v{60+j}, v{64+j}")
        a(f"v_add_lshl_u32 v{64+j}, v{64+j}, s{sT2}, 2")
    a("Lexp:")
    for it in range(3):
        for j in range(4):
            a(f"v_cmp_lt_u32 s[{sMk+2*j}:{sMk+2*j+1}], s{sT2}, v{56+j}")
        a(f"s_add_u32 s{sT2}, s{sT2}, 5")
        a(f"v_cmp_lt_u32 vcc, s{sT2}, v80")
        for j in range(4):
            a(f"s_mov_b64 exec, s[{sMk+2*j}:{sMk+2*j+1}]")
            a(f"ds_write_b32 v{64+j}, v{60+j} offset:{DD+20*it}")
        a("s_mov_b64 exec, -1")
        a("s_cbranch_vccz Lexpdone")
    a("s_waitcnt lgkmcnt(0)")
    for j in range(4):
        a(f"v_add_u32 v{64+j}, 60, v{64+j}")
    a("s_branch Lexp")
    a("Lexpdone:")
    a("v_mov_b32 v76, 0")
    a(f"v_mov_b32 v77, s{sTot}")
    a(f"ds_write_b32 v76, v77 offset:{TOT}")
    a("Lgo:")
    a(f"v_lshlrev_b32 v{vK}, 2, v{vF}")
    a(f"v_mov_b32 v{vP}, 0")
    for k in range(4):
        a(f"v_add_u32 v{vS+k}, {1024*k}, v{vF}")
    stamp(0)
    a("s_waitcnt lgkmcnt(0)")
    a("s_barrier")
    stamp(1)
    a(f"ds_read_b32 v{vP}, v{vP} offset:{TOT}")
    for k in KORD:
        a(f"ds_read_b32 v{vG+k}, v{vK} offset:{DD+4096*k}")
    a(f"s_sub_u32 s{sT2}, s{sWave}, {CW}")
    a(f"s_cmp_ge_u32 s{sT2}, 4")
    a("s_cbranch_scc1 Lnoc")
    a(f"s_mov_b32 m0, s{sReg}")
    a(f"s_lshl_b32 s{sT0}, s{sT2}, 10")
    a(f"v_add_u32 v82, s{sT0}, v81")
    a(f"global_load_lds_dwordx4 v82, s[{sC}:{sC+1}]{HLD}")
    a("Lnoc:")
    a("s_waitcnt lgkmcnt(4)")
    a(f"v_readfirstlane_b32 s{sTot}, v{vP}")
    a(f"s_sub_u32 s{sN}, s{sTot}, s{sBase}")
    a(f"s_min_u32 s{sN}, s{sN}, s{sL}")
    for k in KORD:
        a(f"v_cmp_gt_u32 s[{sMk+2*k}:{sMk+2*k+1}], s{sN}, v{vS+k}")
    def skip3(tag):
        a(f"s_cmp_eq_u64 s[{sMk+6}:{sMk+7}], 0")
        a(f"s_cbranch_scc1 Ls3{tag}")
    tagn = [0]
    def recs(fn):
        for k in range(3): fn(k)
        tagn[0] += 1
        skip3(f"r{tagn[0]}")
        fn(3)
        a(f"Ls3r{tagn[0]}:")
    for i, k in enumerate(KORD):
        a(f"s_waitcnt lgkmcnt({3-i})")
        a(f"v_add_u32 v{vG+k}, v{vG+k}, v{vS+k}")
        a(f"v_cndmask_b32 v{vG+k}, 0, v{vG+k}, s[{sMk+2*k}:{sMk+2*k+1}]")
        if OPT["safe"]: a(f"v_min_u32 v{vG+k}, {NE-1}, v{vG+k}")
        a(f"v_mul_u32_u24 v{vPos+k}, 12, v{vG+k}")
        if k == 3: skip3("a")
        a(f"global_load_dwordx3 v[{vKS+4*k}:{vKS+2+4*k}], v{vPos+k}, s[{sKS}:{sKS+1}]{HLD}")
        if k == 3: a("Ls3a:")
    for k in range(4):
        a(f"v_lshlrev_b32 v{vG+k}, 5, v{vG+k}")
    stamp(2)
    def xtouch(tag):
        a(f"s_cmp_lt_u32 s{sWave}, 12")
        a(f"s_cbranch_scc1 Lnotouch{tag}")
        a(f"s_min_u32 s{sT0}, s2, 249")
        a(f"s_lshl_b32 s{sT0}, s{sT0}, 2")
        a(f"s_add_u32 s{sT0}, s{sT0}, s{sWave}")
        a(f"s_sub_u32 s{sT0}, s{sT0}, 12")
        a(f"s_mul_i32 s{sT0}, s{sT0}, {OPT['pfn']*512}")
        a(f"s_add_u32 s{sT0}, s{sT0}, {XT0}")
        a(f"v_min_u32 v{vAdr}, {4*OPT['pfn']-1}, v{vLane}")
        a(f"v_lshl_add_u32 v{vAdr}, v{vAdr}, 7, s{sT0}")
        a(f"global_load_dword v{vSink}, v{vAdr}, s[{sX}:{sX+1}]")
        a(f"Lnotouch{tag}:")
    a(f"s_cmp_ge_u32 s{sWave}, 2")
    a("s_cbranch_scc1 Lnort")
    a("v_lshlrev_b32 v77, 2, v0")
    a(f"v_subrev_u32 v52, {BAND}, v0")
    a(f"v_cmp_le_u32 vcc, {BAND+14}, v0")
    a("v_cmp_gt_u32 s[58:59], 14, v52")
    a("v_subrev_u32 v79, 14, v0")
    a("v_lshrrev_b32 v80, 1, v52")
    a("v_cndmask_b32 v76, v0, v79, vcc")
    a("v_mul_u32_u24 v79, 147, v76")
    a("v_lshrrev_b32 v79, 11, v79")
    a("v_mad_i32_i24 v76, v79, -14, v76")
    a("v_and_b32 v53, 1, v79")
    a("v_cmp_eq_u32 vcc, 1, v53")
    a("v_sub_u32 v53, 13, v76")
    a("v_xor_b32 v52, v52, v80")
    a("v_and_or_b32 v52, v52, 1, 14")
    a("v_cndmask_b32 v76, v76, v53, vcc")
    a("v_cndmask_b32 v79, v79, v80, s[58:59]")
    a("v_cndmask_b32 v76, v76, v52, s[58:59]")
    a(f"v_mul_u32_u24 v52, {REG + (32 << 16)}, v76")
    a("v_lshl_or_b32 v52, v79, 2, v52")
    a("v_and_b32 v53, 1, v79")
    a("v_lshl_add_u32 v52, v53, 20, v52")
    a("v_lshrrev_b32 v79, 1, v79")
    a("v_lshl_add_u32 v52, v79, 18, v52")
    a(f"ds_write_b32 v77, v52 offset:{RT}")
    a("Lnort:")
    a("v_lshrrev_b32 v76, 3, v0")
    a("v_lshlrev_b32 v15, 2, v76")
    a("v_and_b32 v16, 7, v0")
    a("v_lshlrev_b32 v16, 6, v16")
    a("v_mov_b32 v17, 0x80")
    a(f"v_lshl_add_u32 v82, v{vLane}, 2, s{sReg}")
    a("v_mov_b32 v83, 0")
    a("s_waitcnt vmcnt(0)")
    stamp(3)
    for k in range(4):
        a(f"v_and_b32 v{vKS+3+4*k}, 0x1fc, v{vKS+4*k}")
    def eadma(n):
        k, h = n // 2, n % 2
        a(f"s_add_u32 m0, s{sEm}, {k*32768 + h*1024}")
        a(f"v_add_u32_dpp v{vAdr}, v{vG+k}, v{vS16} quad_perm:[{2*h},{2*h},{2*h+1},{2*h+1}] {DPPM}")
        a(f"global_load_lds_dwordx4 v{vAdr}, s[{sEA}:{sEA+1}]{HLD}")
    nxt = [0]
    def ea_stage(name):
        for _ in range(sched.get(name, 0)):
            eadma(nxt[0]); nxt[0] += 1
            if nxt[0] == 6:
                skip3("b")
                eadma(6); eadma(7)
                a("Ls3b:")
    def sync(name):
        if OPT["pfpos"] == name or GP == name:
            a(f"s_cmp_eq_u32 s{sPoll}, 0")
            a(f"s_cbranch_scc1 Lpolled{name}")
            if OPT["pfpos"] == name: xtouch(name)
        if GP == name:
            a(f"s_mov_b32 s{sPoll}, 0")
            a(f"s_cmp_ge_u32 s{sWave}, 4")
            a(f"s_cbranch_scc1 Lpolled{name}")
            a(f"v_min_u32 v{vK}, {NCH-1}, v0")
            a(f"v_lshlrev_b32 v{vK}, {OPT['fsh']}, v{vK}")
            a(f"v_add_u32 v{vK}, {WS_FLAG}, v{vK}")
            a(f"s_mov_b32 s{sT3}, {SPIN}")
            a("Lflagpoll:")
            if OPT["psleep"]: a(f"s_sleep {OPT['psleep']}")
            a(f"global_load_dword v{vP}, v{vK}, s[{sWs}:{sWs+1}] sc1")
            a(f"s_sub_u32 s{sT3}, s{sT3}, 1")
            a("s_cbranch_scc1 Lend")
            a("s_waitcnt vmcnt(0)")
            a(f"v_cmp_ne_u32 vcc, 0, v{vP}")
            a("s_and_b64 exec, exec, vcc")
            a("s_cbranch_scc1 Lflagpoll")
            a("s_mov_b64 exec, -1")
        if OPT["pfpos"] == name or GP == name: a(f"Lpolled{name}:")
        a("s_waitcnt lgkmcnt(0)")
        a("s_barrier")
    a(f"s_cmp_eq_u32 s{sFirst}, 0")
    a("s_cbranch_scc1 Llatermap")
    a(f"s_mov_b32 s{sFirst}, 0")
    if OPT["pfpos"] == "F": xtouch("F")
    def f(k):
        a(f"s_mov_b64 exec, s[{sMk+2*k}:{sMk+2*k+1}]")
        a(f"ds_add_u32 v{vKS+3+4*k}, v17 offset:{DEG}")
    recs(f)
    a("s_mov_b64 exec, -1")
    sync("B1")
    stamp(4)
    a(f"ds_write_b32 v82, v83 offset:{HISTO}")
    ea_stage("B1")
    a(f"s_cmp_ge_u32 s{sWave}, 13")
    a("s_cbranch_scc1 Lnorank")
    a(f"ds_read_b32 v77, v15 offset:{DEG}")
    for i in range(4):
        a(f"ds_read_b128 v[{52+4*i}:{55+4*i}], v16 offset:{DEG+16*i}" if not (APRE and i == 3) else f"ds_read_b128 v[68:71], v16 offset:{DEG+48}")
    a("v_mov_b32 v78, 0")
    a(f"v_cmp_gt_u32 vcc, {NPB}, v76")
    a("v_lshlrev_b32 v76, 9, v76")
    for i in range(16):
        r = 52 + i + (4 if APRE and i >= 12 else 0)
        if i % 4 == 0: a(f"s_waitcnt lgkmcnt({3-i//4})")
        a(f"v_sub_u32 v{r}, v77, v{r}")
        a(f"v_alignbit_b32 v78, v78, v{r}, 31")
    a("v_bcnt_u32_b32 v78, v78, 0")
    a("v_lshlrev_b32 v78, 2, v78")
    for d in ("quad_perm:[1,0,3,2]", "quad_perm:[2,3,0,1]", "row_half_mirror"):
        nop(2)
        a(f"v_add_u32_dpp v78, v78, v78 {d} {DPPM}")
    a(f"ds_read_b32 v78, v78 offset:{RT}")
    a("s_mov_b64 exec, vcc")
    a("s_waitcnt lgkmcnt(0)")
    a("v_lshrrev_b32 v79, 16, v78")
    a("v_and_b32 v78, 0xffff, v78")
    a(f"ds_write_b32 v79, v76 offset:{INVM}")
    a(f"ds_write_b32 v15, v78 offset:{MAP}")
    a("s_mov_b64 exec, -1")
    a("Lnorank:")
    ea_stage("S2")
    later = list(range(nxt[0]))
    assert nxt[0] < 6
    a("Lhavemap:")
    sync("B2")
    stamp(5)
    def f(k):
        a(f"ds_read_b32 v{76+k}, v{vKS+3+4*k} offset:{MAP}")
        a(f"v_lshrrev_b32 v{52+k}, {17+PH-2}, v{vKS+4*k}")
        a(f"v_lshlrev_b32 v{vS+k}, 5, v{vS+k}")
    recs(f)
    ea_stage("B2")
    a("v_mov_b32 v83, 12")
    a(f"s_mov_b32 s{sT0}, {0x3c if PH == 11 else 0x7c}")
    a(f"s_mov_b32 s{sT1}, 0xfffe0000")
    a("s_waitcnt lgkmcnt(0)")
    def f(k):
        a(f"s_mov_b64 exec, s[{sMk+2*k}:{sMk+2*k+1}]")
        a(f"v_bfi_b32 v{vKS+3+4*k}, s{sT0}, v{52+k}, v{76+k}")
        a(f"ds_add_rtn_u32 v{vPos+k}, v{vKS+3+4*k}, v83 offset:{HISTO}")
        a(f"v_bfi_b32 v{vS+k}, 28, v{76+k}, v{vS+k}")
        a(f"v_bfi_b32 v{vKS+4*k}, s{sT1}, v{vKS+4*k}, v{vS+k}")
    recs(f)
    a("s_mov_b64 exec, -1")
    ea_stage("S3")
    a(f"v_and_b32 v14, 31, v{vLane}")
    a(f"v_lshl_add_u32 v14, v14, 2, s{sReg}")
    a(f"v_mad_u32_u24 v17, v{vLane}, 12, s{sReg}")
    sync("B3")
    a(f"ds_read_b32 v52, v14 offset:{HISTO}")
    for i in range(2):
        a(f"ds_read_b128 v[{vWr+4*i}:{vWr+4*i+3}], v81 offset:{REG*(CW+i)}")
        a(f"ds_read_b128 v[{vCg+4*i}:{vCg+4*i+3}], v81 offset:{REG*(CW+2+i)}")
    ea_stage("B3")
    fill = [f"v_and_b32 v12, 3, v{vLane}", f"v_bfe_u32 v13, v{vLane}, 2, 1", "v_lshl_add_u32 v12, v13, 3, v12",
            f"v_bfe_u32 v13, v{vLane}, 3, 1", "v_lshl_add_u32 v12, v13, 2, v12", f"v_bfe_u32 v13, v{vLane}, 4, 1",
            "v_lshl_add_u32 v12, v12, 1, v13", f"v_mad_u32_u24 v12, v12, 12, s{sReg}",
            f"v_lshrrev_b32 v13, 2, v{vLane}", f"v_bfe_u32 v15, v{vLane}, 1, 1", "v_lshl_add_u32 v13, v15, 4, v13",
            f"v_mad_u32_u24 v13, v13, 12, s{sReg}", f"v_lshrrev_b32 v15, 2, v{vS16}", "v_add3_u32 v13, v13, v15, 4"]
    for _ in range(6): a(fill.pop(0))
    a("v_mov_b32 v83, 28")
    a("v_mov_b32 v54, 0")
    a("s_waitcnt lgkmcnt(4)")
    a(f"v_sub_u32 v53, s{sReg}, v52")
    for d, rm in (("row_shr:1","0xf"), ("row_shr:2","0xf"), ("row_shr:4","0xf"), ("row_shr:8","0xf"), ("row_bcast:15","0xa")):
        a(f"v_add_u32_dpp v52, v52, v52 {d} row_mask:{rm} bank_mask:0xf")
        if fill: a(fill.pop(0)); a(fill.pop(0))
    a("v_add_u32 v53, v53, v52")
    a(f"v_readlane_b32 s{sCnt}, v52, 31")
    a(f"ds_write_b32 v14, v53 offset:{HISTO}")
    a(f"s_cmp_gt_u32 s{sCnt}, {NB*32*12}")
    a("s_cbranch_scc1 Lover")
    a("Loverb:")
    a(f"v_add_u32 v17, s{sCnt}, v17")
    a(f"s_add_u32 s{sR}, s{sCnt}, 12")
    a(f"s_mul_i32 s{sR}, s{sR}, 2731")
    a(f"s_lshr_b32 s{sCnt}, s{sR}, 16")
    a(f"s_min_u32 s{sTail}, s{sCnt}, 3")
    a(f"s_sub_u32 s{sR}, s{sCnt}, s{sTail}")
    sync("B4")
    stamp(6)
    a(f"ds_read_b32 v54, v54 offset:{OVER}")
    recs(lambda k: a(f"ds_read_b32 v{vKS+3+4*k}, v{vKS+3+4*k} offset:{HISTO}"))
    ea_stage("B4")
    a("s_waitcnt lgkmcnt(0)")
    a("v_cmp_ne_u32 vcc, 0, v54")
    a("s_cbranch_vccnz Lslow")
    a("s_mov_b64 exec, 63")
    a("ds_write_b32 v17, v83")
    def f(k):
        a(f"s_mov_b64 exec, s[{sMk+2*k}:{sMk+2*k+1}]")
        a(f"v_add_u32 v{vPos+k}, v{vPos+k}, v{vKS+3+4*k}")
        a(f"ds_write_b32 v{vPos+k}, v{vKS+4*k}")
        a(f"ds_write2_b32 v{vPos+k}, v{vKS+1+4*k}, v{vKS+2+4*k} offset0:1 offset1:2")
    recs(f)
    a("s_mov_b64 exec, -1")
    ea_stage("S4")
    a(f"v_bfe_u32 v14, v{vLane}, 2, 2")
    a(f"v_and_b32 v15, 3, v{vLane}")
    a(f"v_lshrrev_b32 v16, 5, v{vLane}")
    a(f"v_lshlrev_b32 v{vLs}, 7, v14")
    a(f"v_lshl_add_u32 v{vLs}, v15, 4, v{vLs}")
    a(f"v_lshrrev_b32 v{vT[0]}, 1, v{vLs}")
    a(f"v_lshl_add_u32 v{vLs}, v16, 6, v{vLs}")
    a(f"v_lshl_add_u32 v{vT[0]}, v16, 9, v{vT[0]}")
    a(f"v_bfe_u32 v14, v{vLane}, 4, 1")
    a(f"v_lshl_add_u32 v{vT[0]}, v14, 5, v{vT[0]}")
    a(f"v_add_u32 v{vT[0]}, s{sReg}, v{vT[0]}")
    sync("C")
    stamp(7)
    for b in range(NB):
        a(f"ds_read_b32 v{vPr+b}, v12 offset:{b*384}")
    for b in range(NB):
        a(f"ds_read_b32 v{vSr+b}, v13 offset:{b*384}")
    ea_stage("C")
    a(f"v_add_u32 v{vT[1]}, 1024, v{vT[0]}")
    a(f"v_add_u32 v{vT[2]}, 2048, v{vT[0]}")
    a(f"v_mov_b32 v{vEm}, 0x1ffe0")
    a(f"s_mov_b32 s{sM0[0]}, s{sReg}")
    a(f"s_add_u32 s{sM0[1]}, s{sReg}, 1024")
    a(f"s_add_u32 s{sM0[2]}, s{sReg}, 2048")
    for i in range(8):
        a(f"v_mov_b32 v{vEaA+i}, 0")
    a(f"s_mov_b32 s{sBlk}, 0x1000")
    a(f"s_mov_b32 s{sGi}, 0x1000")
    a("s_waitcnt lgkmcnt(0)")
    def adr(n):
        a(f"v_add_u32_dpp v{vAdr}, v{vK}, v{vLs} row_newbcast:{LN(n)} {DPPM}")
    DMA = f"global_load_lds_dwordx4 v{vAdr}, s[{sX}:{sX+1}]"
    def rowoff():
        a(f"v_lshrrev_b32 v{vK}, 8, v{vP}")
        a(f"v_and_b32 v{vK}, 0xfffe00, v{vK}")
        a(f"v_min_u32 v{vK}, {(NN-1)*512}, v{vK}")
    def idx_pack_a():
        a(f"v_and_or_b32 v{vI}, v{vP}, 28, s{sC0}")
        a(f"v_lshlrev_b32 v{vI}, v{vS16}, v{vI}")
    def idx_pack_b():
        a(f"v_or_b32_dpp v{vI}, v{vI}, v{vI} quad_perm:[1,0,3,2] {DPPM}")
    def ea_adr(g, half):
        lo, hi = ("quad_perm:[0,1,2,3]", "row_shr:4") if g == 0 else ("row_shl:4", "quad_perm:[0,1,2,3]")
        if half == 0: a(f"v_and_b32_dpp v{vE}, v{vP}, v{vEm} {lo} row_mask:0x3 bank_mask:0xf")
        else:         a(f"v_and_b32_dpp v{vE}, v{vP}, v{vEm} {hi} row_mask:0xc bank_mask:0xf")
    def abuild(src, g, dst):
        q0, q1 = 2*g, 2*g+1
        a(f"v_mov_b32_dpp v{vD+4}, v{src} quad_perm:[{q0},{q0},{q0},{q0}] {DPPM}")
        a(f"v_mov_b32_dpp v{vD+5}, v{src} quad_perm:[{q1},{q1},{q1},{q1}] {DPPM}")
        for u in range(4):
            a(f"v_dot2_f32_bf16 v{vD+u}, v{vD+4}, v{vCg+u}, 0")
        for u in range(4):
            a(f"v_dot2_f32_bf16 v{vD+u}, v{vD+5}, v{vCg+4+u}, v{vD+u}")
        nop(1)
        a(f"v_cvt_pk_bf16_f32 v{dst}, v{vD}, v{vD+1}")
        nop(1)
        a(f"v_cvt_pk_bf16_f32 v{dst+1}, v{vD+2}, v{vD+3}")
    a(f"v_mov_b32 v{vP}, v{vPr}")
    rowoff()
    idx_pack_a()
    ea_adr(0, 0)
    nop(1)
    idx_pack_b()
    ea_adr(0, 1)
    for s in range(2): a(f"v_readlane_b32 s{sI+s}, v{vI}, {16*s + LN(0)}")
    ea_stage("X")
    if APRE:
        for gi in range(2*NB):
            if gi == 4: ea_stage("A4")
            if gi == 8: ea_stage("A8")
            if gi >= 2*NB-2:
                a(f"s_cmp_le_u32 s{sCnt}, {8*gi}")
                a("s_cbranch_scc1 Labuilt")
            abuild(vSr + gi//2, gi % 2, vAr + 2*gi)
        a("Labuilt:")
    else:
        a(f"v_mov_b32 v{vSH}, v{vSr}")
        abuild(vSr, 0, vA)
    assert nxt[0] == 6
    for p in range(3):
        a(f"s_mov_b32 m0, s{sM0[p]}")
        adr(p)
        a(DMA)
    a("s_waitcnt vmcnt(3)")
    adr(3)
    a("s_barrier")
    stamp(8)
    def ea_reads():
        a(f"s_mov_b64 exec, s[{sEx}:{sEx+1}]")
        a(f"ds_read_b128 v[{vEaA}:{vEaA+3}], v{vE} offset:{EA0}")
        a(f"ds_read_b128 v[{vEaA+4}:{vEaA+7}], v{vE} offset:{EA0+16}")
        a("s_mov_b64 exec, -1")
    def tr(sl):
        a(f"ds_read_b64_tr_b16 v[{vB}:{vB+1}], v{vT[sl]}")
        a(f"ds_read_b64_tr_b16 v[{vB+2}:{vB+3}], v{vT[sl]} offset:256")
    def afetch():
        a(f"s_mov_b32 m0, s{sGi}")
        a(f"v_mov_b32 v{vA}, v{vAr}")
        a(f"v_mov_b32 v{vA+1}, v{vAr+1}")
        a(f"s_add_u32 s{sGi}, s{sGi}, 2")
    if OPT["lprio"]: a("s_setprio 1")
    ea_reads()
    a(f"s_set_gpr_idx_on s{sM0[0]}, 0")
    if APRE: afetch()
    a(f"s_mov_b32 m0, s{sM0[0]}")
    a("s_waitcnt vmcnt(2)")
    tr(0)
    a(".p2align 6")
    a("Lblk:")
    TA, TS = 84, 88
    for p in range(16):
        g, pp = p // 8, p % 8
        cur, nx = sI + 2*((p//2) % 2), sI + 2*((p//2+1) % 2)
        def cap(fn, *args):
            n = len(L); fn(*args); r = L[n:]; del L[n:]; return r
        F = []
        if p != 12: F += cap(adr, p+4)
        nxp = (p//2*2 + 2) % 16
        if p < 14: F.append(f"v_readlane_b32 s{nx + p%2}, v{vI}, {16*(p%2) + LN(nxp)}")
        if p == 15: F += [f"v_readlane_b32 s{nx+s}, v{vI}, {16*s + LN(0)}" for s in range(2)]
        if p == 13: F += cap(idx_pack_a)
        if p == 14: F += cap(idx_pack_b)
        if pp == 5: F += cap(ea_adr, 1-g, 0)
        if pp == 6: F += cap(ea_adr, 1-g, 1)
        q0, q1 = 2*(1-g), 2*(1-g)+1
        late = []
        if not APRE:
            if pp == 6:
                F = [f"v_mov_b32_dpp v{TS}, v{vSH} quad_perm:[{q0},{q0},{q0},{q0}] {DPPM}",
                     f"v_mov_b32_dpp v{TS+1}, v{vSH} quad_perm:[{q1},{q1},{q1},{q1}] {DPPM}"] + F
            if pp == 7: late = [f"v_cvt_pk_bf16_f32 v{vA}, v{TA}, v{TA+1}", f"v_cvt_pk_bf16_f32 v{vA+1}, v{TA+2}, v{TA+3}"]
        elif pp == 7: late = cap(afetch)
        if p == 12:
            F = cap(rowoff) + F + ["s_nop 0"] + cap(adr, p+4)
        a(f"s_sub_u32 s{sR}, s{sR}, 1")
        a("s_waitcnt lgkmcnt(0)")
        a(f"s_cbranch_scc1 Ltail{p}")
        a("s_nop 0" if OPT["nodma"] else DMA)
        a(f"Lback{p}:")
        if pp == 0:
            a(f"v_mfma_f32_32x32x16_bf16 v[{vRw}:{vRw+15}], v[{vEaA}:{vEaA+3}], v[{vWr}:{vWr+3}], 0")
            a(f"v_mfma_f32_32x32x16_bf16 v[{vRw}:{vRw+15}], v[{vEaA+4}:{vEaA+7}], v[{vWr+4}:{vWr+7}], v[{vRw}:{vRw+15}]")
        tpm = [f"v_mfma_f32_4x4x4_16b_bf16 v[{vD+4*s}:{vD+4*s+3}], v[{vA}:{vA+1}], v[{vB+2*s}:{vB+2*s+1}], 0 cbsz:4 abid:{2*pp+s}" for s in range(2)]
        a(tpm[0])
        n = len(F) + len(late)
        if OPT["mid"]: a(F.pop(0))
        a(tpm[1])
        def nexttr():
            a("s_waitcnt vmcnt(2)")
            tr((p+1) % 3)
            if pp == 7: ea_reads()
        for x in F + late: a(x)
        gap = (9 if pp == 0 else 3) - n
        if OPT["ord"] == 5:
            nexttr(); gap -= 3
        if gap > 0: nop(gap)
        for s in range(2):
            a(f"s_lshr_b32 m0, s{cur+s}, 16" if p % 2 else f"s_mov_b32 m0, s{cur+s}")
            sel = "op_sel_hi:[1,0,1]" if pp % 2 == 0 else "op_sel:[0,1,0] op_sel_hi:[1,1,1]"
            r = vRw + 8*s + (pp & ~1)
            for h in range(2):
                a(f"v_pk_fma_f32 v[{ACC+2*h}:{ACC+2*h+1}], v[{vD+4*s+2*h}:{vD+4*s+2*h+1}], v[{r}:{r+1}], v[{ACC+2*h}:{ACC+2*h+1}] {sel}")
        if OPT["ord"] == 4: nexttr()
        if p == 11:
            a(f"s_add_u32 s{sBlk}, s{sBlk}, 1")
            a(f"s_mov_b32 m0, s{sBlk}")
            a(f"v_mov_b32 v{vP}, v{vPr}")
            if not APRE: a(f"v_mov_b32 v{vSH}, v{vSr}")
        a(f"s_mov_b32 m0, s{sM0[(p+1)%3]}")
        if pp == 6 and not APRE:
            for u in range(4): a(f"v_dot2_f32_bf16 v{TA+u}, v{TS}, v{vCg+u}, 0")
            for u in range(4): a(f"v_dot2_f32_bf16 v{TA+u}, v{TS+1}, v{vCg+4+u}, v{TA+u}")
        if pp == 7 and OPT["spf"]:
            a(f"s_sub_u32 s{sPf}, s{sPf}, 1")
            a(f"s_cbranch_scc1 Lspf{g}")
            a(f"Lspfb{g}:")
    a(f"v_swap_b32 v{vT[0]}, v{vT[1]}")
    a(f"v_swap_b32 v{vT[1]}, v{vT[2]}")
    a(f"s_mov_b32 s{sT0}, s{sM0[0]}\ns_mov_b32 s{sM0[0]}, s{sM0[1]}\ns_mov_b32 s{sM0[1]}, s{sM0[2]}\ns_mov_b32 s{sM0[2]}, s{sT0}")
    a("s_branch Lblk")
    a("Lloopend:")
    for p in range(16):
        a(f"Ltail{p}:")
        a(f"s_mov_b32 s{sR}, 0")
        a(f"s_sub_u32 s{sTail}, s{sTail}, 1")
        a("s_cbranch_scc1 Lexit")
        a("s_waitcnt vmcnt(0)")
        a(f"s_branch Lback{p}")
    if OPT["spf"]:
        for g in range(2):
            a(f"Lspf{g}:")
            for i in range(NSP):
                a(f"s_load_dwordx2 s[62:63], s[{sPx}:{sPx+1}], {i*128+60}")
            a(f"s_branch Lspfb{g}")
    a("Lclip:")
    a(f"s_add_u32 s{sT0}, s{sBase}, s{sN}")
    for j in range(4):
        a(f"v_add_u32 v76, v{64+j}, v{56+j}")
        a(f"v_min_u32 v76, s{sT0}, v76")
        a(f"v_max_u32 v77, s{sBase}, v{64+j}")
        a(f"v_sub_u32 v76, v76, v77")
        a(f"v_max_i32 v{56+j}, 0, v76")
        a(f"v_sub_u32 v76, v77, v{64+j}")
        a(f"v_add_u32 v{60+j}, v{60+j}, v76")
        a(f"v_subrev_u32 v{64+j}, s{sBase}, v77")
    a("s_branch Lnoclip")
    a("Llatermap:")
    a("s_barrier")
    a(f"ds_write_b32 v82, v83 offset:{HISTO}")
    for n in later: eadma(n)
    a("s_branch Lhavemap")
    a("Lover:")
    a(f"ds_write_b32 v54, v83 offset:{OVER}")
    a("s_branch Loverb")
    a("Lslow:")
    a(f"s_mov_b32 s{sL}, {NB*32}")
    a("Lround:")
    a("s_waitcnt vmcnt(0) lgkmcnt(0)")
    a("s_barrier")
    a("v_mov_b32 v80, 0")
    a(f"ds_write_b32 v80, v80 offset:{OVER}")
    a(f"v_lshlrev_b32 v81, 4, v{vLane}")
    a("s_waitcnt lgkmcnt(0)")
    a(f"s_sub_u32 s{sT0}, s{sWave}, 10")
    a(f"s_cmp_ge_u32 s{sT0}, 5")
    a("s_cbranch_scc1 Lgo")
    COLBASE(sBin, sT0)
    a(f"v_lshl_add_u32 v82, v{vLane}, 12, s{sT0}")
    for j in range(4):
        a(f"buffer_load_dword v{52+j}, v82, s[{sTab}:{sTab+3}], 0 offen offset:{COLOFF[j]} sc1")
    a("s_waitcnt vmcnt(0)")
    a("s_branch Lhavetab")
    a("Lexit:")
    a("s_set_gpr_idx_off")
    if OPT["lprio"]: a("s_setprio 0")
    stamp(9)
    a(f"s_add_u32 s{sBase}, s{sBase}, s{sN}")
    a(f"s_cmp_lt_u32 s{sBase}, s{sTot}")
    a("s_cbranch_scc1 Lround")
    a(f"v_lshlrev_b32 v16, 4, v{vLane}")
    a(f"s_cmp_ge_u32 s{sWave}, 4")
    a("s_cbranch_scc1 Lnow")
    a("s_waitcnt vmcnt(0)")
    a(f"s_mov_b32 m0, s{sReg}")
    a(f"s_lshl_b32 s{sT0}, s{sWave}, 11")
    a(f"s_add_u32 s{sT0}, s{sT0}, 4096")
    a(f"v_add_u32 v12, s{sT0}, v16")
    a(f"global_load_lds_dwordx4 v12, s[{sC}:{sC+1}]{HLD}")
    a(f"global_load_lds_dwordx4 v12, s[{sC}:{sC+1}] offset:1024{HLD}")
    a("Lnow:")
    a(f"v_lshrrev_b32 v13, 5, v{vLane}")
    a(f"s_lshl_b32 s{sT1}, s{sWave}, 5")
    a(f"v_lshl_add_u32 v14, v13, 4, s{sT1}")
    a(f"ds_read_b128 v[84:87], v14 offset:{INVM}")
    for i in range(14):
        a(f"v_cvt_pk_bf16_f32 v{68+i}, v{ACC+2*i}, v{ACC+2*i+1}")
    a(f"s_mul_i32 s{sT0}, s{sWave}, 4608")
    a(f"s_add_u32 s{sT0}, s{sT0}, {EA0}")
    a(f"v_mul_u32_u24 v12, 72, v{vLane}")
    a(f"v_add_u32 v12, s{sT0}, v12")
    a(f"v_bfe_u32 v14, v{vLane}, 2, 2")
    a("v_lshl_add_u32 v13, v13, 3, v14")
    a("v_mul_u32_u24 v13, 72, v13")
    a(f"v_bfe_u32 v14, v{vLane}, 4, 1")
    a("v_lshl_add_u32 v13, v14, 5, v13")
    a(f"v_and_b32 v14, 3, v{vLane}")
    a("v_lshl_add_u32 v13, v14, 3, v13")
    a(f"v_add_u32 v13, s{sT0}, v13")
    a(f"s_mul_i32 s{sT1}, s{sBin}, {NPB*512}")
    a(f"v_and_b32 v15, 31, v{vLane}")
    a(f"v_lshl_add_u32 v15, v15, 2, s{sT1}")
    a("s_waitcnt vmcnt(0) lgkmcnt(0)")
    for q in range(4):
        a(f"v_add_u32 v{84+q}, v{84+q}, v15")
    a("s_barrier")
    a(f"s_cmp_lt_u32 s{sWave}, 14")
    a("s_cbranch_scc1 Lsix")
    a(f"ds_write_b64 v12, v[80:81] offset:48")
    a("Lsix:")
    for i in range(6):
        a(f"ds_write_b64 v12, v[{68+2*i}:{69+2*i}] offset:{8*i}")
    for s in range(4):
        if s == 2: a("s_waitcnt lgkmcnt(7)")
        for m in range(2):
            a(f"ds_read_b64_tr_b16 v[{20+4*s+2*m}:{21+4*s+2*m}], v13 offset:{(16*s+4*m)*72}")
        for t in range(2):
            a(f"ds_read_b128 v[{36+8*s+4*t}:{39+8*s+4*t}], v16 offset:{REG*s+1024*t}")
    for s in range(4):
        a(f"s_waitcnt lgkmcnt({12-4*s})")
        for t in range(2):
            c = "0" if s == 0 else f"v[{ACC+16*t}:{ACC+16*t+15}]"
            a(f"v_mfma_f32_32x32x16_bf16 v[{ACC+16*t}:{ACC+16*t+15}], v[{20+4*s}:{23+4*s}], v[{36+8*s+4*t}:{39+8*s+4*t}], {c}")
    nop(12)
    for r in range(16):
        q, t = r // 4, r % 4
        if r == 12:
            a(f"s_cmp_lt_u32 s{sWave}, 14")
            a("s_cbranch_scc1 Lfin")
        a(f"v_cvt_pk_bf16_f32 v{36+r}, v{ACC+r}, v{ACC+16+r}")
        a(f"buffer_store_dword v{36+r}, v{84+q}, s[{sOsrd}:{sOsrd+3}], 0 offen offset:{t*128}{OPT['outst']}")
    a("Lfin:")
    if OPT["stamps"]:
        a("s_waitcnt vmcnt(0)")
        stamp(10)
        stamp_out(1, 11, sWs, sWave)
    a("Lend:")
    a("s_endpgm")

hdr = open("standalone__tensor_product_equiv_mace__graph.s.ref").read().split("; Override launch")[0]
out = hdr
out += f"; @launch {'kernel='+KN+' ' if OPT['lst'] else ''}grid=(256,1,1) block=(1024,1,1) lds={LDS}\n"
out += '.amdgcn_target "amdgcn-amd-amdhsa--gfx950"\n.text\n'
phase1(); phase2()
if OPT["drop"]:
    pats = {"tr":"ds_read_b64_tr", "pk":"v_pk_fma", "tp":"v_mfma_f32_4x4x4", "rw":"v_mfma_f32_32x32", "dot":"v_dot2", "rl":"v_readlane"}
    for t in OPT["drop"].split(","):
        i0, i1 = L.index("Lblk:"), L.index("Lloopend:")
        L[i0:i1] = [l for l in L[i0:i1] if pats[t] not in l]
out += "\n".join(("    " + l if l and not l.endswith(":") and not l.startswith(".") else l) for l in L) + "\n"
out += f""".section .rodata,"a"
.p2align 6
.amdhsa_kernel {KN}
  .amdhsa_next_free_vgpr 128
  .amdhsa_next_free_sgpr 96
  .amdhsa_accum_offset 128
  .amdhsa_group_segment_fixed_size 0
  .amdhsa_kernarg_size 88
  .amdhsa_user_sgpr_count 2
  .amdhsa_user_sgpr_kernarg_segment_ptr 1
  .amdhsa_system_sgpr_workgroup_id_x 1
  .amdhsa_float_denorm_mode_32 3
.end_amdhsa_kernel
"""
open(sys.argv[1], "w").write(out)
```

```python
import sys
OPT = dict(nocnt=0, csh=3, nbr=1, itn=1, tb=1, pn=10, slim=3, klim=0, isleep=0, gate=0, gn=0, k1n=10, cpos=4, kwait=1, gpos="B1", easched="B1:2,S2:1,S3:1,B4:1,S4:1", pfn=12, pfpos="B1", apre=0, ph=10, lprio=1, mid=1, ord=5, fsh=4, tsleep=16, csleep=4, ksleep=4,
           psleep=0, gsleep=2, spf=1, drop="", nodma=0, spin=-1, spin0=0, dbgwg=-1, safe=0, stamps=0, ntl=1, nts="sc1", hld="sc1", outst="sc1", lst=0)
for a in sys.argv[2:]:
    k, v = a.split("=")
    assert k in OPT, k
    OPT[k] = int(v) if v.lstrip("-").isdigit() else v
for k in ("nts", "hld", "outst"):
    OPT[k] = "" if OPT[k] in (0, "") else " " + str(OPT[k]).replace("+", " ")

KN = "standalone__tensor_product_equiv_mace__graph_kernel"
NN, NE = 25000, 800000
CH, NCH = 3200, 250
NPB = 98
MAGIC, MSH = 42800, 22
assert all((d*MAGIC) >> MSH == d//NPB for d in range(NN))
SPIN = 400000
WS_TAB, WS_CONST, WS_FLAG, WS_KS, WS_EA, WS_STAMP = 0, 0x40000, 0x50000, 0x100000, 0xB00000, 128 << 20
CAP, NB = 3552, 7
XT0 = (256-NCH)*15*OPT["itn"]*8192
XT1 = XT0 + OPT["pfn"]*512000
NSP = -(-(NN*512 - XT1) // 512000)
NT = " nt" if OPT["ntl"] else ""
NTS, HLD = OPT["nts"], OPT["hld"]
DPPM = "row_mask:0xf bank_mask:0xf"

L = []
def a(s):
    for ln in s.split("\n"):
        L.append(ln)
def nop(n):
    a(f"s_nop {n-1}")
def stamp(i):
    if OPT["stamps"]:
        a(f"s_memrealtime s[{64+2*i}:{65+2*i}]")
def stamp_out(k, n, sws, swave, tag=''):
    if not OPT["stamps"]: return
    a(f"s_cmp_lg_u32 s{swave}, {OPT['stamps']-1}")
    a(f"s_cbranch_scc1 Lnostamp{k}{tag}")
    if OPT["dbgwg"] >= 0 and k == 1:
        a(f"s_cmp_lg_u32 s2, {OPT['dbgwg']}")
        a(f"s_cbranch_scc1 Lnostamp{k}{tag}")
        a("s_waitcnt lgkmcnt(0)")
        a("s_mov_b64 exec, 1")
        a(f"v_mov_b32 v1, {WS_STAMP + OPT['dbgwg']*64}")
        a(f"global_load_dwordx4 v[4:7], v1, s[{sws}:{sws+1}] sc1")
        a(f"global_load_dword v8, v1, s[{sws}:{sws+1}] offset:16 sc1")
        a("s_waitcnt vmcnt(0)")
        j, j0 = OPT["spin"], OPT["spin0"]
        a(f"v_mov_b32 v9, v{4+j0}" if j0 < 5 else f"v_mov_b32 v9, s{64+2*(j0-5)}")
        a(f"v_sub_u32 v2, v{4+j}, v9" if j < 5 else f"v_sub_u32 v2, s{64+2*(j-5)}, v9")
        a("s_nop 1")
        a("v_readfirstlane_b32 s60, v2")
        a("s_min_u32 s60, s60, 10000")
        a("s_lshl_b32 s60, s60, 4")
        a("Lspin:")
        a("s_memrealtime s[58:59]")
        a("s_waitcnt lgkmcnt(0)")
        a("s_sub_u32 s58, s58, s84")
        a("s_cmp_lt_u32 s58, s60")
        a("s_cbranch_scc1 Lspin")
        a(f"Lnostamp{k}{tag}:")
        return
    a("s_waitcnt lgkmcnt(0)")
    a("s_mov_b64 exec, 1")
    a(f"s_lshl_b32 s62, s2, 6\ns_add_u32 s62, s62, {WS_STAMP + k*256*64}")
    a("v_mov_b32 v1, s62")
    for i in range(n):
        a(f"v_mov_b32 v2, s{64+2*i}")
        a(f"global_store_dword v1, v2, s[{sws}:{sws+1}] offset:{4*i}")
    a("s_mov_b64 exec, -1")
    a(f"Lnostamp{k}{tag}:")
def wavescan(x, fill=()):
    fill = list(fill)
    for d, rm in (("row_shr:1","0xf"), ("row_shr:2","0xf"), ("row_shr:4","0xf"), ("row_shr:8","0xf"), ("row_bcast:15","0xa"), ("row_bcast:31","0xc")):
        if fill: a(fill.pop(0)); nop(1)
        else: nop(2)
        a(f"v_add_u32_dpp v{x}, v{x}, v{x} {d} row_mask:{rm} bank_mask:0xf")
def scan4(c, s1, s2, x, tot, fill=()):
    a(f"v_add_u32 v{s1}, v{c}, v{c+1}")
    a(f"v_add_u32 v{s2}, v{s1}, v{c+2}")
    a(f"v_add_u32 v{tot}, v{s2}, v{c+3}")
    a(f"v_mov_b32 v{x}, v{tot}")
    wavescan(x, fill)

K1_HIST, K1_BASE, K1_INV, K1_KS, K1_EA, K1_END = 0, 1024, 2048, 14848, 53248, 155648
TABL, TABOK, KCNT, PCNT = K1_END, K1_END + 1024, K1_END + 1028, K1_END + 1032
MAP, INVM, EA0, LDS = 49152, 49664, 50176, 163840
GO, TOT, OVER = MAP + 496, MAP + 500, MAP + 504
assert EA0 + CAP*32 == LDS
REG = 3072
HISTO = 2784
DEG, RT, DD = 0, 512, 14848
CW = 10
assert DD + CAP*4 <= CW*REG
BAND = 70
PH = OPT["ph"]
APRE = OPT["apre"]
assert all((r*147) >> 11 == r//14 for r in range(128))
assert all(((x*12+12)*2731) >> 16 == (x+1)//2 for x in range(NB*32+1))
vLs, vT, vEm, vS16, vK, vP, vE, vAdr, vI = 1, [2,3,4], 5, 6, 7, 8, 9, 10, 11
vA, vB, vLane, vF = 12, 14, 18, 19
vWr, vEaA, vD, vRw, vPr, vSH, vAr, ACC = 20, 28, 36, 44, 60, 67, 68, 96
vCg, vSr = (44, 52) if APRE else (68, 76)
vKS, vS, vPos, vG = 28, 84, 88, 92
vSink = 67 if APRE else 44
sX, sOut, sKS, sEA, sC, sWs = 4, 6, 8, 10, 12, 14
sTab, sOsrd = 16, 20
sWave, sBin, sTot, sBase, sL, sN, sReg, sCnt, sR, sTail, sGi, sFirst, sBlk = 24,25,26,27,28,29,30,31,32,33,34,35,36
sM0 = [37,38,39]
sGoal, sPoll, sC0, sEm, sPf, sPx = 40, 41, 42, 43, 45, 46
sMk = 48
sI = 48
sEx = 56
sT0, sT1, sT2, sT3 = 58, 59, 60, 61
KORD = (3, 0, 1, 2)
def LN(tau):
    tau %= 16
    return (tau & 3) | ((tau & 4) << 1) | ((tau & 8) >> 1)

def phase1():
    a(f".globl {KN}\n.p2align 8\n.type {KN},@function\n{KN}:")
    stamp(0)
    a("s_cmp_ge_u32 s2, 256")
    a("s_cbranch_scc1 Lend")
    a("v_readfirstlane_b32 s14, v0")
    a("s_cmp_ge_u32 s14, 640")
    a("s_cbranch_scc1 Lspare")
    a(f"s_cmp_ge_u32 s2, {NCH}")
    a("s_cbranch_scc1 Lnochunk")
    a("s_load_dwordx4 s[4:7], s[0:1], 8")
    a("s_load_dwordx4 s[8:11], s[0:1], 24")
    a("s_load_dwordx2 s[12:13], s[0:1], 80")
    a("s_lshr_b32 s14, s14, 6")
    a("v_and_b32 v2, 63, v0")
    a("v_lshlrev_b32 v3, 2, v0")
    a("v_mov_b32 v4, 0")
    a("ds_write_b32 v3, v4")
    a("v_lshlrev_b32 v3, 2, v2")
    a("v_lshlrev_b32 v4, 3, v2")
    a("v_lshlrev_b32 v5, 4, v2")
    a(f"s_mul_i32 s15, s2, {CH}")
    a("s_mul_i32 s16, s14, 320")
    a("s_add_u32 s15, s15, s16")
    a("s_lshl_b32 s17, s15, 2")
    a("s_lshl_b32 s18, s15, 3")
    a("s_lshl_b32 s19, s15, 5")
    a("s_waitcnt lgkmcnt(0)")
    a("s_add_u32 s6, s6, s17\ns_addc_u32 s7, s7, 0")
    for k in range(5):
        a(f"global_load_dword v{10+k}, v3, s[6:7] offset:{k*256}{NT}")
    a("s_add_u32 s4, s4, s17\ns_addc_u32 s5, s5, 0")
    for k in range(5):
        a(f"global_load_dword v{15+k}, v3, s[4:5] offset:{k*256}{NT}")
    a("s_add_u32 s8, s8, s18\ns_addc_u32 s9, s9, 0")
    for k in range(5):
        a(f"global_load_dwordx2 v[{20+2*k}:{21+2*k}], v4, s[8:9] offset:{k*512}{NT}")
    a("s_barrier")
    a("s_add_u32 s10, s10, s19\ns_addc_u32 s11, s11, 0")
    a("s_lshl_b32 s20, s16, 5")
    a(f"s_add_u32 s20, s20, {K1_EA}")
    def bulk(lo, hi):
        for i in range(lo, hi):
            if i % 4 == 0:
                a(f"s_add_u32 m0, s20, {i*1024}")
                a(f"v_add_u32 v6, {i*1024}, v5")
            a(f"global_load_lds_dwordx4 v6, s[10:11] offset:{(i%4)*1024}{NT}")
    bulk(0, OPT["k1n"])
    a(f"s_mov_b32 s21, {MAGIC}")
    a(f"s_mov_b32 s22, {-NPB}")
    a("v_mov_b32 v7, 1")
    a(f"s_waitcnt vmcnt({10+OPT['k1n']})")
    stamp(1)
    for k in range(5):
        a(f"v_mul_u32_u24 v{30+k}, s21, v{10+k}")
        a(f"v_lshrrev_b32 v{30+k}, {MSH}, v{30+k}")
        a(f"v_mad_i32_i24 v{10+k}, v{30+k}, s22, v{10+k}")
        a(f"v_lshlrev_b32 v{30+k}, 2, v{30+k}")
        a(f"ds_add_rtn_u32 v{35+k}, v{30+k}, v7 offset:{K1_HIST}")
    a("s_waitcnt lgkmcnt(0)")
    a("s_barrier")
    a(f"ds_read_b128 v[40:43], v5 offset:{K1_HIST}")
    bulk(OPT["k1n"], 10)
    a("s_waitcnt vmcnt(10)")
    for k in range(5):
        a(f"v_lshlrev_b32 v{10+k}, 2, v{10+k}")
        a(f"v_lshl_or_b32 v{15+k}, v{15+k}, 17, v{10+k}")
    a("v_lshl_add_u32 v53, v2, 5, s20")
    a("s_waitcnt lgkmcnt(0)")
    scan4(40, 44, 45, 46, 47, [f"v_add_u32 v{53+k}, {k*2048}, v53" for k in range(1, 5)])
    a("v_sub_u32 v46, v46, v47")
    a("v_add_u32 v41, v46, v40")
    a("v_add_u32 v42, v46, v44")
    a("v_add_u32 v43, v46, v45")
    a("v_mov_b32 v40, v46")
    a(f"ds_write_b128 v5, v[40:43] offset:{K1_BASE}")
    for k in range(5):
        a(f"ds_read_b32 v{30+k}, v{30+k} offset:{K1_BASE}")
    a(f"s_mov_b32 s23, {K1_KS}")
    for k in range(5):
        a(f"s_waitcnt lgkmcnt({4-k+3*k})")
        a(f"v_add_u32 v{30+k}, v{30+k}, v{35+k}")
        a(f"v_lshlrev_b32 v{35+k}, 2, v{30+k}")
        a(f"v_mad_u32_u24 v{30+k}, v{30+k}, 12, s23")
        a(f"ds_write_b32 v{35+k}, v{53+k} offset:{K1_INV}")
        a(f"ds_write_b32 v{30+k}, v{15+k}")
        a(f"ds_write2_b32 v{30+k}, v{20+2*k}, v{21+2*k} offset0:1 offset1:2")
    a("s_mul_i32 s23, s14, 3840")
    a("v_add_u32 v8, s23, v5")
    a("v_lshrrev_b32 v9, 1, v2")
    a("v_add_lshl_u32 v9, v9, s16, 2")
    a(f"s_mul_i32 s23, s2, {CH*12}")
    a(f"s_add_u32 s23, s23, {WS_KS}")
    a("s_add_u32 s26, s12, s23\ns_addc_u32 s27, s13, 0")
    a(f"s_add_u32 s19, s19, {WS_EA}")
    a("s_add_u32 s28, s12, s19\ns_addc_u32 s29, s13, 0")
    a("v_and_b32 v10, 1, v2")
    a("v_lshlrev_b32 v10, 4, v10")
    a("v_add_u32 v6, 4096, v5")
    a("v_add_u32 v7, 8192, v5")
    a("s_waitcnt lgkmcnt(0)")
    a("s_barrier")
    stamp(2)
    for i in range(4):
        a(f"ds_read_b128 v[{12+4*i}:{15+4*i}], v8 offset:{K1_KS+i*1024}")
    for i in range(10):
        a(f"ds_read_b32 v{30+i}, v9 offset:{K1_INV+i*128}")
    for i in range(4):
        a(f"s_waitcnt lgkmcnt({13-i})")
        if i == 3: a("s_mov_b32 exec_hi, 0xffff")
        a(f"global_store_dwordx4 v8, v[{12+4*i}:{15+4*i}], s[26:27] offset:{i*1024}{NTS}")
    a("s_mov_b64 exec, -1")
    a("s_waitcnt lgkmcnt(0)")
    for i in range(10):
        a(f"v_add_u32 v{30+i}, v{30+i}, v10")
    a("s_waitcnt vmcnt(0)")
    a("s_barrier")
    stamp(3)
    for i in range(10):
        a(f"ds_read_b128 v[{40+4*i}:{43+4*i}], v{30+i}")
    for i in range(10):
        if OPT["gate"] and i == OPT["gn"]: a("s_barrier")
        a(f"s_waitcnt vmcnt({OPT['slim']-1}) lgkmcnt({9-i})" if OPT["slim"] and i >= OPT["slim"] else f"s_waitcnt lgkmcnt({9-i})")
        a(f"global_store_dwordx4 v{5+i//4}, v[{40+4*i}:{43+4*i}], s[28:29] offset:{(i%4)*1024}{NTS}")
        if i + 1 == OPT["csh"] and OPT["cpos"] == 5:
            a("s_waitcnt lgkmcnt(0)")
            a(f"v_mov_b32 v9, {PCNT+4}")
            a("ds_write_b32 v9, v9")
        if i + 1 == OPT["pn"]:
            a("s_waitcnt lgkmcnt(0)")
            a(f"v_mov_b32 v9, {PCNT}")
            a("v_mov_b32 v11, 1")
            a("s_mov_b64 exec, 1")
            a("ds_add_u32 v9, v11")
            a("s_mov_b64 exec, -1")
    stamp(4)
    stamp_out(0, 5, 12, 14)
    a("s_branch Ljoin")
    a("Lnochunk:")
    a(f"s_cmp_gt_u32 s2, {NCH}")
    a("s_cbranch_scc1 Lprep3")
    a("s_load_dwordx4 s[4:7], s[0:1], 40")
    a("s_load_dwordx2 s[8:9], s[0:1], 56")
    a("s_load_dwordx2 s[12:13], s[0:1], 80")
    a("s_lshr_b32 s14, s14, 6")
    a("v_and_b32 v2, 63, v0")
    a("v_lshlrev_b32 v5, 4, v2")
    a("s_waitcnt lgkmcnt(0)")
    a(f"s_add_u32 s12, s12, {WS_CONST}\ns_addc_u32 s13, s13, 0")
    def gather8(base, offs, dstoff_s):
        for k in range(8):
            a(f"global_load_ushort v{10+k}, v3, s[{base}:{base+1}] offset:{offs[k]}")
        a("s_waitcnt vmcnt(0)")
        for k in range(4):
            a(f"v_lshl_or_b32 v{20+k}, v{11+2*k}, 16, v{10+2*k}")
        a(f"v_add_u32 v6, s{dstoff_s}, v5")
        a("global_store_dwordx4 v6, v[20:23], s[12:13] sc1")
        a("s_waitcnt vmcnt(0)")
    a("s_cmp_ge_u32 s14, 8")
    a("s_cbranch_scc1 Lprep2")
    a("s_lshr_b32 s15, s14, 1")
    a("s_and_b32 s16, s14, 1")
    a("s_lshl_b32 s15, s15, 11")
    a("s_lshl_b32 s16, s16, 1")
    a("s_add_u32 s15, s15, s16")
    a("v_lshrrev_b32 v3, 5, v2")
    a("v_lshlrev_b32 v3, 10, v3")
    a("v_and_b32 v4, 31, v2")
    a("v_lshl_add_u32 v3, v4, 2, v3")
    a("v_add_u32 v3, s15, v3")
    a("s_lshl_b32 s17, s14, 10")
    a("s_add_u32 s17, s17, 4096")
    gather8(8, [k*128 for k in range(8)], 17)
    a("s_branch Lprep3")
    a("Lprep2:")
    a("s_sub_u32 s14, s14, 8")
    a("s_lshl_b32 s17, s14, 10")
    a("v_lshl_add_u32 v3, v2, 1, s17")
    gather8(6, [k*128 for k in range(8)], 17)
    a("s_lshl_b32 s15, s14, 4")
    a("v_and_b32 v3, 3, v2")
    a("v_lshl_add_u32 v3, v3, 1, s15")
    a("s_add_u32 s17, s17, 2048")
    gather8(4, [(k//2)*32 + (k%2)*8 for k in range(8)], 17)
    a("Lprep3:")
    a("s_barrier")
    a("Lidle:")
    if OPT["itn"]:
        a("s_load_dwordx2 s[4:5], s[0:1], 0")
        a(f"s_sub_u32 s15, s2, {NCH}")
        a("s_mul_i32 s15, s15, 960")
        a("v_add_lshl_u32 v3, v0, s15, 7")
        a("s_waitcnt lgkmcnt(0)")
        for i in range(OPT["itn"]):
            if i: a(f"v_add_u32 v3, {(256-NCH)*15*8192}, v3")
            a("global_load_dword v4, v3, s[4:5]")
        a("s_waitcnt vmcnt(0)")
        a("s_barrier")
    a("s_branch Ljoin")
    a("Lspare:")
    a("s_cmp_ge_u32 s14, 960")
    a("s_cbranch_scc1 Lw15")
    a("s_barrier")
    a(f"s_cmp_ge_u32 s2, {NCH}")
    a("s_cbranch_scc1 Lidle")
    def xtouch1():
        a("s_cmp_ge_u32 s14, 896")
        a("s_cbranch_scc1 Lnotouch1")
        a("global_load_dword v44, v3, s[4:5]")
        a("Lnotouch1:")
    if OPT["pfpos"] in ("P2", "P3", "P4"):
        a("s_load_dwordx2 s[4:5], s[0:1], 0")
        a("s_lshr_b32 s15, s14, 6")
        a("s_lshl_b32 s16, s2, 2")
        a("s_add_u32 s15, s15, s16")
        a("s_sub_u32 s15, s15, 10")
        a(f"s_mul_i32 s15, s15, {OPT['pfn']*512}")
        a("v_and_b32 v3, 63, v0")
        a(f"v_min_u32 v3, {4*OPT['pfn']-1}, v3")
        a("v_lshl_add_u32 v3, v3, 7, s15")
        a("s_waitcnt lgkmcnt(0)")
    for i in (2, 3, 4):
        a("s_barrier")
        if OPT["pfpos"] == f"P{i}": xtouch1()
    if OPT["gate"]: a("s_barrier")
    a("s_branch Ljoin")
    a("Lw15:")
    a("s_setprio 3")
    a("s_load_dwordx2 s[12:13], s[0:1], 80")
    a("s_load_dwordx2 s[4:5], s[0:1], 72")
    a("v_and_b32 v2, 63, v0")
    a("s_and_b32 s15, s2, 7\ns_lshl_b32 s15, s15, 5\ns_lshr_b32 s16, s2, 3\ns_add_u32 s15, s15, s16")
    TB = OPT["tb"]; PB = 128 // TB
    def colbase(sb, st):
        a(f"s_lshl_b32 s{st}, s{sb}, 2")
        if TB > 1:
            a(f"s_and_b32 s62, s{st}, {PB-1}")
            a(f"s_sub_u32 s{st}, s{st}, s62")
            a(f"s_mul_i32 s{st}, s{st}, {TB}")
            a(f"s_add_u32 s{st}, s{st}, s62")
    global COLBASE, COLOFF
    COLBASE = colbase
    COLOFF = [(j // TB) * TB * 1024 + (j % TB) * PB for j in range(4)]
    colbase(15, 15)
    a("v_lshl_add_u32 v14, v2, 12, s15")
    a(f"s_lshl_b32 s16, s2, {OPT['fsh']}")
    a(f"s_add_u32 s16, s16, {WS_FLAG}")
    a("v_mov_b32 v3, s16")
    for j in range(4): a(f"v_mov_b32 v{4+j}, -1")
    for j in range(4): a(f"v_mov_b32 v{24+j}, 0")
    a("s_and_b32 s16, s2, 3\ns_lshl_b32 s16, s16, 6")
    a("v_mov_b32 v9, s16\nv_mov_b32 v10, 1")
    a("v_lshlrev_b32 v11, 2, v2")
    a("v_lshlrev_b32 v12, 4, v2")
    a(f"s_and_b32 s16, s2, {TB-1}")
    a("s_sub_u32 s17, s2, s16")
    a("s_lshl_b32 s17, s17, 10")
    a(f"s_mul_i32 s16, s16, {PB}")
    a("s_add_u32 s17, s17, s16")
    a(f"v_and_b32 v1, {PB-1}, v12")
    a("v_sub_u32 v8, v12, v1")
    a(f"v_mad_u32_u24 v1, v8, {TB}, v1")
    a("v_add_u32 v1, s17, v1")
    a(f"v_mov_b32 v15, {TABOK}")
    a("ds_write_b128 v15, v[24:27]")
    a(f"s_mov_b32 s10, {256*1024}\ns_mov_b32 s11, 0x20000")
    a("s_waitcnt lgkmcnt(0)")
    a("s_mov_b32 s8, s12\ns_mov_b32 s9, s13")
    a("global_store_dwordx4 v1, v[4:7], s[12:13] sc1")
    a("s_mov_b64 exec, 1")
    a("global_store_dword v3, v4, s[12:13] sc1")
    a(f"s_cmp_ge_u32 s2, {NCH}")
    a("s_cbranch_scc1 Lw15_1")
    a("s_barrier")
    a("Lw15_1:")
    a("s_waitcnt vmcnt(0)")
    if OPT["nocnt"] < 2: a("global_atomic_add v9, v10, s[4:5] sc1")
    a("s_mov_b64 exec, -1")
    a(f"s_mov_b32 s17, {SPIN}")
    a("s_barrier")
    a(f"s_cmp_lt_u32 s2, {NCH}")
    a("s_cbranch_scc1 Lw15_a")
    a("global_store_dwordx4 v1, v[24:27], s[12:13] sc1")
    for i in range(OPT["isleep"]): a("s_sleep 100")
    if OPT["itn"]: a("s_barrier")
    a("s_branch Lw15_poll")
    a("Lw15_a:")
    a(f"ds_read_b128 v[16:19], v12 offset:{K1_HIST}")
    a(f"s_mul_i32 s16, s2, {CH}")
    a("s_waitcnt lgkmcnt(0)")
    scan4(16, 20, 21, 22, 23)
    a("v_sub_u32 v22, v22, v23")
    a("v_add_u32 v22, s16, v22")
    a("v_add_u32 v25, v22, v16")
    a("v_add_u32 v26, v22, v20")
    a("v_add_u32 v27, v22, v21")
    a("v_lshl_or_b32 v24, v16, 20, v22")
    for j in range(1, 4): a(f"v_lshl_or_b32 v{24+j}, v{16+j}, 20, v{24+j}")
    if OPT["cpos"] >= 3: a("s_barrier")
    if OPT["cpos"] == 4:
        a("s_barrier")
        a("global_store_dwordx4 v1, v[24:27], s[12:13] sc1")
    if OPT["cpos"] == 5:
        a("s_barrier")
        a("global_store_dwordx4 v1, v[24:27], s[12:13] sc1")
        a("Lw15_q:")
        a("s_sleep 2")
        a("ds_read_b32 v22, v15 offset:12")
        a("s_waitcnt lgkmcnt(0)")
        a("v_readfirstlane_b32 s18, v22")
        a("s_cmp_eq_u32 s18, 0")
        a("s_cbranch_scc1 Lw15_q")
    stamp(1)
    a("s_branch Lw15_poll0")
    a("Lw15_poll:")
    a(f"s_sleep {OPT['tsleep']}")
    a("Lw15_poll0:")
    if OPT["nocnt"]: a("s_branch Lw15_cdone")
    a("global_load_dword v13, v11, s[4:5] sc1")
    a("s_sub_u32 s17, s17, 1")
    a("s_cbranch_scc1 Lend")
    a("s_waitcnt vmcnt(0)")
    for j in range(4): a(f"v_readlane_b32 s{18+j}, v13, {16*j}")
    a("s_add_u32 s18, s18, s19\ns_add_u32 s20, s20, s21\ns_add_u32 s18, s18, s20")
    a("s_cmp_lt_u32 s18, 256")
    a("s_cbranch_scc1 Lw15_poll")
    a("Lw15_cdone:")
    stamp(2)
    a(f"s_cmp_ge_u32 s2, {NCH}")
    a("s_cbranch_scc1 Lw15_n" if OPT["nbr"] else "s_cbranch_scc1 Lw15_c")
    if OPT["cpos"] < 3: a("s_barrier")
    if OPT["cpos"] < 4:
        a("s_barrier")
        a("global_store_dwordx4 v1, v[24:27], s[12:13] sc1")
    if OPT["kwait"]:
        a("Lw15_k:")
        a("s_sleep 2")
        a(f"ds_read_b32 v22, v15 offset:{8 if OPT['pn'] else 4}")
        a("s_waitcnt lgkmcnt(0)")
        a("v_readfirstlane_b32 s18, v22")
        a(f"s_cmp_lt_u32 s18, {OPT['kwait']}")
        a("s_cbranch_scc1 Lw15_k")
    a("Lw15_c:")
    stamp(3)
    def column():
        for j in range(4):
            a(f"buffer_load_dword v{16+j}, v14, s[8:11], 0 offen offset:{COLOFF[j]} sc1")
    column()
    a("Lw15_col:")
    a("s_waitcnt vmcnt(0)")
    a("v_max_u32 v20, v16, v17")
    a("v_max3_u32 v20, v18, v19, v20")
    a("v_cmp_eq_u32 vcc, -1, v20")
    a("s_and_b64 exec, exec, vcc")
    a("s_cbranch_scc0 Lw15_e")
    a(f"s_sleep {OPT['csleep']}")
    column()
    a("s_sub_u32 s17, s17, 1")
    a("s_cbranch_scc0 Lw15_col")
    a("s_endpgm")
    if OPT["nbr"]:
        a("Lw15_n:")
        a(f"global_load_dword v13, v3, s[12:13] offset:{-(8 << OPT['fsh'])} sc1")
        a("s_sub_u32 s17, s17, 1")
        a("s_cbranch_scc1 Lend")
        a("s_waitcnt vmcnt(0)")
        a("v_cmp_eq_u32 vcc, 0, v13")
        a("s_cbranch_vccnz Lw15_c")
        a(f"s_sleep {OPT['tsleep']}")
        a("s_branch Lw15_n")
    a("Lw15_e:")
    a("s_mov_b64 exec, -1")
    a(f"v_add_u32 v12, {TABL}, v12")
    a("v_lshlrev_b32 v13, 3, v2")
    a("v_mov_b32 v20, 0\nv_mov_b32 v21, 0")
    a("ds_write_b128 v12, v[16:19]")
    a(f"ds_write_b64 v13, v[20:21] offset:{MAP}")
    a("ds_write_b32 v15, v10")
    if OPT["gate"]:
        a(f"s_cmp_ge_u32 s2, {NCH}")
        a("s_cbranch_scc1 Lw15_h")
        a("s_barrier")
        a("Lw15_h:")
    a("s_setprio 0")
    stamp(4)
    if OPT["stamps"] == 16:
        a("s_mov_b32 s14, 15")
        stamp_out(0, 5, 12, 14, "w")
    a("s_waitcnt lgkmcnt(0)")

def phase2():
    sched = dict((k, int(v)) for k, v in (x.split(":") for x in OPT["easched"].split(",")))
    assert sum(sched.values()) == 6
    STAGES = ["B1", "S2", "B2", "S3", "B3", "B4", "S4", "C", "X", "A4", "A8"]
    GP = OPT["gpos"]
    assert all(STAGES.index(k) >= STAGES.index(GP) for k in sched), "no edge_attr load before the flags are checked"
    a("Ljoin:")
    a(f"s_load_dwordx2 s[{sWs}:{sWs+1}], s[0:1], 80")
    a(f"s_load_dwordx2 s[{sX}:{sX+1}], s[0:1], 0")
    a(f"s_load_dwordx2 s[{sOut}:{sOut+1}], s[0:1], 64")
    a(f"v_lshrrev_b32 v81, 6, v0")
    a(f"v_and_b32 v{vLane}, 63, v0")
    a(f"v_readfirstlane_b32 s{sWave}, v81")
    a(f"s_and_b32 s{sBin}, s2, 7")
    a(f"s_lshl_b32 s{sBin}, s{sBin}, 5")
    a(f"s_lshr_b32 s{sT0}, s2, 3")
    a(f"s_add_u32 s{sBin}, s{sBin}, s{sT0}")
    a(f"v_lshlrev_b32 v81, 4, v{vLane}")
    a(f"s_mov_b32 s{sTab+2}, {256*1024}")
    a(f"s_mov_b32 s{sTab+3}, 0x20000")
    a(f"s_mov_b32 s{sBase}, 0\ns_mov_b32 s{sL}, {CAP}\ns_mov_b32 s{sFirst}, 1\ns_mov_b32 s{sPoll}, 1\ns_mov_b32 s{sGoal}, 6")
    a(f"s_mov_b32 s{sEx}, 0x0f0f0f0f\ns_mov_b32 s{sEx+1}, 0xf0f0f0f0")
    a(f"s_mov_b32 s{sC0}, 0xc000")
    a(f"s_mul_i32 s{sReg}, s{sWave}, {REG}")
    a(f"s_lshl_b32 s{sEm}, s{sWave}, 11")
    a(f"s_add_u32 s{sEm}, s{sEm}, {EA0}")
    a(f"v_and_b32 v{vS16}, 1, v{vLane}")
    a(f"v_and_b32 v{vF}, 0x3c1, v0")
    a(f"v_bfe_u32 v82, v{vLane}, 1, 1")
    a(f"v_lshl_add_u32 v{vF}, v82, 5, v{vF}")
    a(f"v_lshrrev_b32 v82, 2, v{vLane}")
    a(f"v_lshl_add_u32 v{vF}, v82, 1, v{vF}")
    a(f"v_lshlrev_b32 v{vS16}, 4, v{vS16}")
    for i in range(32):
        a(f"v_mov_b32 v{ACC+i}, 0")
    a("s_waitcnt lgkmcnt(0)")
    a(f"s_mov_b32 s{sTab}, s{sWs}\ns_mov_b32 s{sTab+1}, s{sWs+1}")
    a(f"s_add_u32 s{sC}, s{sWs}, {WS_CONST}\ns_addc_u32 s{sC+1}, s{sWs+1}, 0")
    a(f"s_add_u32 s{sKS}, s{sWs}, {WS_KS}\ns_addc_u32 s{sKS+1}, s{sWs+1}, 0")
    a(f"s_add_u32 s{sEA}, s{sWs}, {WS_EA}\ns_addc_u32 s{sEA+1}, s{sWs+1}, 0")
    a(f"s_mov_b32 s{sOsrd}, s{sOut}\ns_mov_b32 s{sOsrd+1}, s{sOut+1}\ns_mov_b32 s{sOsrd+2}, {NN*512}\ns_mov_b32 s{sOsrd+3}, 0x20000")
    if OPT["spf"]:
        ns = NSP
        a(f"s_lshr_b32 s{sPf}, s{sWave}, 2")
        a(f"s_mul_i32 s{sT0}, s{sPf}, 1000")
        a(f"s_min_u32 s{sT1}, s2, 249")
        a(f"s_lshl_b32 s{sT1}, s{sT1}, 2")
        a(f"s_add_u32 s{sT0}, s{sT0}, s{sT1}")
        a(f"s_and_b32 s{sT1}, s{sWave}, 3")
        a(f"s_add_u32 s{sT0}, s{sT0}, s{sT1}")
        a(f"s_mul_i32 s{sT0}, s{sT0}, {ns*128}")
        a(f"s_add_u32 s{sT0}, s{sT0}, {NN*512 - NSP*512000}")
        a(f"s_add_u32 s{sPx}, s{sX}, s{sT0}\ns_addc_u32 s{sPx+1}, s{sX+1}, 0")
    def ldswait(tag, addr, cmp, two=False):
        a(f"v_mov_b32 v82, {addr}")
        a(f"s_mov_b32 s{sT1}, {SPIN*8}")
        a(f"Lw{tag}:")
        a("ds_read_b64 v[76:77], v82" if two else "ds_read_b32 v76, v82")
        a(f"s_sub_u32 s{sT1}, s{sT1}, 1")
        a("s_cbranch_scc1 Lend")
        a("s_waitcnt lgkmcnt(0)")
        a(f"v_readfirstlane_b32 s{sT0}, v76")
        a(cmp)
        a(f"s_cbranch_scc1 Lw{tag}d")
        a(f"s_sleep {OPT['gsleep']}")
        a(f"s_branch Lw{tag}")
        a(f"Lw{tag}d:")
    a(f"s_cmp_ge_u32 s{sWave}, 10")
    a("s_cbranch_scc1 Lhelper")
    a(f"v_mov_b32 v82, {KCNT}")
    a("v_mov_b32 v83, 1")
    a(f"s_lshl_b32 s{sT0}, s2, {OPT['fsh']}")
    a(f"s_add_u32 s{sT0}, s{sT0}, {WS_FLAG}")
    a(f"v_mov_b32 v84, s{sT0}")
    a("v_mov_b32 v85, 0")
    a("s_mov_b64 exec, 1")
    a("s_waitcnt vmcnt(0)")
    a("ds_add_rtn_u32 v83, v82, v83")
    a("s_waitcnt lgkmcnt(0)")
    a(f"v_readfirstlane_b32 s{sT0}, v83")
    a(f"s_cmp_lg_u32 s{sT0}, 9")
    a("s_cbranch_scc1 Lnoflag")
    a(f"global_store_dword v84, v85, s[{sWs}:{sWs+1}] sc1")
    a("Lnoflag:")
    a("s_mov_b64 exec, -1")
    a("s_branch Lgo")
    a("Lhelper:")
    a(f"s_cmp_lt_u32 s{sWave}, 15")
    a("s_cbranch_scc1 Lexpand")
    a(f"v_lshlrev_b32 v77, 1, v{vLane}")
    a("v_sub_u32 v78, 0x7f, v77")
    a("v_sub_u32 v79, 0x7e, v77")
    a("v_lshlrev_b32 v77, 2, v77")
    a("v_mov_b32 v82, 0x7f000000")
    a("v_mov_b32 v83, 0x7f000000")
    a(f"ds_write_b64 v77, v[78:79] offset:{DEG}")
    a(f"ds_write_b64 v77, v[82:83] offset:{INVM}")
    a("s_branch Lgo")
    a("Lexpand:")
    ldswait("tab", TABOK, f"s_cmp_lg_u32 s{sT0}, 0")
    a(f"v_add_u32 v82, {TABL}, v81")
    a("ds_read_b128 v[52:55], v82")
    a("s_waitcnt lgkmcnt(0)")
    a("Lhavetab:")
    a(f"s_sub_u32 s{sT2}, s{sWave}, 10")
    for j in range(4):
        a(f"v_lshrrev_b32 v{56+j}, 20, v{52+j}")
    scan4(56, 76, 77, 78, 79, [f"v_and_b32 v{60+j}, 0xfffff, v{52+j}" for j in range(4)])
    a("v_sub_u32 v64, v78, v79")
    a(f"v_readlane_b32 s{sTot}, v78, 63")
    a("v_add_u32 v65, v64, v56")
    a("v_add_u32 v66, v64, v76")
    a("v_add_u32 v67, v64, v77")
    a(f"s_sub_u32 s{sN}, s{sTot}, s{sBase}")
    a(f"s_min_u32 s{sN}, s{sN}, s{sL}")
    a(f"s_cmp_lg_u32 s{sN}, s{sTot}")
    a("s_cbranch_scc1 Lclip")
    a("Lnoclip:")
    a("v_max_u32 v80, v56, v57")
    a("v_max3_u32 v80, v58, v59, v80")
    for j in range(4):
        a(f"v_sub_u32 v{60+j}, v{60+j}, v{64+j}")
        a(f"v_add_lshl_u32 v{64+j}, v{64+j}, s{sT2}, 2")
    a("Lexp:")
    for it in range(3):
        for j in range(4):
            a(f"v_cmp_lt_u32 s[{sMk+2*j}:{sMk+2*j+1}], s{sT2}, v{56+j}")
        a(f"s_add_u32 s{sT2}, s{sT2}, 5")
        a(f"v_cmp_lt_u32 vcc, s{sT2}, v80")
        for j in range(4):
            a(f"s_mov_b64 exec, s[{sMk+2*j}:{sMk+2*j+1}]")
            a(f"ds_write_b32 v{64+j}, v{60+j} offset:{DD+20*it}")
        a("s_mov_b64 exec, -1")
        a("s_cbranch_vccz Lexpdone")
    a("s_waitcnt lgkmcnt(0)")
    for j in range(4):
        a(f"v_add_u32 v{64+j}, 60, v{64+j}")
    a("s_branch Lexp")
    a("Lexpdone:")
    a("v_mov_b32 v76, 0")
    a(f"v_mov_b32 v77, s{sTot}")
    a(f"ds_write_b32 v76, v77 offset:{TOT}")
    a("Lgo:")
    a(f"v_lshlrev_b32 v{vK}, 2, v{vF}")
    a(f"v_mov_b32 v{vP}, 0")
    for k in range(4):
        a(f"v_add_u32 v{vS+k}, {1024*k}, v{vF}")
    stamp(0)
    a("s_waitcnt lgkmcnt(0)")
    a("s_barrier")
    stamp(1)
    a(f"ds_read_b32 v{vP}, v{vP} offset:{TOT}")
    for k in KORD:
        a(f"ds_read_b32 v{vG+k}, v{vK} offset:{DD+4096*k}")
    a(f"s_sub_u32 s{sT2}, s{sWave}, {CW}")
    a(f"s_cmp_ge_u32 s{sT2}, 4")
    a("s_cbranch_scc1 Lnoc")
    a(f"s_mov_b32 m0, s{sReg}")
    a(f"s_lshl_b32 s{sT0}, s{sT2}, 10")
    a(f"v_add_u32 v82, s{sT0}, v81")
    a(f"global_load_lds_dwordx4 v82, s[{sC}:{sC+1}]{HLD}")
    a("Lnoc:")
    a("s_waitcnt lgkmcnt(4)")
    a(f"v_readfirstlane_b32 s{sTot}, v{vP}")
    a(f"s_sub_u32 s{sN}, s{sTot}, s{sBase}")
    a(f"s_min_u32 s{sN}, s{sN}, s{sL}")
    for k in KORD:
        a(f"v_cmp_gt_u32 s[{sMk+2*k}:{sMk+2*k+1}], s{sN}, v{vS+k}")
    def skip3(tag):
        a(f"s_cmp_eq_u64 s[{sMk+6}:{sMk+7}], 0")
        a(f"s_cbranch_scc1 Ls3{tag}")
    tagn = [0]
    def recs(fn):
        for k in range(3): fn(k)
        tagn[0] += 1
        skip3(f"r{tagn[0]}")
        fn(3)
        a(f"Ls3r{tagn[0]}:")
    for i, k in enumerate(KORD):
        a(f"s_waitcnt lgkmcnt({3-i})")
        a(f"v_add_u32 v{vG+k}, v{vG+k}, v{vS+k}")
        a(f"v_cndmask_b32 v{vG+k}, 0, v{vG+k}, s[{sMk+2*k}:{sMk+2*k+1}]")
        if OPT["safe"]: a(f"v_min_u32 v{vG+k}, {NE-1}, v{vG+k}")
        a(f"v_mul_u32_u24 v{vPos+k}, 12, v{vG+k}")
        if k == 3: skip3("a")
        a(f"global_load_dwordx3 v[{vKS+4*k}:{vKS+2+4*k}], v{vPos+k}, s[{sKS}:{sKS+1}]{HLD}")
        if k == 3: a("Ls3a:")
    for k in range(4):
        a(f"v_lshlrev_b32 v{vG+k}, 5, v{vG+k}")
    stamp(2)
    def xtouch(tag):
        a(f"s_cmp_lt_u32 s{sWave}, 12")
        a(f"s_cbranch_scc1 Lnotouch{tag}")
        a(f"s_min_u32 s{sT0}, s2, 249")
        a(f"s_lshl_b32 s{sT0}, s{sT0}, 2")
        a(f"s_add_u32 s{sT0}, s{sT0}, s{sWave}")
        a(f"s_sub_u32 s{sT0}, s{sT0}, 12")
        a(f"s_mul_i32 s{sT0}, s{sT0}, {OPT['pfn']*512}")
        a(f"s_add_u32 s{sT0}, s{sT0}, {XT0}")
        a(f"v_min_u32 v{vAdr}, {4*OPT['pfn']-1}, v{vLane}")
        a(f"v_lshl_add_u32 v{vAdr}, v{vAdr}, 7, s{sT0}")
        a(f"global_load_dword v{vSink}, v{vAdr}, s[{sX}:{sX+1}]")
        a(f"Lnotouch{tag}:")
    a(f"s_cmp_ge_u32 s{sWave}, 2")
    a("s_cbranch_scc1 Lnort")
    a("v_lshlrev_b32 v77, 2, v0")
    a(f"v_subrev_u32 v52, {BAND}, v0")
    a(f"v_cmp_le_u32 vcc, {BAND+14}, v0")
    a("v_cmp_gt_u32 s[58:59], 14, v52")
    a("v_subrev_u32 v79, 14, v0")
    a("v_lshrrev_b32 v80, 1, v52")
    a("v_cndmask_b32 v76, v0, v79, vcc")
    a("v_mul_u32_u24 v79, 147, v76")
    a("v_lshrrev_b32 v79, 11, v79")
    a("v_mad_i32_i24 v76, v79, -14, v76")
    a("v_and_b32 v53, 1, v79")
    a("v_cmp_eq_u32 vcc, 1, v53")
    a("v_sub_u32 v53, 13, v76")
    a("v_xor_b32 v52, v52, v80")
    a("v_and_or_b32 v52, v52, 1, 14")
    a("v_cndmask_b32 v76, v76, v53, vcc")
    a("v_cndmask_b32 v79, v79, v80, s[58:59]")
    a("v_cndmask_b32 v76, v76, v52, s[58:59]")
    a(f"v_mul_u32_u24 v52, {REG + (32 << 16)}, v76")
    a("v_lshl_or_b32 v52, v79, 2, v52")
    a("v_and_b32 v53, 1, v79")
    a("v_lshl_add_u32 v52, v53, 20, v52")
    a("v_lshrrev_b32 v79, 1, v79")
    a("v_lshl_add_u32 v52, v79, 18, v52")
    a(f"ds_write_b32 v77, v52 offset:{RT}")
    a("Lnort:")
    a("v_lshrrev_b32 v76, 3, v0")
    a("v_lshlrev_b32 v15, 2, v76")
    a("v_and_b32 v16, 7, v0")
    a("v_lshlrev_b32 v16, 6, v16")
    a("v_mov_b32 v17, 0x80")
    a(f"v_lshl_add_u32 v82, v{vLane}, 2, s{sReg}")
    a("v_mov_b32 v83, 0")
    a("s_waitcnt vmcnt(0)")
    stamp(3)
    for k in range(4):
        a(f"v_and_b32 v{vKS+3+4*k}, 0x1fc, v{vKS+4*k}")
    def eadma(n):
        k, h = n // 2, n % 2
        a(f"s_add_u32 m0, s{sEm}, {k*32768 + h*1024}")
        a(f"v_add_u32_dpp v{vAdr}, v{vG+k}, v{vS16} quad_perm:[{2*h},{2*h},{2*h+1},{2*h+1}] {DPPM}")
        a(f"global_load_lds_dwordx4 v{vAdr}, s[{sEA}:{sEA+1}]{HLD}")
    nxt = [0]
    def ea_stage(name):
        for _ in range(sched.get(name, 0)):
            eadma(nxt[0]); nxt[0] += 1
            if nxt[0] == 6:
                skip3("b")
                eadma(6); eadma(7)
                a("Ls3b:")
    def sync(name):
        if OPT["pfpos"] == name or GP == name:
            a(f"s_cmp_eq_u32 s{sPoll}, 0")
            a(f"s_cbranch_scc1 Lpolled{name}")
            if OPT["pfpos"] == name: xtouch(name)
        if GP == name:
            a(f"s_mov_b32 s{sPoll}, 0")
            a(f"s_cmp_ge_u32 s{sWave}, 4")
            a(f"s_cbranch_scc1 Lpolled{name}")
            a(f"v_min_u32 v{vK}, {NCH-1}, v0")
            a(f"v_lshlrev_b32 v{vK}, {OPT['fsh']}, v{vK}")
            a(f"v_add_u32 v{vK}, {WS_FLAG}, v{vK}")
            a(f"s_mov_b32 s{sT3}, {SPIN}")
            a("Lflagpoll:")
            if OPT["psleep"]: a(f"s_sleep {OPT['psleep']}")
            a(f"global_load_dword v{vP}, v{vK}, s[{sWs}:{sWs+1}] sc1")
            a(f"s_sub_u32 s{sT3}, s{sT3}, 1")
            a("s_cbranch_scc1 Lend")
            a("s_waitcnt vmcnt(0)")
            a(f"v_cmp_ne_u32 vcc, 0, v{vP}")
            a("s_and_b64 exec, exec, vcc")
            a("s_cbranch_scc1 Lflagpoll")
            a("s_mov_b64 exec, -1")
        if OPT["pfpos"] == name or GP == name: a(f"Lpolled{name}:")
        a("s_waitcnt lgkmcnt(0)")
        a("s_barrier")
    a(f"s_cmp_eq_u32 s{sFirst}, 0")
    a("s_cbranch_scc1 Llatermap")
    a(f"s_mov_b32 s{sFirst}, 0")
    if OPT["pfpos"] == "F": xtouch("F")
    def f(k):
        a(f"s_mov_b64 exec, s[{sMk+2*k}:{sMk+2*k+1}]")
        a(f"ds_add_u32 v{vKS+3+4*k}, v17 offset:{DEG}")
    recs(f)
    a("s_mov_b64 exec, -1")
    sync("B1")
    stamp(4)
    a(f"ds_write_b32 v82, v83 offset:{HISTO}")
    ea_stage("B1")
    a(f"s_cmp_ge_u32 s{sWave}, 13")
    a("s_cbranch_scc1 Lnorank")
    a(f"ds_read_b32 v77, v15 offset:{DEG}")
    for i in range(4):
        a(f"ds_read_b128 v[{52+4*i}:{55+4*i}], v16 offset:{DEG+16*i}" if not (APRE and i == 3) else f"ds_read_b128 v[68:71], v16 offset:{DEG+48}")
    a("v_mov_b32 v78, 0")
    a(f"v_cmp_gt_u32 vcc, {NPB}, v76")
    a("v_lshlrev_b32 v76, 9, v76")
    for i in range(16):
        r = 52 + i + (4 if APRE and i >= 12 else 0)
        if i % 4 == 0: a(f"s_waitcnt lgkmcnt({3-i//4})")
        a(f"v_sub_u32 v{r}, v77, v{r}")
        a(f"v_alignbit_b32 v78, v78, v{r}, 31")
    a("v_bcnt_u32_b32 v78, v78, 0")
    a("v_lshlrev_b32 v78, 2, v78")
    for d in ("quad_perm:[1,0,3,2]", "quad_perm:[2,3,0,1]", "row_half_mirror"):
        nop(2)
        a(f"v_add_u32_dpp v78, v78, v78 {d} {DPPM}")
    a(f"ds_read_b32 v78, v78 offset:{RT}")
    a("s_mov_b64 exec, vcc")
    a("s_waitcnt lgkmcnt(0)")
    a("v_lshrrev_b32 v79, 16, v78")
    a("v_and_b32 v78, 0xffff, v78")
    a(f"ds_write_b32 v79, v76 offset:{INVM}")
    a(f"ds_write_b32 v15, v78 offset:{MAP}")
    a("s_mov_b64 exec, -1")
    a("Lnorank:")
    ea_stage("S2")
    later = list(range(nxt[0]))
    assert nxt[0] < 6
    a("Lhavemap:")
    sync("B2")
    stamp(5)
    def f(k):
        a(f"ds_read_b32 v{76+k}, v{vKS+3+4*k} offset:{MAP}")
        a(f"v_lshrrev_b32 v{52+k}, {17+PH-2}, v{vKS+4*k}")
        a(f"v_lshlrev_b32 v{vS+k}, 5, v{vS+k}")
    recs(f)
    ea_stage("B2")
    a("v_mov_b32 v83, 12")
    a(f"s_mov_b32 s{sT0}, {0x3c if PH == 11 else 0x7c}")
    a(f"s_mov_b32 s{sT1}, 0xfffe0000")
    a("s_waitcnt lgkmcnt(0)")
    def f(k):
        a(f"s_mov_b64 exec, s[{sMk+2*k}:{sMk+2*k+1}]")
        a(f"v_bfi_b32 v{vKS+3+4*k}, s{sT0}, v{52+k}, v{76+k}")
        a(f"ds_add_rtn_u32 v{vPos+k}, v{vKS+3+4*k}, v83 offset:{HISTO}")
        a(f"v_bfi_b32 v{vS+k}, 28, v{76+k}, v{vS+k}")
        a(f"v_bfi_b32 v{vKS+4*k}, s{sT1}, v{vKS+4*k}, v{vS+k}")
    recs(f)
    a("s_mov_b64 exec, -1")
    ea_stage("S3")
    a(f"v_and_b32 v14, 31, v{vLane}")
    a(f"v_lshl_add_u32 v14, v14, 2, s{sReg}")
    a(f"v_mad_u32_u24 v17, v{vLane}, 12, s{sReg}")
    sync("B3")
    a(f"ds_read_b32 v52, v14 offset:{HISTO}")
    for i in range(2):
        a(f"ds_read_b128 v[{vWr+4*i}:{vWr+4*i+3}], v81 offset:{REG*(CW+i)}")
        a(f"ds_read_b128 v[{vCg+4*i}:{vCg+4*i+3}], v81 offset:{REG*(CW+2+i)}")
    ea_stage("B3")
    fill = [f"v_and_b32 v12, 3, v{vLane}", f"v_bfe_u32 v13, v{vLane}, 2, 1", "v_lshl_add_u32 v12, v13, 3, v12",
            f"v_bfe_u32 v13, v{vLane}, 3, 1", "v_lshl_add_u32 v12, v13, 2, v12", f"v_bfe_u32 v13, v{vLane}, 4, 1",
            "v_lshl_add_u32 v12, v12, 1, v13", f"v_mad_u32_u24 v12, v12, 12, s{sReg}",
            f"v_lshrrev_b32 v13, 2, v{vLane}", f"v_bfe_u32 v15, v{vLane}, 1, 1", "v_lshl_add_u32 v13, v15, 4, v13",
            f"v_mad_u32_u24 v13, v13, 12, s{sReg}", f"v_lshrrev_b32 v15, 2, v{vS16}", "v_add3_u32 v13, v13, v15, 4"]
    for _ in range(6): a(fill.pop(0))
    a("v_mov_b32 v83, 28")
    a("v_mov_b32 v54, 0")
    a("s_waitcnt lgkmcnt(4)")
    a(f"v_sub_u32 v53, s{sReg}, v52")
    for d, rm in (("row_shr:1","0xf"), ("row_shr:2","0xf"), ("row_shr:4","0xf"), ("row_shr:8","0xf"), ("row_bcast:15","0xa")):
        a(f"v_add_u32_dpp v52, v52, v52 {d} row_mask:{rm} bank_mask:0xf")
        if fill: a(fill.pop(0)); a(fill.pop(0))
    a("v_add_u32 v53, v53, v52")
    a(f"v_readlane_b32 s{sCnt}, v52, 31")
    a(f"ds_write_b32 v14, v53 offset:{HISTO}")
    a(f"s_cmp_gt_u32 s{sCnt}, {NB*32*12}")
    a("s_cbranch_scc1 Lover")
    a("Loverb:")
    a(f"v_add_u32 v17, s{sCnt}, v17")
    a(f"s_add_u32 s{sR}, s{sCnt}, 12")
    a(f"s_mul_i32 s{sR}, s{sR}, 2731")
    a(f"s_lshr_b32 s{sCnt}, s{sR}, 16")
    a(f"s_min_u32 s{sTail}, s{sCnt}, 3")
    a(f"s_sub_u32 s{sR}, s{sCnt}, s{sTail}")
    sync("B4")
    stamp(6)
    a(f"ds_read_b32 v54, v54 offset:{OVER}")
    recs(lambda k: a(f"ds_read_b32 v{vKS+3+4*k}, v{vKS+3+4*k} offset:{HISTO}"))
    ea_stage("B4")
    a("s_waitcnt lgkmcnt(0)")
    a("v_cmp_ne_u32 vcc, 0, v54")
    a("s_cbranch_vccnz Lslow")
    a("s_mov_b64 exec, 63")
    a("ds_write_b32 v17, v83")
    def f(k):
        a(f"s_mov_b64 exec, s[{sMk+2*k}:{sMk+2*k+1}]")
        a(f"v_add_u32 v{vPos+k}, v{vPos+k}, v{vKS+3+4*k}")
        a(f"ds_write_b32 v{vPos+k}, v{vKS+4*k}")
        a(f"ds_write2_b32 v{vPos+k}, v{vKS+1+4*k}, v{vKS+2+4*k} offset0:1 offset1:2")
    recs(f)
    a("s_mov_b64 exec, -1")
    ea_stage("S4")
    a(f"v_bfe_u32 v14, v{vLane}, 2, 2")
    a(f"v_and_b32 v15, 3, v{vLane}")
    a(f"v_lshrrev_b32 v16, 5, v{vLane}")
    a(f"v_lshlrev_b32 v{vLs}, 7, v14")
    a(f"v_lshl_add_u32 v{vLs}, v15, 4, v{vLs}")
    a(f"v_lshrrev_b32 v{vT[0]}, 1, v{vLs}")
    a(f"v_lshl_add_u32 v{vLs}, v16, 6, v{vLs}")
    a(f"v_lshl_add_u32 v{vT[0]}, v16, 9, v{vT[0]}")
    a(f"v_bfe_u32 v14, v{vLane}, 4, 1")
    a(f"v_lshl_add_u32 v{vT[0]}, v14, 5, v{vT[0]}")
    a(f"v_add_u32 v{vT[0]}, s{sReg}, v{vT[0]}")
    sync("C")
    stamp(7)
    for b in range(NB):
        a(f"ds_read_b32 v{vPr+b}, v12 offset:{b*384}")
    for b in range(NB):
        a(f"ds_read_b32 v{vSr+b}, v13 offset:{b*384}")
    ea_stage("C")
    a(f"v_add_u32 v{vT[1]}, 1024, v{vT[0]}")
    a(f"v_add_u32 v{vT[2]}, 2048, v{vT[0]}")
    a(f"v_mov_b32 v{vEm}, 0x1ffe0")
    a(f"s_mov_b32 s{sM0[0]}, s{sReg}")
    a(f"s_add_u32 s{sM0[1]}, s{sReg}, 1024")
    a(f"s_add_u32 s{sM0[2]}, s{sReg}, 2048")
    for i in range(8):
        a(f"v_mov_b32 v{vEaA+i}, 0")
    a(f"s_mov_b32 s{sBlk}, 0x1000")
    a(f"s_mov_b32 s{sGi}, 0x1000")
    a("s_waitcnt lgkmcnt(0)")
    def adr(n):
        a(f"v_add_u32_dpp v{vAdr}, v{vK}, v{vLs} row_newbcast:{LN(n)} {DPPM}")
    DMA = f"global_load_lds_dwordx4 v{vAdr}, s[{sX}:{sX+1}]"
    def rowoff():
        a(f"v_lshrrev_b32 v{vK}, 8, v{vP}")
        a(f"v_and_b32 v{vK}, 0xfffe00, v{vK}")
        a(f"v_min_u32 v{vK}, {(NN-1)*512}, v{vK}")
    def idx_pack_a():
        a(f"v_and_or_b32 v{vI}, v{vP}, 28, s{sC0}")
        a(f"v_lshlrev_b32 v{vI}, v{vS16}, v{vI}")
    def idx_pack_b():
        a(f"v_or_b32_dpp v{vI}, v{vI}, v{vI} quad_perm:[1,0,3,2] {DPPM}")
    def ea_adr(g, half):
        lo, hi = ("quad_perm:[0,1,2,3]", "row_shr:4") if g == 0 else ("row_shl:4", "quad_perm:[0,1,2,3]")
        if half == 0: a(f"v_and_b32_dpp v{vE}, v{vP}, v{vEm} {lo} row_mask:0x3 bank_mask:0xf")
        else:         a(f"v_and_b32_dpp v{vE}, v{vP}, v{vEm} {hi} row_mask:0xc bank_mask:0xf")
    def abuild(src, g, dst):
        q0, q1 = 2*g, 2*g+1
        a(f"v_mov_b32_dpp v{vD+4}, v{src} quad_perm:[{q0},{q0},{q0},{q0}] {DPPM}")
        a(f"v_mov_b32_dpp v{vD+5}, v{src} quad_perm:[{q1},{q1},{q1},{q1}] {DPPM}")
        for u in range(4):
            a(f"v_dot2_f32_bf16 v{vD+u}, v{vD+4}, v{vCg+u}, 0")
        for u in range(4):
            a(f"v_dot2_f32_bf16 v{vD+u}, v{vD+5}, v{vCg+4+u}, v{vD+u}")
        nop(1)
        a(f"v_cvt_pk_bf16_f32 v{dst}, v{vD}, v{vD+1}")
        nop(1)
        a(f"v_cvt_pk_bf16_f32 v{dst+1}, v{vD+2}, v{vD+3}")
    a(f"v_mov_b32 v{vP}, v{vPr}")
    rowoff()
    idx_pack_a()
    ea_adr(0, 0)
    nop(1)
    idx_pack_b()
    ea_adr(0, 1)
    for s in range(2): a(f"v_readlane_b32 s{sI+s}, v{vI}, {16*s + LN(0)}")
    ea_stage("X")
    if APRE:
        for gi in range(2*NB):
            if gi == 4: ea_stage("A4")
            if gi == 8: ea_stage("A8")
            if gi >= 2*NB-2:
                a(f"s_cmp_le_u32 s{sCnt}, {8*gi}")
                a("s_cbranch_scc1 Labuilt")
            abuild(vSr + gi//2, gi % 2, vAr + 2*gi)
        a("Labuilt:")
    else:
        a(f"v_mov_b32 v{vSH}, v{vSr}")
        abuild(vSr, 0, vA)
    assert nxt[0] == 6
    for p in range(3):
        a(f"s_mov_b32 m0, s{sM0[p]}")
        adr(p)
        a(DMA)
    a("s_waitcnt vmcnt(3)")
    adr(3)
    a("s_barrier")
    stamp(8)
    if OPT["stamps"]: a("s_memtime s[94:95]")
    def ea_reads():
        a(f"s_mov_b64 exec, s[{sEx}:{sEx+1}]")
        a(f"ds_read_b128 v[{vEaA}:{vEaA+3}], v{vE} offset:{EA0}")
        a(f"ds_read_b128 v[{vEaA+4}:{vEaA+7}], v{vE} offset:{EA0+16}")
        a("s_mov_b64 exec, -1")
    def tr(sl):
        a(f"ds_read_b64_tr_b16 v[{vB}:{vB+1}], v{vT[sl]}")
        a(f"ds_read_b64_tr_b16 v[{vB+2}:{vB+3}], v{vT[sl]} offset:256")
    def afetch():
        a(f"s_mov_b32 m0, s{sGi}")
        a(f"v_mov_b32 v{vA}, v{vAr}")
        a(f"v_mov_b32 v{vA+1}, v{vAr+1}")
        a(f"s_add_u32 s{sGi}, s{sGi}, 2")
    if OPT["lprio"]: a("s_setprio 1")
    ea_reads()
    a(f"s_set_gpr_idx_on s{sM0[0]}, 0")
    if APRE: afetch()
    a(f"s_mov_b32 m0, s{sM0[0]}")
    a("s_waitcnt vmcnt(2)")
    tr(0)
    a(".p2align 6")
    a("Lblk:")
    TA, TS = 84, 88
    for p in range(16):
        g, pp = p // 8, p % 8
        cur, nx = sI + 2*((p//2) % 2), sI + 2*((p//2+1) % 2)
        def cap(fn, *args):
            n = len(L); fn(*args); r = L[n:]; del L[n:]; return r
        F = []
        if p != 12: F += cap(adr, p+4)
        nxp = (p//2*2 + 2) % 16
        if p < 14: F.append(f"v_readlane_b32 s{nx + p%2}, v{vI}, {16*(p%2) + LN(nxp)}")
        if p == 15: F += [f"v_readlane_b32 s{nx+s}, v{vI}, {16*s + LN(0)}" for s in range(2)]
        if p == 13: F += cap(idx_pack_a)
        if p == 14: F += cap(idx_pack_b)
        if pp == 5: F += cap(ea_adr, 1-g, 0)
        if pp == 6: F += cap(ea_adr, 1-g, 1)
        q0, q1 = 2*(1-g), 2*(1-g)+1
        late = []
        if not APRE:
            if pp == 6:
                F = [f"v_mov_b32_dpp v{TS}, v{vSH} quad_perm:[{q0},{q0},{q0},{q0}] {DPPM}",
                     f"v_mov_b32_dpp v{TS+1}, v{vSH} quad_perm:[{q1},{q1},{q1},{q1}] {DPPM}"] + F
            if pp == 7: late = [f"v_cvt_pk_bf16_f32 v{vA}, v{TA}, v{TA+1}", f"v_cvt_pk_bf16_f32 v{vA+1}, v{TA+2}, v{TA+3}"]
        elif pp == 7: late = cap(afetch)
        if p == 12:
            F = cap(rowoff) + F + ["s_nop 0"] + cap(adr, p+4)
        a(f"s_sub_u32 s{sR}, s{sR}, 1")
        a("s_waitcnt lgkmcnt(0)")
        a(f"s_cbranch_scc1 Ltail{p}")
        a("s_nop 0" if OPT["nodma"] else DMA)
        a(f"Lback{p}:")
        if pp == 0:
            a(f"v_mfma_f32_32x32x16_bf16 v[{vRw}:{vRw+15}], v[{vEaA}:{vEaA+3}], v[{vWr}:{vWr+3}], 0")
            a(f"v_mfma_f32_32x32x16_bf16 v[{vRw}:{vRw+15}], v[{vEaA+4}:{vEaA+7}], v[{vWr+4}:{vWr+7}], v[{vRw}:{vRw+15}]")
        tpm = [f"v_mfma_f32_4x4x4_16b_bf16 v[{vD+4*s}:{vD+4*s+3}], v[{vA}:{vA+1}], v[{vB+2*s}:{vB+2*s+1}], 0 cbsz:4 abid:{2*pp+s}" for s in range(2)]
        a(tpm[0])
        n = len(F) + len(late)
        if OPT["mid"]: a(F.pop(0))
        a(tpm[1])
        def nexttr():
            a("s_waitcnt vmcnt(2)")
            tr((p+1) % 3)
            if pp == 7: ea_reads()
        for x in F + late: a(x)
        gap = (9 if pp == 0 else 3) - n
        if OPT["ord"] == 5:
            nexttr(); gap -= 3
        if gap > 0: nop(gap)
        for s in range(2):
            a(f"s_lshr_b32 m0, s{cur+s}, 16" if p % 2 else f"s_mov_b32 m0, s{cur+s}")
            sel = "op_sel_hi:[1,0,1]" if pp % 2 == 0 else "op_sel:[0,1,0] op_sel_hi:[1,1,1]"
            r = vRw + 8*s + (pp & ~1)
            for h in range(2):
                a(f"v_pk_fma_f32 v[{ACC+2*h}:{ACC+2*h+1}], v[{vD+4*s+2*h}:{vD+4*s+2*h+1}], v[{r}:{r+1}], v[{ACC+2*h}:{ACC+2*h+1}] {sel}")
        if OPT["ord"] == 4: nexttr()
        if p == 11:
            a(f"s_add_u32 s{sBlk}, s{sBlk}, 1")
            a(f"s_mov_b32 m0, s{sBlk}")
            a(f"v_mov_b32 v{vP}, v{vPr}")
            if not APRE: a(f"v_mov_b32 v{vSH}, v{vSr}")
        a(f"s_mov_b32 m0, s{sM0[(p+1)%3]}")
        if pp == 6 and not APRE:
            for u in range(4): a(f"v_dot2_f32_bf16 v{TA+u}, v{TS}, v{vCg+u}, 0")
            for u in range(4): a(f"v_dot2_f32_bf16 v{TA+u}, v{TS+1}, v{vCg+4+u}, v{TA+u}")
        if pp == 7 and OPT["spf"]:
            a(f"s_sub_u32 s{sPf}, s{sPf}, 1")
            a(f"s_cbranch_scc1 Lspf{g}")
            a(f"Lspfb{g}:")
    a(f"v_swap_b32 v{vT[0]}, v{vT[1]}")
    a(f"v_swap_b32 v{vT[1]}, v{vT[2]}")
    a(f"s_mov_b32 s{sT0}, s{sM0[0]}\ns_mov_b32 s{sM0[0]}, s{sM0[1]}\ns_mov_b32 s{sM0[1]}, s{sM0[2]}\ns_mov_b32 s{sM0[2]}, s{sT0}")
    a("s_branch Lblk")
    a("Lloopend:")
    for p in range(16):
        a(f"Ltail{p}:")
        a(f"s_mov_b32 s{sR}, 0")
        a(f"s_sub_u32 s{sTail}, s{sTail}, 1")
        a("s_cbranch_scc1 Lexit")
        a("s_waitcnt vmcnt(0)")
        a(f"s_branch Lback{p}")
    if OPT["spf"]:
        for g in range(2):
            a(f"Lspf{g}:")
            for i in range(NSP):
                a(f"s_load_dwordx2 s[62:63], s[{sPx}:{sPx+1}], {i*128+60}")
            a(f"s_branch Lspfb{g}")
    a("Lclip:")
    a(f"s_add_u32 s{sT0}, s{sBase}, s{sN}")
    for j in range(4):
        a(f"v_add_u32 v76, v{64+j}, v{56+j}")
        a(f"v_min_u32 v76, s{sT0}, v76")
        a(f"v_max_u32 v77, s{sBase}, v{64+j}")
        a(f"v_sub_u32 v76, v76, v77")
        a(f"v_max_i32 v{56+j}, 0, v76")
        a(f"v_sub_u32 v76, v77, v{64+j}")
        a(f"v_add_u32 v{60+j}, v{60+j}, v76")
        a(f"v_subrev_u32 v{64+j}, s{sBase}, v77")
    a("s_branch Lnoclip")
    a("Llatermap:")
    a("s_barrier")
    a(f"ds_write_b32 v82, v83 offset:{HISTO}")
    for n in later: eadma(n)
    a("s_branch Lhavemap")
    a("Lover:")
    a(f"ds_write_b32 v54, v83 offset:{OVER}")
    a("s_branch Loverb")
    a("Lslow:")
    a(f"s_mov_b32 s{sL}, {NB*32}")
    a("Lround:")
    a("s_waitcnt vmcnt(0) lgkmcnt(0)")
    a("s_barrier")
    a("v_mov_b32 v80, 0")
    a(f"ds_write_b32 v80, v80 offset:{OVER}")
    a(f"v_lshlrev_b32 v81, 4, v{vLane}")
    a("s_waitcnt lgkmcnt(0)")
    a(f"s_sub_u32 s{sT0}, s{sWave}, 10")
    a(f"s_cmp_ge_u32 s{sT0}, 5")
    a("s_cbranch_scc1 Lgo")
    COLBASE(sBin, sT0)
    a(f"v_lshl_add_u32 v82, v{vLane}, 12, s{sT0}")
    for j in range(4):
        a(f"buffer_load_dword v{52+j}, v82, s[{sTab}:{sTab+3}], 0 offen offset:{COLOFF[j]} sc1")
    a("s_waitcnt vmcnt(0)")
    a("s_branch Lhavetab")
    a("Lexit:")
    a("s_set_gpr_idx_off")
    if OPT["lprio"]: a("s_setprio 0")
    stamp(9)
    if OPT["stamps"]: a("s_memtime s[92:93]")
    a(f"s_add_u32 s{sBase}, s{sBase}, s{sN}")
    a(f"s_cmp_lt_u32 s{sBase}, s{sTot}")
    a("s_cbranch_scc1 Lround")
    a(f"v_lshlrev_b32 v16, 4, v{vLane}")
    a(f"s_cmp_ge_u32 s{sWave}, 4")
    a("s_cbranch_scc1 Lnow")
    a("s_waitcnt vmcnt(0)")
    a(f"s_mov_b32 m0, s{sReg}")
    a(f"s_lshl_b32 s{sT0}, s{sWave}, 11")
    a(f"s_add_u32 s{sT0}, s{sT0}, 4096")
    a(f"v_add_u32 v12, s{sT0}, v16")
    a(f"global_load_lds_dwordx4 v12, s[{sC}:{sC+1}]{HLD}")
    a(f"global_load_lds_dwordx4 v12, s[{sC}:{sC+1}] offset:1024{HLD}")
    a("Lnow:")
    a(f"v_lshrrev_b32 v13, 5, v{vLane}")
    a(f"s_lshl_b32 s{sT1}, s{sWave}, 5")
    a(f"v_lshl_add_u32 v14, v13, 4, s{sT1}")
    a(f"ds_read_b128 v[84:87], v14 offset:{INVM}")
    for i in range(14):
        a(f"v_cvt_pk_bf16_f32 v{68+i}, v{ACC+2*i}, v{ACC+2*i+1}")
    a(f"s_mul_i32 s{sT0}, s{sWave}, 4608")
    a(f"s_add_u32 s{sT0}, s{sT0}, {EA0}")
    a(f"v_mul_u32_u24 v12, 72, v{vLane}")
    a(f"v_add_u32 v12, s{sT0}, v12")
    a(f"v_bfe_u32 v14, v{vLane}, 2, 2")
    a("v_lshl_add_u32 v13, v13, 3, v14")
    a("v_mul_u32_u24 v13, 72, v13")
    a(f"v_bfe_u32 v14, v{vLane}, 4, 1")
    a("v_lshl_add_u32 v13, v14, 5, v13")
    a(f"v_and_b32 v14, 3, v{vLane}")
    a("v_lshl_add_u32 v13, v14, 3, v13")
    a(f"v_add_u32 v13, s{sT0}, v13")
    a(f"s_mul_i32 s{sT1}, s{sBin}, {NPB*512}")
    a(f"v_and_b32 v15, 31, v{vLane}")
    a(f"v_lshl_add_u32 v15, v15, 2, s{sT1}")
    a("s_waitcnt vmcnt(0) lgkmcnt(0)")
    for q in range(4):
        a(f"v_add_u32 v{84+q}, v{84+q}, v15")
    a("s_barrier")
    a(f"s_cmp_lt_u32 s{sWave}, 14")
    a("s_cbranch_scc1 Lsix")
    a(f"ds_write_b64 v12, v[80:81] offset:48")
    a("Lsix:")
    for i in range(6):
        a(f"ds_write_b64 v12, v[{68+2*i}:{69+2*i}] offset:{8*i}")
    for s in range(4):
        if s == 2: a("s_waitcnt lgkmcnt(7)")
        for m in range(2):
            a(f"ds_read_b64_tr_b16 v[{20+4*s+2*m}:{21+4*s+2*m}], v13 offset:{(16*s+4*m)*72}")
        for t in range(2):
            a(f"ds_read_b128 v[{36+8*s+4*t}:{39+8*s+4*t}], v16 offset:{REG*s+1024*t}")
    for s in range(4):
        a(f"s_waitcnt lgkmcnt({12-4*s})")
        for t in range(2):
            c = "0" if s == 0 else f"v[{ACC+16*t}:{ACC+16*t+15}]"
            a(f"v_mfma_f32_32x32x16_bf16 v[{ACC+16*t}:{ACC+16*t+15}], v[{20+4*s}:{23+4*s}], v[{36+8*s+4*t}:{39+8*s+4*t}], {c}")
    nop(12)
    for r in range(16):
        q, t = r // 4, r % 4
        if r == 12:
            a(f"s_cmp_lt_u32 s{sWave}, 14")
            a("s_cbranch_scc1 Lfin")
        a(f"v_cvt_pk_bf16_f32 v{36+r}, v{ACC+r}, v{ACC+16+r}")
        a(f"buffer_store_dword v{36+r}, v{84+q}, s[{sOsrd}:{sOsrd+3}], 0 offen offset:{t*128}{OPT['outst']}")
    a("Lfin:")
    if OPT["stamps"]:
        a("s_waitcnt vmcnt(0)")
        stamp(10)
        a("s_waitcnt lgkmcnt(0)")
        a("s_sub_u32 s86, s92, s94")
        a("s_mul_hi_u32 s86, s86, 429496730")
        a("s_add_u32 s86, s86, s84")
        stamp_out(1, 12, sWs, sWave)
    a("Lend:")
    a("s_endpgm")

hdr = open("standalone__tensor_product_equiv_mace__graph.s.ref").read().split("; Override launch")[0]
out = hdr
out += f"; @launch {'kernel='+KN+' ' if OPT['lst'] else ''}grid=(256,1,1) block=(1024,1,1) lds={LDS}\n"
out += '.amdgcn_target "amdgcn-amd-amdhsa--gfx950"\n.text\n'
phase1(); phase2()
if OPT["drop"]:
    pats = {"tr":"ds_read_b64_tr", "pk":"v_pk_fma", "tp":"v_mfma_f32_4x4x4", "rw":"v_mfma_f32_32x32", "dot":"v_dot2", "rl":"v_readlane"}
    for t in OPT["drop"].split(","):
        i0, i1 = L.index("Lblk:"), L.index("Lloopend:")
        L[i0:i1] = [l for l in L[i0:i1] if pats[t] not in l]
out += "\n".join(("    " + l if l and not l.endswith(":") and not l.startswith(".") else l) for l in L) + "\n"
out += f""".section .rodata,"a"
.p2align 6
.amdhsa_kernel {KN}
  .amdhsa_next_free_vgpr 128
  .amdhsa_next_free_sgpr 96
  .amdhsa_accum_offset 128
  .amdhsa_group_segment_fixed_size 0
  .amdhsa_kernarg_size 88
  .amdhsa_user_sgpr_count 2
  .amdhsa_user_sgpr_kernarg_segment_ptr 1
  .amdhsa_system_sgpr_workgroup_id_x 1
  .amdhsa_float_denorm_mode_32 3
.end_amdhsa_kernel
"""
open(sys.argv[1], "w").write(out)
```

```python
import sys
OPT = dict(ro=0, rm=7, ri=11732, rot=0, rn=32, rw=4, early=0, gst=0, pa=6, keep=0, kfl="", ph1=8, epi=0, nob=0, xe=0, nocnt=0, csh=3, nbr=1, itn=1, tb=1, pn=10, slim=3, klim=0, isleep=0, gate=0, gn=0, k1n=10, cpos=4, kwait=1, gpos="B1", easched="B1:2,S2:1,S3:1,B4:1,S4:1", pfn=12, pfpos="A", apre=2, ph=10, lprio=1, mid=1, ord=5, fsh=4, tsleep=16, csleep=4, ksleep=4,
           psleep=0, gsleep=2, spf=1, drop="", nodma=0, spin=-1, spin0=0, dbgwg=-1, safe=0, stamps=0, ntl=1, nts="sc1", hld="sc1", outst="sc1", lst=0)
for a in sys.argv[2:]:
    k, v = a.split("=")
    assert k in OPT, k
    OPT[k] = int(v) if v.lstrip("-").isdigit() else v
for k in ("nts", "hld", "outst", "kfl"):
    OPT[k] = "" if OPT[k] in (0, "") else " " + str(OPT[k]).replace("+", " ")

KN = "standalone__tensor_product_equiv_mace__graph_kernel"
NN, NE = 25000, 800000
CH, NCH = 3200, 250
NPB = 98
MAGIC, MSH = 42800, 22
assert all((d*MAGIC) >> MSH == d//NPB for d in range(NN))
SPIN = 400000
WS_TAB, WS_CONST, WS_FLAG, WS_KS, WS_EA, WS_STAMP = 0, 0x40000, 0x50000, 0x100000, 0xB00000, 128 << 20
CAP, NB = 3552, 7
XT0 = (256-NCH)*15*OPT["itn"]*8192
XT1 = XT0 + OPT["pfn"]*512000
NSP = -(-(NN*512 - XT1) // 512000)
NT = " nt" if OPT["ntl"] else ""
NTS, HLD = OPT["nts"], OPT["hld"]
DPPM = "row_mask:0xf bank_mask:0xf"

L = []
import re
SRC = open(__file__).read().split("\n")
NOTE, SEEN = {}, set()
class Line(str): pass
def a(s):
    n = sys._getframe(1).f_lineno - 1
    head, k = [], n - 1
    while k >= 0:
        t = SRC[k].strip()
        m = re.match(r"(?:for|if|def|elif) .*:\s*(?:# (.*))?$", t)
        if t.startswith("# "): head.insert(0, (k, t[2:]))
        elif m:
            if m.group(1): head.insert(0, (k, m.group(1)))
        else: break
        k -= 1
    m = re.search(r"\)\s+# (.*)$", SRC[n])
    for i, ln in enumerate(s.split("\n")):
        ln = Line(ln)
        ln.head = [t for k, t in head if k not in SEEN] if i == 0 else []
        ln.note = m.group(1) if m and i == 0 and n not in SEEN else ""
        L.append(ln)
    SEEN.update(k for k, t in head); SEEN.add(n)
def nop(n):
    a(f"s_nop {n-1}")
def stamp(i):
    if OPT["stamps"]:
        a(f"s_memrealtime s[{64+2*i}:{65+2*i}]")
def stamp_out(k, n, sws, swave, tag=''):
    if not OPT["stamps"]: return
    a(f"s_cmp_lg_u32 s{swave}, {OPT['stamps']-1}")
    a(f"s_cbranch_scc1 Lnostamp{k}{tag}")
    if OPT["dbgwg"] >= 0 and k == 1:
        a(f"s_cmp_lg_u32 s2, {OPT['dbgwg']}")
        a(f"s_cbranch_scc1 Lnostamp{k}{tag}")
        a("s_waitcnt lgkmcnt(0)")
        a("s_mov_b64 exec, 1")
        a(f"v_mov_b32 v1, {WS_STAMP + OPT['dbgwg']*64}")
        a(f"global_load_dwordx4 v[4:7], v1, s[{sws}:{sws+1}] sc1")
        a(f"global_load_dword v8, v1, s[{sws}:{sws+1}] offset:16 sc1")
        a("s_waitcnt vmcnt(0)")
        j, j0 = OPT["spin"], OPT["spin0"]
        a(f"v_mov_b32 v9, v{4+j0}" if j0 < 5 else f"v_mov_b32 v9, s{64+2*(j0-5)}")
        a(f"v_sub_u32 v2, v{4+j}, v9" if j < 5 else f"v_sub_u32 v2, s{64+2*(j-5)}, v9")
        a("s_nop 1")
        a("v_readfirstlane_b32 s60, v2")
        a("s_min_u32 s60, s60, 10000")
        a("s_lshl_b32 s60, s60, 4")
        a("Lspin:")
        a("s_memrealtime s[58:59]")
        a("s_waitcnt lgkmcnt(0)")
        a("s_sub_u32 s58, s58, s84")
        a("s_cmp_lt_u32 s58, s60")
        a("s_cbranch_scc1 Lspin")
        a(f"Lnostamp{k}{tag}:")
        return
    a("s_waitcnt lgkmcnt(0)")
    a("s_mov_b64 exec, 1")
    a(f"s_lshl_b32 s62, s2, 6\ns_add_u32 s62, s62, {WS_STAMP + k*256*64}")
    a("v_mov_b32 v1, s62")
    for i in range(n):
        a(f"v_mov_b32 v2, s{64+2*i}")
        a(f"global_store_dword v1, v2, s[{sws}:{sws+1}] offset:{4*i}")
    a("s_mov_b64 exec, -1")
    a(f"Lnostamp{k}{tag}:")
def wavescan(x, fill=()):
    fill = list(fill)
    for d, rm in (("row_shr:1","0xf"), ("row_shr:2","0xf"), ("row_shr:4","0xf"), ("row_shr:8","0xf"), ("row_bcast:15","0xa"), ("row_bcast:31","0xc")):
        if fill: a(fill.pop(0)); nop(1)
        else: nop(2)
        a(f"v_add_u32_dpp v{x}, v{x}, v{x} {d} row_mask:{rm} bank_mask:0xf")
def scan4(c, s1, s2, x, tot, fill=()):
    a(f"v_add_u32 v{s1}, v{c}, v{c+1}")
    a(f"v_add_u32 v{s2}, v{s1}, v{c+2}")
    a(f"v_add_u32 v{tot}, v{s2}, v{c+3}")
    a(f"v_mov_b32 v{x}, v{tot}")
    wavescan(x, fill)

K1_HIST, K1_BASE, K1_INV, K1_KS, K1_EA, K1_END = 0, 1024, 2048, 14848, 53248, 155648
TABL, TABOK, KCNT, PCNT = K1_END, K1_END + 1024, K1_END + 1028, K1_END + 1032
MAP, INVM, EA0, LDS = 49152, 49664, 50176, 163840
GO, TOT, OVER = MAP + 496, MAP + 500, MAP + 504
assert EA0 + CAP*32 == LDS
REG = 3072
HISTO = 2784
DEG, RT, DD = 0, 512, 14848
CW = 10
assert DD + CAP*4 <= CW*REG
BAND = 70
PH = OPT["ph"]
APRE = OPT["apre"]
assert all((r*147) >> 11 == r//14 for r in range(128))
assert all(((x*12+12)*2731) >> 16 == (x+1)//2 for x in range(NB*32+1))
vLs, vT, vEm, vS16, vK, vP, vE, vAdr, vI = 1, [2,3,4], 5, 6, 7, 8, 9, 10, 11
vA, vB, vLane, vF = 12, 14, 18, 19
vWr, vEaA, vD, vRw, vPr, vSH, vAr, ACC = 20, 28, 36, 44, 60, 67, 68, 96
vCg, vSr = (44, 52) if APRE else (68, 76)
vKS, vS, vPos, vG = 28, 84, 88, 92
vSink = 67 if APRE else 44
sX, sOut, sKS, sEA, sC, sWs = 4, 6, 8, 10, 12, 14
sTab, sOsrd = 16, 20
sWave, sBin, sTot, sBase, sL, sN, sReg, sCnt, sR, sTail, sGi, sFirst, sBlk = 24,25,26,27,28,29,30,31,32,33,34,35,36
sM0 = [37,38,39]
sGoal, sPoll, sC0, sEm, sPf, sPx = 40, 41, 42, 43, 45, 46
sMk = 48
sI = 48
sEx = 56
sT0, sT1, sT2, sT3 = 58, 59, 60, 61
KORD = (3, 0, 1, 2)
def LN(tau):
    tau %= 16
    return (tau & 3) | ((tau & 4) << 1) | ((tau & 8) >> 1)

def phase1():
    a(f".globl {KN}\n.p2align 8\n.type {KN},@function\n{KN}:")
    stamp(0)
    a("s_cmp_ge_u32 s2, 256")
    a("s_cbranch_scc1 Lend")
    a("v_readfirstlane_b32 s14, v0")
    a("s_cmp_ge_u32 s14, 640")
    a("s_cbranch_scc1 Lspare")
    a(f"s_cmp_ge_u32 s2, {NCH}")
    a("s_cbranch_scc1 Lnochunk")
    a("s_load_dwordx4 s[4:7], s[0:1], 8")
    a("s_load_dwordx4 s[8:11], s[0:1], 24")
    a("s_load_dwordx2 s[12:13], s[0:1], 80")
    a("s_lshr_b32 s14, s14, 6")
    a("v_and_b32 v2, 63, v0")
    a("v_lshlrev_b32 v3, 2, v0")
    a("v_mov_b32 v4, 0")
    a("ds_write_b32 v3, v4")
    a("v_lshlrev_b32 v3, 2, v2")
    a("v_lshlrev_b32 v4, 3, v2")
    a("v_lshlrev_b32 v5, 4, v2")
    a(f"s_mul_i32 s15, s2, {CH}")
    a("s_mul_i32 s16, s14, 320")
    a("s_add_u32 s15, s15, s16")
    a("s_lshl_b32 s17, s15, 2")
    a("s_lshl_b32 s18, s15, 3")
    a("s_lshl_b32 s19, s15, 5")
    a("s_waitcnt lgkmcnt(0)")
    a("s_add_u32 s6, s6, s17\ns_addc_u32 s7, s7, 0")
    for k in range(5):
        a(f"global_load_dword v{10+k}, v3, s[6:7] offset:{k*256}{NT}")
    a("s_add_u32 s4, s4, s17\ns_addc_u32 s5, s5, 0")
    for k in range(5):
        a(f"global_load_dword v{15+k}, v3, s[4:5] offset:{k*256}{NT}")
    a("s_add_u32 s8, s8, s18\ns_addc_u32 s9, s9, 0")
    for k in range(5):
        a(f"global_load_dwordx2 v[{20+2*k}:{21+2*k}], v4, s[8:9] offset:{k*512}{NT}")
    a("s_barrier")
    a("s_add_u32 s10, s10, s19\ns_addc_u32 s11, s11, 0")
    a("s_lshl_b32 s20, s16, 5")
    a(f"s_add_u32 s20, s20, {K1_EA}")
    def bulk(lo, hi):
        for i in range(lo, hi):
            if i % 4 == 0:
                a(f"s_add_u32 m0, s20, {i*1024}")
                a(f"v_add_u32 v6, {i*1024}, v5")
            a(f"global_load_lds_dwordx4 v6, s[10:11] offset:{(i%4)*1024}{NT}")
    bulk(0, OPT["k1n"])
    a(f"s_mov_b32 s21, {MAGIC}")
    a(f"s_mov_b32 s22, {-NPB}")
    a("v_mov_b32 v7, 1")
    a(f"s_waitcnt vmcnt({10+OPT['k1n']})")
    stamp(1)
    for k in range(5):
        a(f"v_mul_u32_u24 v{30+k}, s21, v{10+k}")
        a(f"v_lshrrev_b32 v{30+k}, {MSH}, v{30+k}")
        a(f"v_mad_i32_i24 v{10+k}, v{30+k}, s22, v{10+k}")
        a(f"v_lshlrev_b32 v{30+k}, 2, v{30+k}")
        a(f"ds_add_rtn_u32 v{35+k}, v{30+k}, v7 offset:{K1_HIST}")
    a("s_waitcnt lgkmcnt(0)")
    a("s_barrier")
    a(f"ds_read_b128 v[40:43], v5 offset:{K1_HIST}")
    bulk(OPT["k1n"], 10)
    a("s_waitcnt vmcnt(10)")
    for k in range(5):
        a(f"v_lshlrev_b32 v{10+k}, 2, v{10+k}")
        a(f"v_lshl_or_b32 v{15+k}, v{15+k}, 17, v{10+k}")
    a("v_lshl_add_u32 v53, v2, 5, s20")
    a("s_waitcnt lgkmcnt(0)")
    scan4(40, 44, 45, 46, 47, [f"v_add_u32 v{53+k}, {k*2048}, v53" for k in range(1, 5)])
    if OPT["keep"]:
        a("s_and_b32 s34, s2, 7\ns_lshl_b32 s34, s34, 3\ns_add_u32 s35, s34, 7")
        a("v_readlane_b32 s33, v46, s35")
    a("v_sub_u32 v46, v46, v47")
    a("v_add_u32 v41, v46, v40")
    a("v_add_u32 v42, v46, v44")
    a("v_add_u32 v43, v46, v45")
    a("v_mov_b32 v40, v46")
    if OPT["keep"]:
        a("v_readlane_b32 s32, v46, s34")
        a("s_sub_u32 s33, s33, s16")
        a("s_sub_u32 s32, s32, s16")
    kn = [0]
    def kstore(text, lo, hi, on):
        if not on:
            a(text + NTS); return
        kn[0] += 1
        a(f"s_cmp_gt_i32 s32, {lo}")
        a(f"s_cbranch_scc1 Lk{kn[0]}")
        a(f"s_cmp_lt_i32 s33, {hi}")
        a(f"s_cbranch_scc1 Lk{kn[0]}")
        a(text + OPT["kfl"])
        a(f"s_branch Lkd{kn[0]}")
        a(f"Lk{kn[0]}:")
        a(text + NTS)
        a(f"Lkd{kn[0]}:")
    a(f"ds_write_b128 v5, v[40:43] offset:{K1_BASE}")
    for k in range(5):
        a(f"ds_read_b32 v{30+k}, v{30+k} offset:{K1_BASE}")
    a(f"s_mov_b32 s23, {K1_KS}")
    for k in range(5):
        a(f"s_waitcnt lgkmcnt({4-k+3*k})")
        a(f"v_add_u32 v{30+k}, v{30+k}, v{35+k}")
        a(f"v_lshlrev_b32 v{35+k}, 2, v{30+k}")
        a(f"v_mad_u32_u24 v{30+k}, v{30+k}, 12, s23")
        a(f"ds_write_b32 v{35+k}, v{53+k} offset:{K1_INV}")
        a(f"ds_write_b32 v{30+k}, v{15+k}")
        a(f"ds_write2_b32 v{30+k}, v{20+2*k}, v{21+2*k} offset0:1 offset1:2")
    a("s_mul_i32 s23, s14, 3840")
    a("v_add_u32 v8, s23, v5")
    a("v_lshrrev_b32 v9, 1, v2")
    a("v_add_lshl_u32 v9, v9, s16, 2")
    a(f"s_mul_i32 s23, s2, {CH*12}")
    a(f"s_add_u32 s23, s23, {WS_KS}")
    a("s_add_u32 s26, s12, s23\ns_addc_u32 s27, s13, 0")
    a(f"s_add_u32 s19, s19, {WS_EA}")
    a("s_add_u32 s28, s12, s19\ns_addc_u32 s29, s13, 0")
    a("v_and_b32 v10, 1, v2")
    a("v_lshlrev_b32 v10, 4, v10")
    a("v_add_u32 v6, 4096, v5")
    a("v_add_u32 v7, 8192, v5")
    a("s_waitcnt lgkmcnt(0)")
    a("s_barrier")
    stamp(2)
    for i in range(4):
        a(f"ds_read_b128 v[{12+4*i}:{15+4*i}], v8 offset:{K1_KS+i*1024}")
    for i in range(10):
        a(f"ds_read_b32 v{30+i}, v9 offset:{K1_INV+i*128}")
    for i in range(4):
        a(f"s_waitcnt lgkmcnt({13-i})")
        if i == 3: a("s_mov_b32 exec_hi, 0xffff")
        kstore(f"global_store_dwordx4 v8, v[{12+4*i}:{15+4*i}], s[26:27] offset:{i*1024}", i*1024//12, min(320, -(-(i+1)*1024//12)), OPT["keep"] >= 2)
    a("s_mov_b64 exec, -1")
    a("s_waitcnt lgkmcnt(0)")
    for i in range(10):
        a(f"v_add_u32 v{30+i}, v{30+i}, v10")
    a("s_waitcnt vmcnt(4)" if OPT["nob"] else "s_waitcnt vmcnt(0)")
    a("s_barrier")
    stamp(3)
    for i in range(10):
        a(f"ds_read_b128 v[{40+4*i}:{43+4*i}], v{30+i}")
    for i in range(10):
        if OPT["gate"] and i == OPT["gn"]: a("s_barrier")
        a(f"s_waitcnt vmcnt({OPT['slim']-1}) lgkmcnt({9-i})" if OPT["slim"] and (i >= OPT["slim"] or OPT["nob"]) else f"s_waitcnt lgkmcnt({9-i})")
        if OPT["nob"] and i == OPT["slim"] - 1:
            a("s_waitcnt lgkmcnt(0)")
            a(f"v_mov_b32 v9, {PCNT+4}")
            a("v_mov_b32 v11, 1")
            a("s_mov_b64 exec, 1")
            a("ds_add_u32 v9, v11")
            a("s_mov_b64 exec, -1")
        kstore(f"global_store_dwordx4 v{5+i//4}, v[{40+4*i}:{43+4*i}], s[28:29] offset:{(i%4)*1024}", 32*i, 32*i+32, OPT["keep"] >= 1)
        if i + 1 == OPT["csh"] and OPT["cpos"] == 5:
            a("s_waitcnt lgkmcnt(0)")
            a(f"v_mov_b32 v9, {PCNT+4}")
            a("ds_write_b32 v9, v9")
        if i + 1 == OPT["pn"]:
            a("s_waitcnt lgkmcnt(0)")
            a(f"v_mov_b32 v9, {PCNT}")
            a("v_mov_b32 v11, 1")
            a("s_mov_b64 exec, 1")
            a("ds_add_u32 v9, v11")
            a("s_mov_b64 exec, -1")
    stamp(4)
    stamp_out(0, 5, 12, 14)
    a("s_branch Ljoin")
    a("Lnochunk:")
    a(f"s_cmp_gt_u32 s2, {NCH}")
    a("s_cbranch_scc1 Lprep3")
    a("s_load_dwordx4 s[4:7], s[0:1], 40")
    a("s_load_dwordx2 s[8:9], s[0:1], 56")
    a("s_load_dwordx2 s[12:13], s[0:1], 80")
    a("s_lshr_b32 s14, s14, 6")
    a("v_and_b32 v2, 63, v0")
    a("v_lshlrev_b32 v5, 4, v2")
    a("s_waitcnt lgkmcnt(0)")
    a(f"s_add_u32 s12, s12, {WS_CONST}\ns_addc_u32 s13, s13, 0")
    def gather8(base, offs, dstoff_s):
        for k in range(8):
            a(f"global_load_ushort v{10+k}, v3, s[{base}:{base+1}] offset:{offs[k]}")
        a("s_waitcnt vmcnt(0)")
        for k in range(4):
            a(f"v_lshl_or_b32 v{20+k}, v{11+2*k}, 16, v{10+2*k}")
        a(f"v_add_u32 v6, s{dstoff_s}, v5")
        a("global_store_dwordx4 v6, v[20:23], s[12:13] sc1")
        a("s_waitcnt vmcnt(0)")
    a("s_cmp_ge_u32 s14, 8")
    a("s_cbranch_scc1 Lprep2")
    a("s_lshr_b32 s15, s14, 1")
    a("s_and_b32 s16, s14, 1")
    a("s_lshl_b32 s15, s15, 11")
    a("s_lshl_b32 s16, s16, 1")
    a("s_add_u32 s15, s15, s16")
    a("v_lshrrev_b32 v3, 5, v2")
    a("v_lshlrev_b32 v3, 10, v3")
    a("v_and_b32 v4, 31, v2")
    a("v_lshl_add_u32 v3, v4, 2, v3")
    a("v_add_u32 v3, s15, v3")
    a("s_lshl_b32 s17, s14, 10")
    a("s_add_u32 s17, s17, 4096")
    gather8(8, [k*128 for k in range(8)], 17)
    a("s_branch Lprep3")
    a("Lprep2:")
    a("s_sub_u32 s14, s14, 8")
    a("s_lshl_b32 s17, s14, 10")
    a("v_lshl_add_u32 v3, v2, 1, s17")
    gather8(6, [k*128 for k in range(8)], 17)
    a(f"s_lshl_b32 s15, s14, {6 if APRE == 2 else 4}")
    a("v_and_b32 v3, 3, v2")
    a("v_lshl_add_u32 v3, v3, 1, s15")
    a("s_add_u32 s17, s17, 2048")
    gather8(4, [k*8 if APRE == 2 else (k//2)*32 + (k%2)*8 for k in range(8)], 17)
    a("Lprep3:")
    a("s_barrier")
    a("Lidle:")
    if OPT["itn"]:
        a("s_load_dwordx2 s[4:5], s[0:1], 0")
        a(f"s_sub_u32 s15, s2, {NCH}")
        a("s_mul_i32 s15, s15, 960")
        if OPT["rot"]:
            a("v_add_u32 v3, s15, v0")
            a("v_bfe_u32 v4, v3, 6, 3")
            a("v_lshrrev_b32 v3, 9, v3")
            a("v_mul_u32_u24 v4, 12500, v4")
            a("v_lshl_add_u32 v3, v3, 6, v4")
            a("v_and_b32 v4, 63, v0")
            a("v_add_u32 v3, v3, v4")
            a(f"v_add_u32 v3, {OPT['ri']}, v3")
            a("v_lshlrev_b32 v3, 7, v3")
        else:
            a("v_add_lshl_u32 v3, v0, s15, 7")
        a("s_waitcnt lgkmcnt(0)")
        for i in range(OPT["itn"]):
            if i: a(f"v_add_u32 v3, {(256-NCH)*15*8192}, v3")
            a("global_load_dword v4, v3, s[4:5]")
        a("s_waitcnt vmcnt(0)")
        a("s_barrier")
    a("s_branch Ljoin")
    a("Lspare:")
    a("s_cmp_ge_u32 s14, 960")
    a("s_cbranch_scc1 Lw15")
    a("s_barrier")
    a(f"s_cmp_ge_u32 s2, {NCH}")
    a("s_cbranch_scc1 Lidle")
    def xtouch1():
        a("s_cmp_ge_u32 s14, 896")
        a("s_cbranch_scc1 Lnotouch1")
        a("global_load_dword v44, v3, s[4:5]")
        a("Lnotouch1:")
    if OPT["pfpos"] in ("P2", "P3", "P4"):
        a("s_load_dwordx2 s[4:5], s[0:1], 0")
        a("s_lshr_b32 s15, s14, 6")
        a("s_lshl_b32 s16, s2, 2")
        a("s_add_u32 s15, s15, s16")
        a("s_sub_u32 s15, s15, 10")
        a(f"s_mul_i32 s15, s15, {OPT['pfn']*512}")
        a("v_and_b32 v3, 63, v0")
        a(f"v_min_u32 v3, {4*OPT['pfn']-1}, v3")
        a("v_lshl_add_u32 v3, v3, 7, s15")
        a("s_waitcnt lgkmcnt(0)")
    for i in (2, 3, 4):
        a("s_barrier")
        if OPT["pfpos"] == f"P{i}": xtouch1()
    if OPT["gate"]: a("s_barrier")
    a("s_branch Ljoin")
    a("Lw15:")
    a("s_setprio 3")
    a("s_load_dwordx2 s[12:13], s[0:1], 80")
    a("s_load_dwordx2 s[4:5], s[0:1], 72")
    a("v_and_b32 v2, 63, v0")
    a("s_and_b32 s15, s2, 7\ns_lshl_b32 s15, s15, 5\ns_lshr_b32 s16, s2, 3\ns_add_u32 s15, s15, s16")
    TB = OPT["tb"]; PB = 128 // TB
    def colbase(sb, st):
        a(f"s_lshl_b32 s{st}, s{sb}, 2")
        if TB > 1:
            a(f"s_and_b32 s62, s{st}, {PB-1}")
            a(f"s_sub_u32 s{st}, s{st}, s62")
            a(f"s_mul_i32 s{st}, s{st}, {TB}")
            a(f"s_add_u32 s{st}, s{st}, s62")
    global COLBASE, COLOFF
    COLBASE = colbase
    COLOFF = [(j // TB) * TB * 1024 + (j % TB) * PB for j in range(4)]
    colbase(15, 15)
    a("v_lshl_add_u32 v14, v2, 12, s15")
    a(f"s_lshl_b32 s16, s2, {OPT['fsh']}")
    a(f"s_add_u32 s16, s16, {WS_FLAG}")
    a("v_mov_b32 v3, s16")
    for j in range(4): a(f"v_mov_b32 v{4+j}, -1")
    for j in range(4): a(f"v_mov_b32 v{24+j}, 0")
    a("s_and_b32 s16, s2, 3\ns_lshl_b32 s16, s16, 6")
    a("v_mov_b32 v9, s16\nv_mov_b32 v10, 1")
    a("v_lshlrev_b32 v11, 2, v2")
    a("v_lshlrev_b32 v12, 4, v2")
    a(f"s_and_b32 s16, s2, {TB-1}")
    a("s_sub_u32 s17, s2, s16")
    a("s_lshl_b32 s17, s17, 10")
    a(f"s_mul_i32 s16, s16, {PB}")
    a("s_add_u32 s17, s17, s16")
    a(f"v_and_b32 v1, {PB-1}, v12")
    a("v_sub_u32 v8, v12, v1")
    a(f"v_mad_u32_u24 v1, v8, {TB}, v1")
    a("v_add_u32 v1, s17, v1")
    a(f"v_mov_b32 v15, {TABOK}")
    a("ds_write_b128 v15, v[24:27]")
    a(f"s_mov_b32 s10, {256*1024}\ns_mov_b32 s11, 0x20000")
    a("s_waitcnt lgkmcnt(0)")
    a("s_mov_b32 s8, s12\ns_mov_b32 s9, s13")
    a("global_store_dwordx4 v1, v[4:7], s[12:13] sc1")
    a("s_mov_b64 exec, 1")
    a("global_store_dword v3, v4, s[12:13] sc1")
    a(f"s_cmp_ge_u32 s2, {NCH}")
    a("s_cbranch_scc1 Lw15_1")
    a("s_barrier")
    a("Lw15_1:")
    a("s_waitcnt vmcnt(0)")
    if OPT["nocnt"] < 2: a("global_atomic_add v9, v10, s[4:5] sc1")
    a("s_mov_b64 exec, -1")
    a(f"s_mov_b32 s17, {SPIN}")
    a("s_barrier")
    a(f"s_cmp_lt_u32 s2, {NCH}")
    a("s_cbranch_scc1 Lw15_a")
    a("global_store_dwordx4 v1, v[24:27], s[12:13] sc1")
    for i in range(OPT["isleep"]): a("s_sleep 100")
    if OPT["itn"]: a("s_barrier")
    a("s_branch Lw15_poll")
    a("Lw15_a:")
    a(f"ds_read_b128 v[16:19], v12 offset:{K1_HIST}")
    a(f"s_mul_i32 s16, s2, {CH}")
    a("s_waitcnt lgkmcnt(0)")
    scan4(16, 20, 21, 22, 23)
    a("v_sub_u32 v22, v22, v23")
    a("v_add_u32 v22, s16, v22")
    a("v_add_u32 v25, v22, v16")
    a("v_add_u32 v26, v22, v20")
    a("v_add_u32 v27, v22, v21")
    a("v_lshl_or_b32 v24, v16, 20, v22")
    for j in range(1, 4): a(f"v_lshl_or_b32 v{24+j}, v{16+j}, 20, v{24+j}")
    if OPT["cpos"] >= 3: a("s_barrier")
    if OPT["cpos"] == 4:
        a("s_barrier")
        if OPT["nob"]:
            a("Lw15_s:")
            a("s_sleep 1")
            a("ds_read_b32 v22, v15 offset:12")
            a("s_waitcnt lgkmcnt(0)")
            a("v_readfirstlane_b32 s18, v22")
            a("s_cmp_lt_u32 s18, 10")
            a("s_cbranch_scc1 Lw15_s")
        a("global_store_dwordx4 v1, v[24:27], s[12:13] sc1")
    if OPT["cpos"] == 5:
        a("s_barrier")
        a("global_store_dwordx4 v1, v[24:27], s[12:13] sc1")
        a("Lw15_q:")
        a("s_sleep 2")
        a("ds_read_b32 v22, v15 offset:12")
        a("s_waitcnt lgkmcnt(0)")
        a("v_readfirstlane_b32 s18, v22")
        a("s_cmp_eq_u32 s18, 0")
        a("s_cbranch_scc1 Lw15_q")
    stamp(1)
    a("s_branch Lw15_poll0")
    a("Lw15_poll:")
    a(f"s_sleep {OPT['tsleep']}")
    a("Lw15_poll0:")
    if OPT["nocnt"]: a("s_branch Lw15_cdone")
    a("global_load_dword v13, v11, s[4:5] sc1")
    a("s_sub_u32 s17, s17, 1")
    a("s_cbranch_scc1 Lend")
    a("s_waitcnt vmcnt(0)")
    for j in range(4): a(f"v_readlane_b32 s{18+j}, v13, {16*j}")
    a("s_add_u32 s18, s18, s19\ns_add_u32 s20, s20, s21\ns_add_u32 s18, s18, s20")
    a("s_cmp_lt_u32 s18, 256")
    a("s_cbranch_scc1 Lw15_poll")
    a("Lw15_cdone:")
    stamp(2)
    a(f"s_cmp_ge_u32 s2, {NCH}")
    a("s_cbranch_scc1 Lw15_n" if OPT["nbr"] else "s_cbranch_scc1 Lw15_c")
    if OPT["cpos"] < 3: a("s_barrier")
    if OPT["cpos"] < 4:
        a("s_barrier")
        a("global_store_dwordx4 v1, v[24:27], s[12:13] sc1")
    if OPT["kwait"]:
        a("Lw15_k:")
        a("s_sleep 2")
        a(f"ds_read_b32 v22, v15 offset:{8 if OPT['pn'] else 4}")
        a("s_waitcnt lgkmcnt(0)")
        a("v_readfirstlane_b32 s18, v22")
        a(f"s_cmp_lt_u32 s18, {OPT['kwait']}")
        a("s_cbranch_scc1 Lw15_k")
    a("Lw15_c:")
    stamp(3)
    def column():
        for j in range(4):
            a(f"buffer_load_dword v{16+j}, v14, s[8:11], 0 offen offset:{COLOFF[j]} sc1")
    column()
    a("Lw15_col:")
    a("s_waitcnt vmcnt(0)")
    a("v_max_u32 v20, v16, v17")
    a("v_max3_u32 v20, v18, v19, v20")
    a("v_cmp_eq_u32 vcc, -1, v20")
    a("s_and_b64 exec, exec, vcc")
    a("s_cbranch_scc0 Lw15_e")
    a(f"s_sleep {OPT['csleep']}")
    column()
    a("s_sub_u32 s17, s17, 1")
    a("s_cbranch_scc0 Lw15_col")
    a("s_endpgm")
    if OPT["nbr"]:
        a("Lw15_n:")
        a(f"global_load_dword v13, v3, s[12:13] offset:{-(8 << OPT['fsh'])} sc1")
        a("s_sub_u32 s17, s17, 1")
        a("s_cbranch_scc1 Lend")
        a("s_waitcnt vmcnt(0)")
        a("v_cmp_eq_u32 vcc, 0, v13")
        a("s_cbranch_vccnz Lw15_c")
        a(f"s_sleep {OPT['tsleep']}")
        a("s_branch Lw15_n")
    a("Lw15_e:")
    a("s_mov_b64 exec, -1")
    a(f"v_add_u32 v12, {TABL}, v12")
    a("v_lshlrev_b32 v13, 3, v2")
    a("v_mov_b32 v20, 0\nv_mov_b32 v21, 0")
    a("ds_write_b128 v12, v[16:19]")
    a(f"ds_write_b64 v13, v[20:21] offset:{MAP}")
    a("ds_write_b32 v15, v10")
    if OPT["gate"]:
        a(f"s_cmp_ge_u32 s2, {NCH}")
        a("s_cbranch_scc1 Lw15_h")
        a("s_barrier")
        a("Lw15_h:")
    a("s_setprio 0")
    stamp(4)
    if OPT["stamps"] == 16:
        a("s_mov_b32 s14, 15")
        stamp_out(0, 5, 12, 14, "w")
    a("s_waitcnt lgkmcnt(0)")

def phase2():
    sched = dict((k, int(v)) for k, v in (x.split(":") for x in OPT["easched"].split(",")))
    assert sum(sched.values()) == 6
    STAGES = ["B1", "S2", "B2", "S3", "B3", "B4", "S4", "C", "X", "A4", "A8"]
    GP = OPT["gpos"]
    assert all((k == "S1" and OPT["early"]) or STAGES.index(k) >= STAGES.index(GP) for k in sched), "no edge_attr load before the flags are checked"
    a("Ljoin:")
    a(f"s_load_dwordx2 s[{sWs}:{sWs+1}], s[0:1], 80")
    a(f"s_load_dwordx2 s[{sX}:{sX+1}], s[0:1], 0")
    a(f"s_load_dwordx2 s[{sOut}:{sOut+1}], s[0:1], 64")
    a(f"v_lshrrev_b32 v81, 6, v0")
    a(f"v_and_b32 v{vLane}, 63, v0")
    a(f"v_readfirstlane_b32 s{sWave}, v81")
    a(f"s_and_b32 s{sBin}, s2, 7")
    a(f"s_lshl_b32 s{sBin}, s{sBin}, 5")
    a(f"s_lshr_b32 s{sT0}, s2, 3")
    a(f"s_add_u32 s{sBin}, s{sBin}, s{sT0}")
    a(f"v_lshlrev_b32 v81, 4, v{vLane}")
    a(f"s_mov_b32 s{sTab+2}, {256*1024}")
    a(f"s_mov_b32 s{sTab+3}, 0x20000")
    a(f"s_mov_b32 s{sBase}, 0\ns_mov_b32 s{sL}, {CAP}\ns_mov_b32 s{sFirst}, 1\ns_mov_b32 s{sPoll}, 1\ns_mov_b32 s{sGoal}, 6")
    a(f"s_mov_b32 s{sEx}, 0x0f0f0f0f\ns_mov_b32 s{sEx+1}, 0xf0f0f0f0")
    a(f"s_mov_b32 s{sC0}, 0xc000")
    a(f"s_mul_i32 s{sReg}, s{sWave}, {REG}")
    a(f"s_lshl_b32 s{sEm}, s{sWave}, 11")
    a(f"s_add_u32 s{sEm}, s{sEm}, {EA0}")
    a(f"v_and_b32 v{vS16}, 1, v{vLane}")
    a(f"v_and_b32 v{vF}, 0x3c1, v0")
    a(f"v_bfe_u32 v82, v{vLane}, 1, 1")
    a(f"v_lshl_add_u32 v{vF}, v82, 5, v{vF}")
    a(f"v_lshrrev_b32 v82, 2, v{vLane}")
    a(f"v_lshl_add_u32 v{vF}, v82, 1, v{vF}")
    a(f"v_lshlrev_b32 v{vS16}, 4, v{vS16}")
    for i in range(32):
        a(f"v_mov_b32 v{ACC+i}, 0")
    a("s_waitcnt lgkmcnt(0)")
    a(f"s_mov_b32 s{sTab}, s{sWs}\ns_mov_b32 s{sTab+1}, s{sWs+1}")
    a(f"s_add_u32 s{sC}, s{sWs}, {WS_CONST}\ns_addc_u32 s{sC+1}, s{sWs+1}, 0")
    a(f"s_add_u32 s{sKS}, s{sWs}, {WS_KS}\ns_addc_u32 s{sKS+1}, s{sWs+1}, 0")
    a(f"s_add_u32 s{sEA}, s{sWs}, {WS_EA}\ns_addc_u32 s{sEA+1}, s{sWs+1}, 0")
    a(f"s_mov_b32 s{sOsrd}, s{sOut}\ns_mov_b32 s{sOsrd+1}, s{sOut+1}\ns_mov_b32 s{sOsrd+2}, {NN*512}\ns_mov_b32 s{sOsrd+3}, 0x20000")
    if OPT["spf"]:
        ns = NSP
        a(f"s_lshr_b32 s{sPf}, s{sWave}, 2")
        a(f"s_mul_i32 s{sT0}, s{sPf}, 1000")
        a(f"s_min_u32 s{sT1}, s2, 249")
        a(f"s_lshl_b32 s{sT1}, s{sT1}, 2")
        a(f"s_add_u32 s{sT0}, s{sT0}, s{sT1}")
        a(f"s_and_b32 s{sT1}, s{sWave}, 3")
        a(f"s_add_u32 s{sT0}, s{sT0}, s{sT1}")
        a(f"s_mul_i32 s{sT0}, s{sT0}, {ns*128}")
        a(f"s_add_u32 s{sT0}, s{sT0}, {NN*512 - NSP*512000}")
        a(f"s_add_u32 s{sPx}, s{sX}, s{sT0}\ns_addc_u32 s{sPx+1}, s{sX+1}, 0")
    def ldswait(tag, addr, cmp, areg=82, dreg=76):
        a(f"v_mov_b32 v{areg}, {addr}")
        a(f"s_mov_b32 s{sT1}, {SPIN*8}")
        a(f"Lw{tag}:")
        a(f"ds_read_b32 v{dreg}, v{areg}")
        a(f"s_sub_u32 s{sT1}, s{sT1}, 1")
        a("s_cbranch_scc1 Lend")
        a("s_waitcnt lgkmcnt(0)")
        a(f"v_readfirstlane_b32 s{sT0}, v{dreg}")
        a(cmp)
        a(f"s_cbranch_scc1 Lw{tag}d")
        a(f"s_sleep {OPT['gsleep']}")
        a(f"s_branch Lw{tag}")
        a(f"Lw{tag}d:")
    a(f"s_cmp_ge_u32 s{sWave}, 10")
    a("s_cbranch_scc1 Lhelper")
    a(f"v_mov_b32 v82, {KCNT}")
    a("v_mov_b32 v83, 1")
    a(f"s_lshl_b32 s{sT0}, s2, {OPT['fsh']}")
    a(f"s_add_u32 s{sT0}, s{sT0}, {WS_FLAG}")
    a(f"v_mov_b32 v84, s{sT0}")
    a("v_mov_b32 v85, 0")
    a("s_mov_b64 exec, 1")
    a("s_waitcnt vmcnt(0)")
    a("ds_add_rtn_u32 v83, v82, v83")
    a("s_waitcnt lgkmcnt(0)")
    a(f"v_readfirstlane_b32 s{sT0}, v83")
    a(f"s_cmp_lg_u32 s{sT0}, 9")
    a("s_cbranch_scc1 Lnoflag")
    a(f"global_store_dword v84, v85, s[{sWs}:{sWs+1}] sc1")
    a("Lnoflag:")
    a("s_mov_b64 exec, -1")
    if OPT["pfpos"] == "A" and OPT["rot"]:
        W, RN = OPT["rw"], OPT["rn"]
        a(f"s_sub_u32 s{sT0}, s{sT0}, {10-W}")
        a(f"s_cmp_ge_u32 s{sT0}, {W}")
        a("s_cbranch_scc1 Lgo")
        a(f"s_lshl_b32 s{sT0}, s{sT0}, 5")
        a(f"s_lshr_b32 s{sT1}, s2, 3")
        a(f"s_add_u32 s{sT0}, s{sT0}, s{sT1}")
        a(f"s_mul_i32 s{sT0}, s{sT0}, {RN*128}")
        a(f"s_and_b32 s{sT1}, s2, 7")
        a(f"s_mul_i32 s{sT1}, s{sT1}, 1600000")
        if OPT["ro"]: a(f"s_add_u32 s{sT1}, s{sT1}, {OPT['ro']*128}")
        a(f"s_add_u32 s{sT0}, s{sT0}, s{sT1}")
        a(f"v_min_u32 v{vAdr}, {RN-1}, v{vLane}")
        a(f"v_lshl_add_u32 v{vAdr}, v{vAdr}, 7, s{sT0}")
        a(f"v_min_u32 v{vAdr}, {NN*512-128}, v{vAdr}")
        a(f"global_load_dword v{vSink}, v{vAdr}, s[{sX}:{sX+1}]")
    elif OPT["pfpos"] == "A":
        a(f"s_sub_u32 s{sT0}, s{sT0}, {OPT['pa']}")
        a(f"s_cmp_ge_u32 s{sT0}, 4")
        a("s_cbranch_scc1 Lgo")
        a(f"s_min_u32 s{sT1}, s2, 249")
        a(f"s_lshl_b32 s{sT1}, s{sT1}, 2")
        a(f"s_add_u32 s{sT0}, s{sT0}, s{sT1}")
        a(f"s_mul_i32 s{sT0}, s{sT0}, {OPT['pfn']*512}")
        a(f"s_add_u32 s{sT0}, s{sT0}, {XT0}")
        a(f"v_min_u32 v{vAdr}, {4*OPT['pfn']-1}, v{vLane}")
        a(f"v_lshl_add_u32 v{vAdr}, v{vAdr}, 7, s{sT0}")
        a(f"global_load_dword v{vSink}, v{vAdr}, s[{sX}:{sX+1}]")
    a("s_branch Lgo")
    a("Lhelper:")
    a(f"s_cmp_lt_u32 s{sWave}, 15")
    a("s_cbranch_scc1 Lexpand")
    a(f"v_lshlrev_b32 v77, 1, v{vLane}")
    a("v_sub_u32 v78, 0x7f, v77")
    a("v_sub_u32 v79, 0x7e, v77")
    a("v_lshlrev_b32 v77, 2, v77")
    a("v_mov_b32 v82, 0x7f000000")
    a("v_mov_b32 v83, 0x7f000000")
    a(f"ds_write_b64 v77, v[78:79] offset:{DEG}")
    a(f"ds_write_b64 v77, v[82:83] offset:{INVM}")
    a("s_branch Lgo")
    a("Lexpand:")
    ldswait("tab", TABOK, f"s_cmp_lg_u32 s{sT0}, 0")
    a(f"v_add_u32 v82, {TABL}, v81")
    a("ds_read_b128 v[52:55], v82")
    a("s_waitcnt lgkmcnt(0)")
    a("Lhavetab:")
    a(f"s_sub_u32 s{sT2}, s{sWave}, 10")
    for j in range(4):
        a(f"v_lshrrev_b32 v{56+j}, 20, v{52+j}")
    scan4(56, 76, 77, 78, 79, [f"v_and_b32 v{60+j}, 0xfffff, v{52+j}" for j in range(4)])
    a("v_sub_u32 v64, v78, v79")
    a(f"v_readlane_b32 s{sTot}, v78, 63")
    a("v_add_u32 v65, v64, v56")
    a("v_add_u32 v66, v64, v76")
    a("v_add_u32 v67, v64, v77")
    a(f"s_sub_u32 s{sN}, s{sTot}, s{sBase}")
    a(f"s_min_u32 s{sN}, s{sN}, s{sL}")
    a(f"s_cmp_lg_u32 s{sN}, s{sTot}")
    a("s_cbranch_scc1 Lclip")
    a("Lnoclip:")
    a("v_max_u32 v80, v56, v57")
    a("v_max3_u32 v80, v58, v59, v80")
    for j in range(4):
        a(f"v_sub_u32 v{60+j}, v{60+j}, v{64+j}")
        a(f"v_add_lshl_u32 v{64+j}, v{64+j}, s{sT2}, 2")
    a("Lexp:")
    for it in range(3):
        for j in range(4):
            a(f"v_cmp_lt_u32 s[{sMk+2*j}:{sMk+2*j+1}], s{sT2}, v{56+j}")
        a(f"s_add_u32 s{sT2}, s{sT2}, 5")
        a(f"v_cmp_lt_u32 vcc, s{sT2}, v80")
        for j in range(4):
            a(f"s_mov_b64 exec, s[{sMk+2*j}:{sMk+2*j+1}]")
            a(f"ds_write_b32 v{64+j}, v{60+j} offset:{DD+20*it}")
        a("s_mov_b64 exec, -1")
        a("s_cbranch_vccz Lexpdone")
    a("s_waitcnt lgkmcnt(0)")
    for j in range(4):
        a(f"v_add_u32 v{64+j}, 60, v{64+j}")
    a("s_branch Lexp")
    a("Lexpdone:")
    a("v_mov_b32 v76, 0")
    a(f"v_mov_b32 v77, s{sTot}")
    a(f"ds_write_b32 v76, v77 offset:{TOT}")
    a("Lgo:")
    a(f"v_lshlrev_b32 v{vK}, 2, v{vF}")
    a(f"v_mov_b32 v{vP}, 0")
    for k in range(4):
        a(f"v_add_u32 v{vS+k}, {1024*k}, v{vF}")
    stamp(0)
    a("s_waitcnt lgkmcnt(0)")
    a("s_barrier")
    stamp(1)
    a(f"ds_read_b32 v{vP}, v{vP} offset:{TOT}")
    for k in KORD:
        a(f"ds_read_b32 v{vG+k}, v{vK} offset:{DD+4096*k}")
    a(f"s_sub_u32 s{sT2}, s{sWave}, {CW}")
    a(f"s_cmp_ge_u32 s{sT2}, 4")
    a("s_cbranch_scc1 Lnoc")
    a(f"s_mov_b32 m0, s{sReg}")
    a(f"s_lshl_b32 s{sT0}, s{sT2}, 10")
    a(f"v_add_u32 v82, s{sT0}, v81")
    a(f"global_load_lds_dwordx4 v82, s[{sC}:{sC+1}]{HLD}")
    a("Lnoc:")
    a("s_waitcnt lgkmcnt(4)")
    a(f"v_readfirstlane_b32 s{sTot}, v{vP}")
    a(f"s_sub_u32 s{sN}, s{sTot}, s{sBase}")
    a(f"s_min_u32 s{sN}, s{sN}, s{sL}")
    for k in KORD:
        a(f"v_cmp_gt_u32 s[{sMk+2*k}:{sMk+2*k+1}], s{sN}, v{vS+k}")
    def skip3(tag):
        a(f"s_cmp_eq_u64 s[{sMk+6}:{sMk+7}], 0")
        a(f"s_cbranch_scc1 Ls3{tag}")
    tagn = [0]
    def recs(fn):
        for k in range(3): fn(k)
        tagn[0] += 1
        skip3(f"r{tagn[0]}")
        fn(3)
        a(f"Ls3r{tagn[0]}:")
    for i, k in enumerate(KORD):
        a(f"s_waitcnt lgkmcnt({3-i})")
        a(f"v_add_u32 v{vG+k}, v{vG+k}, v{vS+k}")
        a(f"v_cndmask_b32 v{vG+k}, 0, v{vG+k}, s[{sMk+2*k}:{sMk+2*k+1}]")
        if OPT["safe"]: a(f"v_min_u32 v{vG+k}, {NE-1}, v{vG+k}")
        a(f"v_mul_u32_u24 v{vPos+k}, 12, v{vG+k}")
        if k == 3: skip3("a")
        a(f"global_load_dwordx3 v[{vKS+4*k}:{vKS+2+4*k}], v{vPos+k}, s[{sKS}:{sKS+1}]{HLD}")
        if k == 3: a("Ls3a:")
    for k in range(4):
        a(f"v_lshlrev_b32 v{vG+k}, 5, v{vG+k}")
    stamp(2)
    def xtouch(tag):
        a(f"s_cmp_lt_u32 s{sWave}, 12")
        a(f"s_cbranch_scc1 Lnotouch{tag}")
        a(f"s_min_u32 s{sT0}, s2, 249")
        a(f"s_lshl_b32 s{sT0}, s{sT0}, 2")
        a(f"s_add_u32 s{sT0}, s{sT0}, s{sWave}")
        a(f"s_sub_u32 s{sT0}, s{sT0}, 12")
        a(f"s_mul_i32 s{sT0}, s{sT0}, {OPT['pfn']*512}")
        a(f"s_add_u32 s{sT0}, s{sT0}, {XT0}")
        a(f"v_min_u32 v{vAdr}, {4*OPT['pfn']-1}, v{vLane}")
        a(f"v_lshl_add_u32 v{vAdr}, v{vAdr}, 7, s{sT0}")
        a(f"global_load_dword v{vSink}, v{vAdr}, s[{sX}:{sX+1}]")
        a(f"Lnotouch{tag}:")
    a(f"s_cmp_ge_u32 s{sWave}, 2")
    a("s_cbranch_scc1 Lnort")
    a("v_lshlrev_b32 v77, 2, v0")
    a(f"v_subrev_u32 v52, {BAND}, v0")
    a(f"v_cmp_le_u32 vcc, {BAND+14}, v0")
    a("v_cmp_gt_u32 s[58:59], 14, v52")
    a("v_subrev_u32 v79, 14, v0")
    a("v_lshrrev_b32 v80, 1, v52")
    a("v_cndmask_b32 v76, v0, v79, vcc")
    a("v_mul_u32_u24 v79, 147, v76")
    a("v_lshrrev_b32 v79, 11, v79")
    a("v_mad_i32_i24 v76, v79, -14, v76")
    a("v_and_b32 v53, 1, v79")
    a("v_cmp_eq_u32 vcc, 1, v53")
    a("v_sub_u32 v53, 13, v76")
    a("v_xor_b32 v52, v52, v80")
    a("v_and_or_b32 v52, v52, 1, 14")
    a("v_cndmask_b32 v76, v76, v53, vcc")
    a("v_cndmask_b32 v79, v79, v80, s[58:59]")
    a("v_cndmask_b32 v76, v76, v52, s[58:59]")
    a(f"v_mul_u32_u24 v52, {REG + (32 << 16)}, v76")
    a("v_lshl_or_b32 v52, v79, 2, v52")
    a("v_and_b32 v53, 1, v79")
    a("v_lshl_add_u32 v52, v53, 20, v52")
    a("v_lshrrev_b32 v79, 1, v79")
    a("v_lshl_add_u32 v52, v79, 18, v52")
    a(f"ds_write_b32 v77, v52 offset:{RT}")
    a("Lnort:")
    a("v_lshrrev_b32 v76, 3, v0")
    a("v_lshlrev_b32 v15, 2, v76")
    a("v_and_b32 v16, 7, v0")
    a("v_lshlrev_b32 v16, 6, v16")
    a("v_mov_b32 v17, 0x80")
    a(f"v_lshl_add_u32 v82, v{vLane}, 2, s{sReg}")
    a("v_mov_b32 v83, 0")
    a("s_waitcnt vmcnt(0)")
    stamp(3)
    for k in range(4):
        a(f"v_and_b32 v{vKS+3+4*k}, 0x1fc, v{vKS+4*k}")
    def eadma(n):
        k, h = n // 2, n % 2
        a(f"s_add_u32 m0, s{sEm}, {k*32768 + h*1024}")
        a(f"v_add_u32_dpp v{vAdr}, v{vG+k}, v{vS16} quad_perm:[{2*h},{2*h},{2*h+1},{2*h+1}] {DPPM}")
        a(f"global_load_lds_dwordx4 v{vAdr}, s[{sEA}:{sEA+1}]{HLD}")
    nxt = [0]
    def ea_stage(name):
        for _ in range(sched.get(name, 0)):
            eadma(nxt[0]); nxt[0] += 1
            if nxt[0] == 6:
                skip3("b")
                eadma(6); eadma(7)
                a("Ls3b:")
    def sync(name):
        if OPT["pfpos"] == name or GP == name:
            a(f"s_cmp_eq_u32 s{sPoll}, 0")
            a(f"s_cbranch_scc1 Lpolled{name}")
            if OPT["pfpos"] == name: xtouch(name)
        if GP == name:
            a(f"s_mov_b32 s{sPoll}, 0")
            a(f"s_cmp_ge_u32 s{sWave}, 4")
            a(f"s_cbranch_scc1 Lpolled{name}")
            a(f"v_min_u32 v{vK}, {NCH-1}, v0")
            a(f"v_lshlrev_b32 v{vK}, {OPT['fsh']}, v{vK}")
            a(f"v_add_u32 v{vK}, {WS_FLAG}, v{vK}")
            a(f"s_mov_b32 s{sT3}, {SPIN}")
            a("Lflagpoll:")
            if OPT["psleep"]: a(f"s_sleep {OPT['psleep']}")
            a(f"global_load_dword v{vP}, v{vK}, s[{sWs}:{sWs+1}] sc1")
            a(f"s_sub_u32 s{sT3}, s{sT3}, 1")
            a("s_cbranch_scc1 Lend")
            a("s_waitcnt vmcnt(0)")
            a(f"v_cmp_ne_u32 vcc, 0, v{vP}")
            a("s_and_b64 exec, exec, vcc")
            a("s_cbranch_scc1 Lflagpoll")
            if OPT["early"]:
                a("s_mov_b64 exec, 1")
                a(f"v_mov_b32 v{vK}, 0")
                a(f"v_mov_b32 v{vP}, 1")
                a(f"ds_add_u32 v{vK}, v{vP} offset:{GO}")
            a("s_mov_b64 exec, -1")
            if OPT["gst"]: stamp(3)
        if OPT["pfpos"] == name or GP == name: a(f"Lpolled{name}:")
        if GP == name and OPT["early"]:
            assert name == "B1" and not OPT["epi"]
            ldswait("g", GO, f"s_cmp_eq_u32 s{sT0}, 4", areg=vE, dreg=vI)
            ea_stage("S1")
        a("s_waitcnt lgkmcnt(0)")
        a("s_barrier")
    a(f"s_cmp_eq_u32 s{sFirst}, 0")
    a("s_cbranch_scc1 Llatermap")
    a(f"s_mov_b32 s{sFirst}, 0")
    if OPT["pfpos"] == "F": xtouch("F")
    def f(k):
        a(f"s_mov_b64 exec, s[{sMk+2*k}:{sMk+2*k+1}]")
        a(f"ds_add_u32 v{vKS+3+4*k}, v17 offset:{DEG}")
    recs(f)
    a("s_mov_b64 exec, -1")
    sync("B1")
    stamp(4)
    a(f"ds_write_b32 v82, v83 offset:{HISTO}")
    ea_stage("B1")
    a(f"s_cmp_ge_u32 s{sWave}, 13")
    a("s_cbranch_scc1 Lnorank")
    a(f"ds_read_b32 v77, v15 offset:{DEG}")
    for i in range(4):
        a(f"ds_read_b128 v[{52+4*i}:{55+4*i}], v16 offset:{DEG+16*i}" if not (APRE and i == 3) else f"ds_read_b128 v[68:71], v16 offset:{DEG+48}")
    a("v_mov_b32 v78, 0")
    a(f"v_cmp_gt_u32 vcc, {NPB}, v76")
    a("v_lshlrev_b32 v76, 9, v76")
    for i in range(16):
        r = 52 + i + (4 if APRE and i >= 12 else 0)
        if i % 4 == 0: a(f"s_waitcnt lgkmcnt({3-i//4})")
        a(f"v_sub_u32 v{r}, v77, v{r}")
        a(f"v_alignbit_b32 v78, v78, v{r}, 31")
    a("v_bcnt_u32_b32 v78, v78, 0")
    a("v_lshlrev_b32 v78, 2, v78")
    for d in ("quad_perm:[1,0,3,2]", "quad_perm:[2,3,0,1]", "row_half_mirror"):
        nop(2)
        a(f"v_add_u32_dpp v78, v78, v78 {d} {DPPM}")
    a(f"ds_read_b32 v78, v78 offset:{RT}")
    a("s_mov_b64 exec, vcc")
    a("s_waitcnt lgkmcnt(0)")
    a("v_lshrrev_b32 v79, 16, v78")
    a("v_and_b32 v78, 0xffff, v78")
    a(f"ds_write_b32 v79, v76 offset:{INVM}")
    a(f"ds_write_b32 v15, v78 offset:{MAP}")
    a("s_mov_b64 exec, -1")
    a("Lnorank:")
    ea_stage("S2")
    later = list(range(nxt[0]))
    assert nxt[0] < 6
    a("Lhavemap:")
    sync("B2")
    stamp(5)
    if OPT["rot"]:
        a(f"s_and_b32 s{sT2}, s2, {OPT['rm']}")
        a(f"s_mul_i32 s{sT2}, s{sT2}, {3125 << 17}")
    def f(k):
        a(f"ds_read_b32 v{76+k}, v{vKS+3+4*k} offset:{MAP}")
        if OPT["rot"]:
            a(f"v_subrev_u32 v{52+k}, s{sT2}, v{vKS+4*k}")
            a(f"v_lshrrev_b32 v{52+k}, {17+PH-2}, v{52+k}")
        else:
            a(f"v_lshrrev_b32 v{52+k}, {17+PH-2}, v{vKS+4*k}")
        a(f"v_lshlrev_b32 v{vS+k}, 5, v{vS+k}")
    recs(f)
    ea_stage("B2")
    a("v_mov_b32 v83, 12")
    a(f"s_mov_b32 s{sT0}, {0x3c if PH == 11 else 0x7c}")
    a(f"s_mov_b32 s{sT1}, 0xfffe0000")
    a("s_waitcnt lgkmcnt(0)")
    def f(k):
        a(f"s_mov_b64 exec, s[{sMk+2*k}:{sMk+2*k+1}]")
        a(f"v_bfi_b32 v{vKS+3+4*k}, s{sT0}, v{52+k}, v{76+k}")
        a(f"ds_add_rtn_u32 v{vPos+k}, v{vKS+3+4*k}, v83 offset:{HISTO}")
        a(f"v_bfi_b32 v{vS+k}, 28, v{76+k}, v{vS+k}")
        a(f"v_bfi_b32 v{vKS+4*k}, s{sT1}, v{vKS+4*k}, v{vS+k}")
    recs(f)
    a("s_mov_b64 exec, -1")
    ea_stage("S3")
    a(f"v_and_b32 v14, 31, v{vLane}")
    a(f"v_lshl_add_u32 v14, v14, 2, s{sReg}")
    a(f"v_mad_u32_u24 v17, v{vLane}, 12, s{sReg}")
    sync("B3")
    a(f"ds_read_b32 v52, v14 offset:{HISTO}")
    for i in range(2):
        a(f"ds_read_b128 v[{vWr+4*i}:{vWr+4*i+3}], v81 offset:{REG*(CW+i)}")
        a(f"ds_read_b128 v[{vCg+4*i}:{vCg+4*i+3}], v81 offset:{REG*(CW+2+i)}")
    ea_stage("B3")
    fill = [f"v_and_b32 v12, 3, v{vLane}", f"v_bfe_u32 v13, v{vLane}, 2, 1", "v_lshl_add_u32 v12, v13, 3, v12",
            f"v_bfe_u32 v13, v{vLane}, 3, 1", "v_lshl_add_u32 v12, v13, 2, v12", f"v_bfe_u32 v13, v{vLane}, 4, 1",
            "v_lshl_add_u32 v12, v12, 1, v13", f"v_mad_u32_u24 v12, v12, 12, s{sReg}",
            f"v_lshrrev_b32 v13, 2, v{vLane}", f"v_bfe_u32 v15, v{vLane}, 1, 1", "v_lshl_add_u32 v13, v15, 4, v13",
            f"v_mad_u32_u24 v13, v13, 12, s{sReg}", f"v_lshrrev_b32 v15, 2, v{vS16}", "v_add3_u32 v13, v13, v15, 4"]
    if APRE == 2:
        fill[8:] = [f"v_lshrrev_b32 v13, 2, v{vLane}", f"v_and_b32 v15, 3, v{vLane}", "v_lshl_add_u32 v13, v15, 4, v13",
                    f"v_mad_u32_u24 v13, v13, 12, s{sReg}", "v_add_u32 v16, 1536, v13", "s_nop 0"]
    for _ in range(6): a(fill.pop(0))
    a("v_mov_b32 v83, 28")
    a("v_mov_b32 v54, 0")
    a("s_waitcnt lgkmcnt(4)")
    a(f"v_sub_u32 v53, s{sReg}, v52")
    for d, rm in (("row_shr:1","0xf"), ("row_shr:2","0xf"), ("row_shr:4","0xf"), ("row_shr:8","0xf"), ("row_bcast:15","0xa")):
        a(f"v_add_u32_dpp v52, v52, v52 {d} row_mask:{rm} bank_mask:0xf")
        if fill: a(fill.pop(0)); a(fill.pop(0))
    a("v_add_u32 v53, v53, v52")
    a(f"v_readlane_b32 s{sCnt}, v52, 31")
    a(f"ds_write_b32 v14, v53 offset:{HISTO}")
    a(f"s_cmp_gt_u32 s{sCnt}, {NB*32*12}")
    a("s_cbranch_scc1 Lover")
    a("Loverb:")
    a(f"v_add_u32 v17, s{sCnt}, v17")
    a(f"s_add_u32 s{sR}, s{sCnt}, 12")
    a(f"s_mul_i32 s{sR}, s{sR}, 2731")
    a(f"s_lshr_b32 s{sCnt}, s{sR}, 16")
    a(f"s_min_u32 s{sTail}, s{sCnt}, 3")
    a(f"s_sub_u32 s{sR}, s{sCnt}, s{sTail}")
    sync("B4")
    stamp(6)
    a(f"ds_read_b32 v54, v54 offset:{OVER}")
    recs(lambda k: a(f"ds_read_b32 v{vKS+3+4*k}, v{vKS+3+4*k} offset:{HISTO}"))
    ea_stage("B4")
    a("s_waitcnt lgkmcnt(0)")
    a("v_cmp_ne_u32 vcc, 0, v54")
    a("s_cbranch_vccnz Lslow")
    a("s_mov_b64 exec, 63")
    a("ds_write_b32 v17, v83")
    def f(k):
        a(f"s_mov_b64 exec, s[{sMk+2*k}:{sMk+2*k+1}]")
        a(f"v_add_u32 v{vPos+k}, v{vPos+k}, v{vKS+3+4*k}")
        a(f"ds_write_b32 v{vPos+k}, v{vKS+4*k}")
        a(f"ds_write2_b32 v{vPos+k}, v{vKS+1+4*k}, v{vKS+2+4*k} offset0:1 offset1:2")
    recs(f)
    a("s_mov_b64 exec, -1")
    ea_stage("S4")
    a(f"v_bfe_u32 v14, v{vLane}, 2, 2")
    a(f"v_and_b32 v15, 3, v{vLane}")
    a(f"v_lshrrev_b32 v{vE}, 5, v{vLane}")
    a(f"v_lshlrev_b32 v{vLs}, 7, v14")
    a(f"v_lshl_add_u32 v{vLs}, v15, 4, v{vLs}")
    a(f"v_lshrrev_b32 v{vT[0]}, 1, v{vLs}")
    a(f"v_lshl_add_u32 v{vLs}, v{vE}, 6, v{vLs}")
    a(f"v_lshl_add_u32 v{vT[0]}, v{vE}, 9, v{vT[0]}")
    a(f"v_bfe_u32 v14, v{vLane}, 4, 1")
    a(f"v_lshl_add_u32 v{vT[0]}, v14, 5, v{vT[0]}")
    a(f"v_add_u32 v{vT[0]}, s{sReg}, v{vT[0]}")
    sync("C")
    stamp(7)
    for b in range(NB):
        a(f"ds_read_b32 v{vPr+b}, v12 offset:{b*384}")
    if APRE == 2:
        for t in range(4):
            a(f"ds_read2_b32 v[{28+2*t}:{29+2*t}], v{13 if t < 2 else 16} offset0:{192*(t%2)+1} offset1:{192*(t%2)+2}")
    else:
        for b in range(NB):
            a(f"ds_read_b32 v{vSr+b}, v13 offset:{b*384}")
    ea_stage("C")
    a(f"v_add_u32 v{vT[1]}, 1024, v{vT[0]}")
    a(f"v_add_u32 v{vT[2]}, 2048, v{vT[0]}")
    a(f"v_mov_b32 v{vEm}, 0x1ffe0")
    a(f"s_mov_b32 s{sM0[0]}, s{sReg}")
    a(f"s_add_u32 s{sM0[1]}, s{sReg}, 1024")
    a(f"s_add_u32 s{sM0[2]}, s{sReg}, 2048")
    for i in range(0 if APRE == 2 else 8):
        a(f"v_mov_b32 v{vEaA+i}, 0")
    a(f"s_mov_b32 s{sBlk}, 0x1000")
    a(f"s_mov_b32 s{sGi}, 0x1000")
    a("s_waitcnt lgkmcnt(0)")
    def adr(n):
        a(f"v_add_u32_dpp v{vAdr}, v{vK}, v{vLs} row_newbcast:{LN(n)} {DPPM}")
    DMA = f"global_load_lds_dwordx4 v{vAdr}, s[{sX}:{sX+1}]"
    def rowoff():
        a(f"v_lshrrev_b32 v{vK}, 8, v{vP}")
        a(f"v_and_b32 v{vK}, 0xfffe00, v{vK}")
        a(f"v_min_u32 v{vK}, {(NN-1)*512}, v{vK}")
    def idx_pack_a():
        a(f"v_and_or_b32 v{vI}, v{vP}, 28, s{sC0}")
        a(f"v_lshlrev_b32 v{vI}, v{vS16}, v{vI}")
    def idx_pack_b():
        a(f"v_or_b32_dpp v{vI}, v{vI}, v{vI} quad_perm:[1,0,3,2] {DPPM}")
    def ea_adr(g, half):
        lo, hi = ("quad_perm:[0,1,2,3]", "row_shr:4") if g == 0 else ("row_shl:4", "quad_perm:[0,1,2,3]")
        if half == 0: a(f"v_and_b32_dpp v{vE}, v{vP}, v{vEm} {lo} row_mask:0x3 bank_mask:0xf")
        else:         a(f"v_and_b32_dpp v{vE}, v{vP}, v{vEm} {hi} row_mask:0xc bank_mask:0xf")
    def abuild(src, g, dst):
        q0, q1 = 2*g, 2*g+1
        a(f"v_mov_b32_dpp v{vD+4}, v{src} quad_perm:[{q0},{q0},{q0},{q0}] {DPPM}")
        a(f"v_mov_b32_dpp v{vD+5}, v{src} quad_perm:[{q1},{q1},{q1},{q1}] {DPPM}")
        for u in range(4):
            a(f"v_dot2_f32_bf16 v{vD+u}, v{vD+4}, v{vCg+u}, 0")
        for u in range(4):
            a(f"v_dot2_f32_bf16 v{vD+u}, v{vD+5}, v{vCg+4+u}, v{vD+u}")
        nop(1)
        a(f"v_cvt_pk_bf16_f32 v{dst}, v{vD}, v{vD+1}")
        nop(1)
        a(f"v_cvt_pk_bf16_f32 v{dst+1}, v{vD+2}, v{vD+3}")
    a(f"v_mov_b32 v{vP}, v{vPr}")
    rowoff()
    idx_pack_a()
    ea_adr(0, 0)
    nop(1)
    idx_pack_b()
    ea_adr(0, 1)
    for s in range(2): a(f"v_readlane_b32 s{sI+s}, v{vI}, {16*s + LN(0)}")
    ea_stage("X")
    def xfirst():
        for p in range(3):
            a(f"s_mov_b32 m0, s{sM0[p]}")
            adr(p)
            a(DMA)
    if OPT["xe"]: xfirst()
    if APRE == 2:
        TD = [36, 40, 52, 56]
        for t in range(4):
            for u in range(4):
                a(f"v_mfma_f32_4x4x4_16b_bf16 v[{TD[u]}:{TD[u]+3}], v[{28+2*t}:{29+2*t}], v[{vCg+2*u}:{vCg+2*u+1}], 0")
            a(f"v_mov_b32 v{28+2*t}, 0")
            a(f"v_mov_b32 v{29+2*t}, 0")
            nop(1)
            ng = 4 if t < 3 else 2
            for h in range(2):
                for k in range(ng):
                    a(f"v_cvt_pk_bf16_f32 v{vAr+8*t+2*k+h}, v{TD[2*h]+k}, v{TD[2*h+1]+k}")
    elif APRE:
        for gi in range(2*NB):
            if gi == 4: ea_stage("A4")
            if gi == 8: ea_stage("A8")
            if gi >= 2*NB-2:
                a(f"s_cmp_le_u32 s{sCnt}, {8*gi}")
                a("s_cbranch_scc1 Labuilt")
            abuild(vSr + gi//2, gi % 2, vAr + 2*gi)
        a("Labuilt:")
    else:
        a(f"v_mov_b32 v{vSH}, v{vSr}")
        abuild(vSr, 0, vA)
    assert nxt[0] == 6
    if not OPT["xe"]: xfirst()
    a("s_waitcnt vmcnt(3)")
    adr(3)
    a("s_barrier")
    stamp(8)
    if OPT["stamps"]: a("s_memtime s[94:95]")
    def ea_reads():
        a(f"s_mov_b64 exec, s[{sEx}:{sEx+1}]")
        a(f"ds_read_b128 v[{vEaA}:{vEaA+3}], v{vE} offset:{EA0}")
        a(f"ds_read_b128 v[{vEaA+4}:{vEaA+7}], v{vE} offset:{EA0+16}")
        a("s_mov_b64 exec, -1")
    def tr(sl):
        a(f"ds_read_b64_tr_b16 v[{vB}:{vB+1}], v{vT[sl]}")
        a(f"ds_read_b64_tr_b16 v[{vB+2}:{vB+3}], v{vT[sl]} offset:256")
    def afetch():
        a(f"s_mov_b32 m0, s{sGi}")
        a(f"v_mov_b32 v{vA}, v{vAr}")
        a(f"v_mov_b32 v{vA+1}, v{vAr+1}")
        a(f"s_add_u32 s{sGi}, s{sGi}, 2")
    if OPT["lprio"]: a("s_setprio 1")
    if OPT["lprio"] >= 2:
        a(f"s_cmp_ge_u32 s{sWave}, {OPT['ph1']}")
        a("s_cbranch_scc1 Lprd")
        a("s_setprio 2")
        if OPT["lprio"] == 3:
            a(f"s_cmp_ge_u32 s{sWave}, 4")
            a("s_cbranch_scc1 Lprd")
            a("s_setprio 3")
        a("Lprd:")
    ea_reads()
    a(f"s_set_gpr_idx_on s{sM0[0]}, 0")
    if APRE: afetch()
    a(f"s_mov_b32 m0, s{sM0[0]}")
    a("s_waitcnt vmcnt(2)")
    tr(0)
    a(".p2align 6")
    a("Lblk:")
    TA, TS = 84, 88
    for p in range(16):
        g, pp = p // 8, p % 8
        cur, nx = sI + 2*((p//2) % 2), sI + 2*((p//2+1) % 2)
        def cap(fn, *args):
            n = len(L); fn(*args); r = L[n:]; del L[n:]; return r
        F = []
        if p != 12: F += cap(adr, p+4)
        nxp = (p//2*2 + 2) % 16
        if p < 14: F.append(f"v_readlane_b32 s{nx + p%2}, v{vI}, {16*(p%2) + LN(nxp)}")
        if p == 15: F += [f"v_readlane_b32 s{nx+s}, v{vI}, {16*s + LN(0)}" for s in range(2)]
        if p == 13: F += cap(idx_pack_a)
        if p == 14: F += cap(idx_pack_b)
        if pp == 5: F += cap(ea_adr, 1-g, 0)
        if pp == 6: F += cap(ea_adr, 1-g, 1)
        q0, q1 = 2*(1-g), 2*(1-g)+1
        late = []
        if not APRE:
            if pp == 6:
                F = [f"v_mov_b32_dpp v{TS}, v{vSH} quad_perm:[{q0},{q0},{q0},{q0}] {DPPM}",
                     f"v_mov_b32_dpp v{TS+1}, v{vSH} quad_perm:[{q1},{q1},{q1},{q1}] {DPPM}"] + F
            if pp == 7: late = [f"v_cvt_pk_bf16_f32 v{vA}, v{TA}, v{TA+1}", f"v_cvt_pk_bf16_f32 v{vA+1}, v{TA+2}, v{TA+3}"]
        elif pp == 7: late = cap(afetch)
        if p == 12:
            F = cap(rowoff) + F + ["s_nop 0"] + cap(adr, p+4)
        a(f"s_sub_u32 s{sR}, s{sR}, 1")
        a("s_waitcnt lgkmcnt(0)")
        a(f"s_cbranch_scc1 Ltail{p}")
        a("s_nop 0" if OPT["nodma"] else DMA)
        a(f"Lback{p}:")
        if pp == 0:
            a(f"v_mfma_f32_32x32x16_bf16 v[{vRw}:{vRw+15}], v[{vEaA}:{vEaA+3}], v[{vWr}:{vWr+3}], 0")
            a(f"v_mfma_f32_32x32x16_bf16 v[{vRw}:{vRw+15}], v[{vEaA+4}:{vEaA+7}], v[{vWr+4}:{vWr+7}], v[{vRw}:{vRw+15}]")
        tpm = [f"v_mfma_f32_4x4x4_16b_bf16 v[{vD+4*s}:{vD+4*s+3}], v[{vA}:{vA+1}], v[{vB+2*s}:{vB+2*s+1}], 0 cbsz:4 abid:{2*pp+s}" for s in range(2)]
        a(tpm[0])
        n = len(F) + len(late)
        if OPT["mid"]: a(F.pop(0))
        a(tpm[1])
        def nexttr():
            a("s_waitcnt vmcnt(2)")
            tr((p+1) % 3)
            if pp == 7: ea_reads()
        for x in F + late: a(x)
        gap = (9 if pp == 0 else 3) - n
        if OPT["ord"] == 5:
            nexttr(); gap -= 3
        if gap > 0: nop(gap)
        for s in range(2):
            a(f"s_lshr_b32 m0, s{cur+s}, 16" if p % 2 else f"s_mov_b32 m0, s{cur+s}")
            sel = "op_sel_hi:[1,0,1]" if pp % 2 == 0 else "op_sel:[0,1,0] op_sel_hi:[1,1,1]"
            r = vRw + 8*s + (pp & ~1)
            for h in range(2):
                a(f"v_pk_fma_f32 v[{ACC+2*h}:{ACC+2*h+1}], v[{vD+4*s+2*h}:{vD+4*s+2*h+1}], v[{r}:{r+1}], v[{ACC+2*h}:{ACC+2*h+1}] {sel}")
        if OPT["ord"] == 4: nexttr()
        if p == 11:
            a(f"s_add_u32 s{sBlk}, s{sBlk}, 1")
            a(f"s_mov_b32 m0, s{sBlk}")
            a(f"v_mov_b32 v{vP}, v{vPr}")
            if not APRE: a(f"v_mov_b32 v{vSH}, v{vSr}")
        a(f"s_mov_b32 m0, s{sM0[(p+1)%3]}")
        if pp == 6 and not APRE:
            for u in range(4): a(f"v_dot2_f32_bf16 v{TA+u}, v{TS}, v{vCg+u}, 0")
            for u in range(4): a(f"v_dot2_f32_bf16 v{TA+u}, v{TS+1}, v{vCg+4+u}, v{TA+u}")
        if pp == 7 and OPT["spf"]:
            a(f"s_sub_u32 s{sPf}, s{sPf}, 1")
            a(f"s_cbranch_scc1 Lspf{g}")
            a(f"Lspfb{g}:")
    a(f"v_swap_b32 v{vT[0]}, v{vT[1]}")
    a(f"v_swap_b32 v{vT[1]}, v{vT[2]}")
    a(f"s_mov_b32 s{sT0}, s{sM0[0]}\ns_mov_b32 s{sM0[0]}, s{sM0[1]}\ns_mov_b32 s{sM0[1]}, s{sM0[2]}\ns_mov_b32 s{sM0[2]}, s{sT0}")
    a("s_branch Lblk")
    a("Lloopend:")
    for p in range(16):
        a(f"Ltail{p}:")
        a(f"s_mov_b32 s{sR}, 0")
        a(f"s_sub_u32 s{sTail}, s{sTail}, 1")
        a("s_cbranch_scc1 Lexit")
        a("s_waitcnt vmcnt(0)")
        a(f"s_branch Lback{p}")
    if OPT["spf"]:
        for g in range(2):
            a(f"Lspf{g}:")
            for i in range(NSP):
                a(f"s_load_dwordx2 s[62:63], s[{sPx}:{sPx+1}], {i*128+60}")
            a(f"s_branch Lspfb{g}")
    a("Lclip:")
    a(f"s_add_u32 s{sT0}, s{sBase}, s{sN}")
    for j in range(4):
        a(f"v_add_u32 v76, v{64+j}, v{56+j}")
        a(f"v_min_u32 v76, s{sT0}, v76")
        a(f"v_max_u32 v77, s{sBase}, v{64+j}")
        a(f"v_sub_u32 v76, v76, v77")
        a(f"v_max_i32 v{56+j}, 0, v76")
        a(f"v_sub_u32 v76, v77, v{64+j}")
        a(f"v_add_u32 v{60+j}, v{60+j}, v76")
        a(f"v_subrev_u32 v{64+j}, s{sBase}, v77")
    a("s_branch Lnoclip")
    a("Llatermap:")
    a("s_barrier")
    a(f"ds_write_b32 v82, v83 offset:{HISTO}")
    for n in later: eadma(n)
    a("s_branch Lhavemap")
    a("Lover:")
    a(f"ds_write_b32 v54, v83 offset:{OVER}")
    a("s_branch Loverb")
    a("Lslow:")
    a(f"s_mov_b32 s{sL}, {NB*32}")
    a("Lround:")
    a("s_waitcnt vmcnt(0) lgkmcnt(0)")
    a("s_barrier")
    a("v_mov_b32 v80, 0")
    a(f"ds_write_b32 v80, v80 offset:{OVER}")
    a(f"v_lshlrev_b32 v81, 4, v{vLane}")
    a("s_waitcnt lgkmcnt(0)")
    a(f"s_sub_u32 s{sT0}, s{sWave}, 10")
    a(f"s_cmp_ge_u32 s{sT0}, 5")
    a("s_cbranch_scc1 Lgo")
    COLBASE(sBin, sT0)
    a(f"v_lshl_add_u32 v82, v{vLane}, 12, s{sT0}")
    for j in range(4):
        a(f"buffer_load_dword v{52+j}, v82, s[{sTab}:{sTab+3}], 0 offen offset:{COLOFF[j]} sc1")
    a("s_waitcnt vmcnt(0)")
    a("s_branch Lhavetab")
    a("Lexit:")
    a("s_set_gpr_idx_off")
    if OPT["lprio"]: a("s_setprio 0")
    stamp(9)
    if OPT["stamps"]: a("s_memtime s[92:93]")
    a(f"s_add_u32 s{sBase}, s{sBase}, s{sN}")
    a(f"s_cmp_lt_u32 s{sBase}, s{sTot}")
    a("s_cbranch_scc1 Lround")
    def epi1():
        a(f"v_lshlrev_b32 v16, 4, v{vLane}")
        a("s_waitcnt vmcnt(0)")
        a(f"s_cmp_ge_u32 s{sWave}, 8")
        a("s_cbranch_scc1 Le_now")
        a(f"s_add_u32 m0, s{sReg}, 2048")
        a(f"s_lshl_b32 s{sT0}, s{sWave}, 10")
        a(f"s_add_u32 s{sT0}, s{sT0}, 4096")
        a(f"v_add_u32 v12, s{sT0}, v16")
        a(f"global_load_lds_dwordx4 v12, s[{sC}:{sC+1}]{HLD}")
        a("Le_now:")
        a(f"v_lshrrev_b32 v13, 5, v{vLane}")
        a(f"s_lshl_b32 s{sT1}, s{sWave}, 5")
        a(f"v_lshl_add_u32 v14, v13, 4, s{sT1}")
        a(f"ds_read_b128 v[84:87], v14 offset:{INVM}")
        a(f"v_and_b32 v15, 31, v{vLane}")
        a(f"v_mad_u32_u24 v12, v15, 56, s{sReg}")
        a(f"v_bfe_u32 v14, v{vLane}, 2, 2")
        a("v_lshl_add_u32 v13, v13, 3, v14")
        a(f"v_mad_u32_u24 v13, v13, 56, s{sReg}")
        a(f"v_bfe_u32 v14, v{vLane}, 4, 1")
        a("v_lshl_add_u32 v13, v14, 5, v13")
        a(f"v_and_b32 v14, 3, v{vLane}")
        a("v_lshl_add_u32 v13, v14, 3, v13")
        for i in range(14):
            a(f"v_cvt_pk_bf16_f32 v{68+i}, v{ACC+2*i}, v{ACC+2*i+1}")
        for h in range(2):
            a("s_mov_b32 exec_hi, 0" if h == 0 else "s_mov_b32 exec_lo, 0")
            if h: a("s_waitcnt lgkmcnt(4)")
            for i in range(7):
                a(f"ds_write_b64 v12, v[{68+2*i}:{69+2*i}] offset:{8*i}")
            a("s_mov_b64 exec, -1")
            for s in range(2):
                for m in range(2):
                    a(f"ds_read_b64_tr_b16 v[{20+8*h+4*s+2*m}:{21+8*h+4*s+2*m}], v13 offset:{(16*s+4*m)*56}")
        a(f"s_mul_i32 s{sT1}, s{sBin}, {NPB*512}")
        a(f"v_lshl_add_u32 v15, v15, 2, s{sT1}")
        for q in range(4):
            a(f"v_add_u32 v{84+q}, v{84+q}, v15")
        if False:
            a("s_waitcnt vmcnt(0) lgkmcnt(0)")
            a("s_barrier")
            for i in range(8):
                a(f"ds_read_b128 v[{36+4*i}:{39+4*i}], v16 offset:{REG*i+2048}")
        else:
            a("v_mov_b32 v14, 0")
            a(f"s_cmp_ge_u32 s{sWave}, 8")
            a("s_cbranch_scc1 Le_wpoll")
            a("v_mov_b32 v17, 1")
            a("s_waitcnt vmcnt(0) lgkmcnt(0)")
            a("s_mov_b64 exec, 1")
            a(f"ds_add_u32 v14, v17 offset:{GO}")
            a("s_mov_b64 exec, -1")
            a("Le_wpoll:")
            a("s_waitcnt lgkmcnt(0)")
            a(f"ds_read_b32 v17, v14 offset:{GO}")
            for i in range(8):
                a(f"ds_read_b128 v[{36+4*i}:{39+4*i}], v16 offset:{REG*i+2048}")
            a("s_waitcnt lgkmcnt(8)")
            a(f"v_readfirstlane_b32 s{sT0}, v17")
            a(f"s_cmp_eq_u32 s{sT0}, 8")
            a("s_cbranch_scc1 Le_wok")
            a("Le_wwait:")
            a("s_sleep 2")
            a(f"ds_read_b32 v17, v14 offset:{GO}")
            a("s_waitcnt lgkmcnt(0)")
            a(f"v_readfirstlane_b32 s{sT0}, v17")
            a(f"s_cmp_eq_u32 s{sT0}, 8")
            a("s_cbranch_scc0 Le_wwait")
            a("s_branch Le_wpoll")
            a("Le_wok:")
        for s in range(4):
            a(f"s_waitcnt lgkmcnt({6-2*s})")
            for t in range(2):
                c = "0" if s == 0 else f"v[{ACC+16*t}:{ACC+16*t+15}]"
                a(f"v_mfma_f32_32x32x16_bf16 v[{ACC+16*t}:{ACC+16*t+15}], v[{20+4*s}:{23+4*s}], v[{36+8*s+4*t}:{39+8*s+4*t}], {c}")
    def epi0():
        a(f"v_lshlrev_b32 v16, 4, v{vLane}")
        a(f"s_cmp_ge_u32 s{sWave}, 4")
        a("s_cbranch_scc1 Lnow")
        a("s_waitcnt vmcnt(0)")
        a(f"s_mov_b32 m0, s{sReg}")
        a(f"s_lshl_b32 s{sT0}, s{sWave}, 11")
        a(f"s_add_u32 s{sT0}, s{sT0}, 4096")
        a(f"v_add_u32 v12, s{sT0}, v16")
        a(f"global_load_lds_dwordx4 v12, s[{sC}:{sC+1}]{HLD}")
        a(f"global_load_lds_dwordx4 v12, s[{sC}:{sC+1}] offset:1024{HLD}")
        a("Lnow:")
        a(f"v_lshrrev_b32 v13, 5, v{vLane}")
        a(f"s_lshl_b32 s{sT1}, s{sWave}, 5")
        a(f"v_lshl_add_u32 v14, v13, 4, s{sT1}")
        a(f"ds_read_b128 v[84:87], v14 offset:{INVM}")
        for i in range(14):
            a(f"v_cvt_pk_bf16_f32 v{68+i}, v{ACC+2*i}, v{ACC+2*i+1}")
        a(f"s_mul_i32 s{sT0}, s{sWave}, 4608")
        a(f"s_add_u32 s{sT0}, s{sT0}, {EA0}")
        a(f"v_mul_u32_u24 v12, 72, v{vLane}")
        a(f"v_add_u32 v12, s{sT0}, v12")
        a(f"v_bfe_u32 v14, v{vLane}, 2, 2")
        a("v_lshl_add_u32 v13, v13, 3, v14")
        a("v_mul_u32_u24 v13, 72, v13")
        a(f"v_bfe_u32 v14, v{vLane}, 4, 1")
        a("v_lshl_add_u32 v13, v14, 5, v13")
        a(f"v_and_b32 v14, 3, v{vLane}")
        a("v_lshl_add_u32 v13, v14, 3, v13")
        a(f"v_add_u32 v13, s{sT0}, v13")
        a(f"s_mul_i32 s{sT1}, s{sBin}, {NPB*512}")
        a(f"v_and_b32 v15, 31, v{vLane}")
        a(f"v_lshl_add_u32 v15, v15, 2, s{sT1}")
        a("s_waitcnt vmcnt(0) lgkmcnt(0)")
        for q in range(4):
            a(f"v_add_u32 v{84+q}, v{84+q}, v15")
        if OPT["epi"]:
            a("v_mov_b32 v14, 0")
            a(f"s_cmp_ge_u32 s{sWave}, 4")
            a("s_cbranch_scc1 Lwpoll")
            a("v_mov_b32 v17, 1")
            a("s_mov_b64 exec, 1")
            a(f"ds_add_u32 v14, v17 offset:{GO}")
            a("s_mov_b64 exec, -1")
            a("s_waitcnt lgkmcnt(0)")
            a("Lwpoll:")
            a(f"ds_read_b32 v17, v14 offset:{GO}")
            for i in range(8):
                a(f"ds_read_b128 v[{36+4*i}:{39+4*i}], v16 offset:{REG*(i//2)+1024*(i%2)}")
            a("s_waitcnt lgkmcnt(8)")
            a(f"v_readfirstlane_b32 s{sT0}, v17")
            a(f"s_cmp_eq_u32 s{sT0}, 4")
            a("s_cbranch_scc1 Lwok")
            a("Lwwait:")
            a("s_sleep 2")
            a(f"ds_read_b32 v17, v14 offset:{GO}")
            a("s_waitcnt lgkmcnt(0)")
            a(f"v_readfirstlane_b32 s{sT0}, v17")
            a(f"s_cmp_eq_u32 s{sT0}, 4")
            a("s_cbranch_scc0 Lwwait")
            a("s_branch Lwpoll")
            a("Lwok:")
        a("s_barrier")
        a(f"s_cmp_lt_u32 s{sWave}, 14")
        a("s_cbranch_scc1 Lsix")
        a(f"ds_write_b64 v12, v[80:81] offset:48")
        a("Lsix:")
        for i in range(6):
            a(f"ds_write_b64 v12, v[{68+2*i}:{69+2*i}] offset:{8*i}")
        for s in range(4):
            if s == (0 if OPT["epi"] else 2): a("s_waitcnt lgkmcnt(7)")
            for m in range(2):
                a(f"ds_read_b64_tr_b16 v[{20+4*s+2*m}:{21+4*s+2*m}], v13 offset:{(16*s+4*m)*72}")
            for t in range(0 if OPT["epi"] else 2):
                a(f"ds_read_b128 v[{36+8*s+4*t}:{39+8*s+4*t}], v16 offset:{REG*s+1024*t}")
        for s in range(4):
            a(f"s_waitcnt lgkmcnt({6-2*s if OPT['epi'] else 12-4*s})")
            for t in range(2):
                c = "0" if s == 0 else f"v[{ACC+16*t}:{ACC+16*t+15}]"
                a(f"v_mfma_f32_32x32x16_bf16 v[{ACC+16*t}:{ACC+16*t+15}], v[{20+4*s}:{23+4*s}], v[{36+8*s+4*t}:{39+8*s+4*t}], {c}")
    epi1() if OPT["epi"] == 2 else epi0()
    nop(12)
    for r in range(16):
        q, t = r // 4, r % 4
        if r == 12:
            a(f"s_cmp_lt_u32 s{sWave}, 14")
            a("s_cbranch_scc1 Lfin")
        a(f"v_cvt_pk_bf16_f32 v{36+r}, v{ACC+r}, v{ACC+16+r}")
        a(f"buffer_store_dword v{36+r}, v{84+q}, s[{sOsrd}:{sOsrd+3}], 0 offen offset:{t*128}{OPT['outst']}")
    a("Lfin:")
    if OPT["stamps"]:
        a("s_waitcnt vmcnt(0)")
        stamp(10)
        a("s_waitcnt lgkmcnt(0)")
        a("s_sub_u32 s86, s92, s94")
        a("s_mul_hi_u32 s86, s86, 429496730")
        a("s_add_u32 s86, s86, s84")
        stamp_out(1, 12, sWs, sWave)
    a("Lend:")
    a("s_endpgm")

DOC = """;
;
;  1. Workgroup c < 250 reads chunk c (3200 edges), counting-sorts it in LDS by destination bin (98 nodes) and writes the records
;     (key + sh: 12 B, edge_attr: 32 B) to d_ws in that order, plus one table row (first record, count) per bin.
;  2. Workgroup b collects the records of its bin, deals the 98 nodes to the 16 waves by degree rank, sorts each wave's edges by
;     accumulators (M0-indexed registers).  The epilogue transposes the sums through LDS and applies w_out with MFMA.
;
"""
hdr = open("standalone__tensor_product_equiv_mace__graph.s.ref").read().split("; Override launch")[0]
out = hdr
out += f"; @launch {'kernel='+KN+' ' if OPT['lst'] else ''}grid=(256,1,1) block=(1024,1,1) lds={LDS}\n"
out += DOC + '.amdgcn_target "amdgcn-amd-amdhsa--gfx950"\n.text\n'
phase1(); phase2()
if OPT["drop"]:
    pats = {"tr":"ds_read_b64_tr", "pk":"v_pk_fma", "tp":"v_mfma_f32_4x4x4", "rw":"v_mfma_f32_32x32", "dot":"v_dot2", "rl":"v_readlane"}
    for t in OPT["drop"].split(","):
        i0, i1 = L.index("Lblk:"), L.index("Lloopend:")
        L[i0:i1] = [l for l in L[i0:i1] if pats[t] not in l]
for l in L:
    for t in getattr(l, "head", []): out += "    ; " + t.strip("- ") + "\n"
    t = ("    " + l if l and not l.endswith(":") and not l.startswith(".") else l)
    if getattr(l, "note", "") and not l.endswith(":"): t = t.ljust(72) + " ; " + l.note
    elif getattr(l, "note", ""): t += "\n    ; " + l.note
    out += t + "\n"
out += f""".section .rodata,"a"
.p2align 6
.amdhsa_kernel {KN}
  .amdhsa_next_free_vgpr 128
  .amdhsa_next_free_sgpr 96
  .amdhsa_accum_offset 128
  .amdhsa_group_segment_fixed_size 0
  .amdhsa_kernarg_size 88
  .amdhsa_user_sgpr_count 2
  .amdhsa_user_sgpr_kernarg_segment_ptr 1
  .amdhsa_system_sgpr_workgroup_id_x 1
  .amdhsa_float_denorm_mode_32 3
.end_amdhsa_kernel
"""
open(sys.argv[1], "w").write(out)
```

```python
import sys
OPT = dict(olim=0, alt=0, xfl="", late="", lm=8, unsafe=0, a2b=1, scnt=0, ro=0, rm=7, ri=11732, rot=1, rn=32, rw=4, early=0, gst=0, pa=6, keep=0, kfl="", ph1=8, epi=0, nob=0, xe=0, nocnt=0, csh=3, nbr=1, itn=1, tb=1, pn=10, slim=3, klim=0, isleep=0, gate=0, gn=0, k1n=10, cpos=4, kwait=1, gpos="B1", easched="B1:2,S2:1,S3:1,B4:1,S4:1", pfn=12, pfpos="N", apre=2, ph=9, lprio=1, mid=1, ord=5, fsh=4, tsleep=16, csleep=4, ksleep=4,
           psleep=0, gsleep=2, spf=0, drop="", nodma=0, spin=-1, spin0=0, dbgwg=-1, safe=0, stamps=0, ntl=1, nts="sc1", hld="sc1", outst="sc1", lst=0)
for a in sys.argv[2:]:
    k, v = a.split("=")
    assert k in OPT, k
    OPT[k] = int(v) if v.lstrip("-").isdigit() else v
for k in ("nts", "hld", "outst", "kfl", "xfl"):
    OPT[k] = "" if OPT[k] in (0, "") else " " + str(OPT[k]).replace("+", " ")

KN = "standalone__tensor_product_equiv_mace__graph_kernel"
NN, NE = 25000, 800000
CH, NCH = 3136, 256
assert (NCH-1)*CH + 320 == NE
NPB = 98
MAGIC, MSH = 42800, 22
assert all((d*MAGIC) >> MSH == d//NPB for d in range(NN))
SPIN = 400000
WS_TAB, WS_CONST, WS_FLAG, WS_KS, WS_EA, WS_STAMP = 0, 0x40000, 0x50000, 0x100000, 0xB00000, 128 << 20
CAP, NB = 3552, 7
XT0 = (256-NCH)*15*OPT["itn"]*8192
XT1 = XT0 + OPT["pfn"]*512000
NSP = -(-(NN*512 - XT1) // 512000)
NT = " nt" if OPT["ntl"] else ""
NTS, HLD = OPT["nts"], OPT["hld"]
DPPM = "row_mask:0xf bank_mask:0xf"

L = []
import re
SRC = open(__file__).read().split("\n")
NOTE, SEEN = {}, set()
class Line(str): pass
def a(s):
    n = sys._getframe(1).f_lineno - 1
    head, k = [], n - 1
    while k >= 0:
        t = SRC[k].strip()
        m = re.match(r"(?:for|if|def|elif) .*:\s*(?:# (.*))?$", t)
        if t.startswith("# "): head.insert(0, (k, t[2:]))
        elif m:
            if m.group(1): head.insert(0, (k, m.group(1)))
        else: break
        k -= 1
    m = re.search(r"\)\s+# (.*)$", SRC[n])
    for i, ln in enumerate(s.split("\n")):
        ln = Line(ln)
        ln.head = [t for k, t in head if k not in SEEN] if i == 0 else []
        ln.note = m.group(1) if m and i == 0 and n not in SEEN else ""
        L.append(ln)
    SEEN.update(k for k, t in head); SEEN.add(n)
def nop(n):
    a(f"s_nop {n-1}")
def stamp(i):
    if OPT["stamps"]:
        a(f"s_memrealtime s[{64+2*i}:{65+2*i}]")
def stamp_out(k, n, sws, swave, tag=''):
    if not OPT["stamps"]: return
    a(f"s_cmp_lg_u32 s{swave}, {OPT['stamps']-1}")
    a(f"s_cbranch_scc1 Lnostamp{k}{tag}")
    if OPT["dbgwg"] >= 0 and k == 1:
        a(f"s_cmp_lg_u32 s2, {OPT['dbgwg']}")
        a(f"s_cbranch_scc1 Lnostamp{k}{tag}")
        a("s_waitcnt lgkmcnt(0)")
        a("s_mov_b64 exec, 1")
        a(f"v_mov_b32 v1, {WS_STAMP + OPT['dbgwg']*64}")
        a(f"global_load_dwordx4 v[4:7], v1, s[{sws}:{sws+1}] sc1")
        a(f"global_load_dword v8, v1, s[{sws}:{sws+1}] offset:16 sc1")
        a("s_waitcnt vmcnt(0)")
        j, j0 = OPT["spin"], OPT["spin0"]
        a(f"v_mov_b32 v9, v{4+j0}" if j0 < 5 else f"v_mov_b32 v9, s{64+2*(j0-5)}")
        a(f"v_sub_u32 v2, v{4+j}, v9" if j < 5 else f"v_sub_u32 v2, s{64+2*(j-5)}, v9")
        a("s_nop 1")
        a("v_readfirstlane_b32 s60, v2")
        a("s_min_u32 s60, s60, 10000")
        a("s_lshl_b32 s60, s60, 4")
        a("Lspin:")
        a("s_memrealtime s[58:59]")
        a("s_waitcnt lgkmcnt(0)")
        a("s_sub_u32 s58, s58, s84")
        a("s_cmp_lt_u32 s58, s60")
        a("s_cbranch_scc1 Lspin")
        a(f"Lnostamp{k}{tag}:")
        return
    a("s_waitcnt lgkmcnt(0)")
    a("s_mov_b64 exec, 1")
    a(f"s_lshl_b32 s62, s2, 6\ns_add_u32 s62, s62, {WS_STAMP + k*256*64}")
    a("v_mov_b32 v1, s62")
    for i in range(n):
        a(f"v_mov_b32 v2, s{64+2*i}")
        a(f"global_store_dword v1, v2, s[{sws}:{sws+1}] offset:{4*i}")
    a("s_mov_b64 exec, -1")
    a(f"Lnostamp{k}{tag}:")
def wavescan(x, fill=()):
    fill = list(fill)
    for d, rm in (("row_shr:1","0xf"), ("row_shr:2","0xf"), ("row_shr:4","0xf"), ("row_shr:8","0xf"), ("row_bcast:15","0xa"), ("row_bcast:31","0xc")):
        if fill: a(fill.pop(0)); nop(1)
        else: nop(2)
        a(f"v_add_u32_dpp v{x}, v{x}, v{x} {d} row_mask:{rm} bank_mask:0xf")
def scan4(c, s1, s2, x, tot, fill=()):
    a(f"v_add_u32 v{s1}, v{c}, v{c+1}")
    a(f"v_add_u32 v{s2}, v{s1}, v{c+2}")
    a(f"v_add_u32 v{tot}, v{s2}, v{c+3}")
    a(f"v_mov_b32 v{x}, v{tot}")
    wavescan(x, fill)

K1_HIST, K1_BASE, K1_INV, K1_KS, K1_EA, K1_END = 0, 1024, 2048, 14848, 53248, 155648
TABL, TABOK, KCNT, PCNT = K1_END, K1_END + 1024, K1_END + 1028, K1_END + 1032
MAP, INVM, EA0, LDS = 49152, 49664, 50176, 163840
GO, TOT, OVER = MAP + 496, MAP + 500, MAP + 504
assert EA0 + CAP*32 == LDS
REG = 3072
HISTO = 2784
DEG, RT, DD = 0, 512, 14848
CW = 10
assert DD + CAP*4 <= CW*REG
BAND = 70
PH = OPT["ph"]
APRE = OPT["apre"]
assert all((r*147) >> 11 == r//14 for r in range(128))
assert all(((x*12+12)*2731) >> 16 == (x+1)//2 for x in range(NB*32+1))
vLs, vT, vEm, vS16, vK, vP, vE, vAdr, vI = 1, [2,3,4], 5, 6, 7, 8, 9, 10, 11
vA, vB, vLane, vF = 12, 14, 18, 19
vWr, vEaA, vD, vRw, vPr, vSH, vAr, ACC = 20, 28, 36, 44, 60, 67, 68, 96
vCg, vSr = (44, 52) if APRE else (68, 76)
vKS, vS, vPos, vG = 28, 84, 88, 92
vSink = 67 if APRE else 44
sX, sOut, sKS, sEA, sC, sWs = 4, 6, 8, 10, 12, 14
sTab, sOsrd = 16, 20
sWave, sBin, sTot, sBase, sL, sN, sReg, sCnt, sR, sTail, sGi, sFirst, sBlk = 24,25,26,27,28,29,30,31,32,33,34,35,36
sM0 = [37,38,39]
sLate = 44
sGoal, sPoll, sC0, sEm, sPf, sPx = 40, 41, 42, 43, 45, 46
sMk = 48
sI = 48
sEx = 56
sT0, sT1, sT2, sT3 = 58, 59, 60, 61
KORD = (3, 0, 1, 2)
def LN(tau):
    tau %= 16
    return (tau & 3) | ((tau & 4) << 1) | ((tau & 8) >> 1)

def phase1():
    a(f".globl {KN}\n.p2align 8\n.type {KN},@function\n{KN}:")
    stamp(0)
    a("s_cmp_ge_u32 s2, 256")
    a("s_cbranch_scc1 Lend")
    a("v_readfirstlane_b32 s14, v0")
    a("s_cmp_ge_u32 s14, 640")
    a("s_cbranch_scc1 Lspare")
    a("s_cmp_eq_u32 s14, 0")
    a("s_cbranch_scc1 Lsort5")
    a(f"s_cmp_eq_u32 s2, {NCH-1}")
    a("s_cbranch_scc1 Lprep")
    a("s_cmp_eq_u32 s14, 576")
    a("s_cbranch_scc1 Lsort4")
    def sorter(n):
        a(f"Lsort{n}:")
        a("s_load_dwordx4 s[4:7], s[0:1], 8")
        a("s_load_dwordx4 s[8:11], s[0:1], 24")
        a("s_load_dwordx2 s[12:13], s[0:1], 80")
        a("s_lshr_b32 s14, s14, 6")
        a("v_and_b32 v2, 63, v0")
        a("v_lshlrev_b32 v3, 2, v2")
        a("v_lshlrev_b32 v4, 3, v2")
        a("v_lshlrev_b32 v5, 4, v2")
        a(f"s_mul_i32 s15, s2, {CH}")
        a("s_mul_i32 s16, s14, 320")
        a("s_add_u32 s15, s15, s16")
        a("s_lshl_b32 s17, s15, 2")
        a("s_lshl_b32 s18, s15, 3")
        a("s_lshl_b32 s19, s15, 5")
        a("s_waitcnt lgkmcnt(0)")
        a("s_add_u32 s6, s6, s17\ns_addc_u32 s7, s7, 0")
        for k in range(n):
            a(f"global_load_dword v{10+k}, v3, s[6:7] offset:{k*256}{NT}")
        a("s_add_u32 s4, s4, s17\ns_addc_u32 s5, s5, 0")
        for k in range(n):
            a(f"global_load_dword v{15+k}, v3, s[4:5] offset:{k*256}{NT}")
        a("s_add_u32 s8, s8, s18\ns_addc_u32 s9, s9, 0")
        for k in range(n):
            a(f"global_load_dwordx2 v[{20+2*k}:{21+2*k}], v4, s[8:9] offset:{k*512}{NT}")
        a("s_barrier")
        a("s_add_u32 s10, s10, s19\ns_addc_u32 s11, s11, 0")
        a("s_lshl_b32 s20, s16, 5")
        a(f"s_add_u32 s20, s20, {K1_EA}")
        def bulk(lo, hi):
            for i in range(lo, hi):
                if i % 4 == 0:
                    a(f"s_add_u32 m0, s20, {i*1024}")
                    a(f"v_add_u32 v6, {i*1024}, v5")
                a(f"global_load_lds_dwordx4 v6, s[10:11] offset:{(i%4)*1024}{NT}")
        bulk(0, 2*n)
        a(f"s_mov_b32 s21, {MAGIC}")
        a(f"s_mov_b32 s22, {-NPB}")
        a("v_mov_b32 v7, 1")
        a(f"s_waitcnt vmcnt({4*n})")
        stamp(1)
        for k in range(n):
            a(f"v_mul_u32_u24 v{30+k}, s21, v{10+k}")
            a(f"v_lshrrev_b32 v{30+k}, {MSH}, v{30+k}")
            a(f"v_mad_i32_i24 v{10+k}, v{30+k}, s22, v{10+k}")
            a(f"v_lshlrev_b32 v{30+k}, 2, v{30+k}")
            a(f"ds_add_rtn_u32 v{35+k}, v{30+k}, v7 offset:{K1_HIST}")
        a("s_waitcnt lgkmcnt(0)")
        a("s_barrier")
        a(f"ds_read_b128 v[40:43], v5 offset:{K1_HIST}")
        a(f"s_waitcnt vmcnt({2*n})")
        for k in range(n):
            a(f"v_lshlrev_b32 v{10+k}, 2, v{10+k}")
            a(f"v_lshl_or_b32 v{15+k}, v{15+k}, 17, v{10+k}")
        a("v_lshl_add_u32 v53, v2, 5, s20")
        a("s_waitcnt lgkmcnt(0)")
        scan4(40, 44, 45, 46, 47, [f"v_add_u32 v{53+k}, {k*2048}, v53" for k in range(1, n)])
        if OPT["keep"]:
            a("s_and_b32 s34, s2, 7\ns_lshl_b32 s34, s34, 3\ns_add_u32 s35, s34, 7")
            a("v_readlane_b32 s33, v46, s35")
        a("v_sub_u32 v46, v46, v47")
        a("v_add_u32 v41, v46, v40")
        a("v_add_u32 v42, v46, v44")
        a("v_add_u32 v43, v46, v45")
        a("v_mov_b32 v40, v46")
        if OPT["keep"]:
            a("v_readlane_b32 s32, v46, s34")
            a("s_sub_u32 s33, s33, s16")
            a("s_sub_u32 s32, s32, s16")
        kn = [0]
        def kstore(text, lo, hi, on):
            if not on:
                a(text + NTS); return
            kn[0] += 1
            a(f"s_cmp_gt_i32 s32, {lo}")
            a(f"s_cbranch_scc1 Lk{kn[0]}")
            a(f"s_cmp_lt_i32 s33, {hi}")
            a(f"s_cbranch_scc1 Lk{kn[0]}")
            a(text + OPT["kfl"])
            a(f"s_branch Lkd{kn[0]}")
            a(f"Lk{kn[0]}:")
            a(text + NTS)
            a(f"Lkd{kn[0]}:")
        a(f"ds_write_b128 v5, v[40:43] offset:{K1_BASE}")
        for k in range(n):
            a(f"ds_read_b32 v{30+k}, v{30+k} offset:{K1_BASE}")
        a(f"s_mov_b32 s23, {K1_KS}")
        for k in range(n):
            a(f"s_waitcnt lgkmcnt({n-1-k+3*k})")
            a(f"v_add_u32 v{30+k}, v{30+k}, v{35+k}")
            a(f"v_lshlrev_b32 v{35+k}, 2, v{30+k}")
            a(f"v_mad_u32_u24 v{30+k}, v{30+k}, 12, s23")
            a(f"ds_write_b32 v{35+k}, v{53+k} offset:{K1_INV}")
            a(f"ds_write_b32 v{30+k}, v{15+k}")
            a(f"ds_write2_b32 v{30+k}, v{20+2*k}, v{21+2*k} offset0:1 offset1:2")
        a("s_mul_i32 s23, s14, 3840")
        a("v_add_u32 v8, s23, v5")
        a("v_lshrrev_b32 v9, 1, v2")
        a("v_add_lshl_u32 v9, v9, s16, 2")
        a(f"s_mul_i32 s23, s2, {CH*12}")
        a(f"s_add_u32 s23, s23, {WS_KS}")
        a("s_add_u32 s26, s12, s23\ns_addc_u32 s27, s13, 0")
        a(f"s_add_u32 s19, s19, {WS_EA}")
        a("s_add_u32 s28, s12, s19\ns_addc_u32 s29, s13, 0")
        a("v_and_b32 v10, 1, v2")
        a("v_lshlrev_b32 v10, 4, v10")
        a("v_add_u32 v6, 4096, v5")
        a("v_add_u32 v7, 8192, v5")
        a("s_waitcnt lgkmcnt(0)")
        a("s_barrier")
        stamp(2)
        for i in range(n-1):
            a(f"ds_read_b128 v[{12+4*i}:{15+4*i}], v8 offset:{K1_KS+i*1024}")
        for i in range(2*n):
            a(f"ds_read_b32 v{30+i}, v9 offset:{K1_INV+i*128}")
        for i in range(n-1):
            a(f"s_waitcnt lgkmcnt({n-2-i+2*n})")
            if i == 3: a("s_mov_b32 exec_hi, 0xffff")
            kstore(f"global_store_dwordx4 v8, v[{12+4*i}:{15+4*i}], s[26:27] offset:{i*1024}", i*1024//12, min(320, -(-(i+1)*1024//12)), OPT["keep"] >= 2)
        a("s_mov_b64 exec, -1")
        a("s_waitcnt lgkmcnt(0)")
        for i in range(2*n):
            a(f"v_add_u32 v{30+i}, v{30+i}, v10")
        a("s_waitcnt vmcnt(4)" if OPT["nob"] else "s_waitcnt vmcnt(0)")
        a("s_barrier")
        stamp(3)
        for i in range(2*n):
            a(f"ds_read_b128 v[{40+4*i}:{43+4*i}], v{30+i}")
        for i in range(2*n):
            if OPT["gate"] and i == OPT["gn"]: a("s_barrier")
            a(f"s_waitcnt vmcnt({OPT['slim']-1}) lgkmcnt({2*n-1-i})" if OPT["slim"] and (i >= OPT["slim"] or OPT["nob"]) else f"s_waitcnt lgkmcnt({2*n-1-i})")
            if OPT["nob"] and i == OPT["slim"] - 1:
                a("s_waitcnt lgkmcnt(0)")
                a(f"v_mov_b32 v9, {PCNT+4}")
                a("v_mov_b32 v11, 1")
                a("s_mov_b64 exec, 1")
                a("ds_add_u32 v9, v11")
                a("s_mov_b64 exec, -1")
            kstore(f"global_store_dwordx4 v{5+i//4}, v[{40+4*i}:{43+4*i}], s[28:29] offset:{(i%4)*1024}", 32*i, 32*i+32, OPT["keep"] >= 1)
            if i + 1 == OPT["csh"] and OPT["cpos"] == 5:
                a("s_waitcnt lgkmcnt(0)")
                a(f"v_mov_b32 v9, {PCNT+4}")
                a("ds_write_b32 v9, v9")
            if i + 1 == OPT["pn"]:
                a("s_waitcnt lgkmcnt(0)")
                a(f"v_mov_b32 v9, {PCNT}")
                a("v_mov_b32 v11, 1")
                a("s_mov_b64 exec, 1")
                a("ds_add_u32 v9, v11")
                a("s_mov_b64 exec, -1")
        stamp(4)
        stamp_out(0, 5, 12, 14, f"n{n}")
        a("s_branch Ljoin")
    sorter(5)
    sorter(4)
    a("Lprep:")
    a("s_load_dwordx4 s[4:7], s[0:1], 40")
    a("s_load_dwordx2 s[8:9], s[0:1], 56")
    a("s_load_dwordx2 s[12:13], s[0:1], 80")
    a("s_lshr_b32 s14, s14, 6")
    a("s_sub_u32 s14, s14, 1")
    a("v_and_b32 v2, 63, v0")
    a("v_lshlrev_b32 v5, 4, v2")
    a("s_waitcnt lgkmcnt(0)")
    a(f"s_add_u32 s12, s12, {WS_CONST}\ns_addc_u32 s13, s13, 0")
    def gather8(base, offs, dstoff_s):
        for k in range(8):
            a(f"global_load_ushort v{10+k}, v3, s[{base}:{base+1}] offset:{offs[k]}")
        a("s_waitcnt vmcnt(0)")
        for k in range(4):
            a(f"v_lshl_or_b32 v{20+k}, v{11+2*k}, 16, v{10+2*k}")
        a(f"v_add_u32 v6, s{dstoff_s}, v5")
        a("global_store_dwordx4 v6, v[20:23], s[12:13] sc1")
    a("s_cmp_ge_u32 s14, 8")
    a("s_cbranch_scc1 Lprep2")
    a("s_lshr_b32 s15, s14, 1")
    a("s_and_b32 s16, s14, 1")
    a("s_lshl_b32 s15, s15, 11")
    a("s_lshl_b32 s16, s16, 1")
    a("s_add_u32 s15, s15, s16")
    a("v_lshrrev_b32 v3, 5, v2")
    a("v_lshlrev_b32 v3, 10, v3")
    a("v_and_b32 v4, 31, v2")
    a("v_lshl_add_u32 v3, v4, 2, v3")
    a("v_add_u32 v3, s15, v3")
    a("s_lshl_b32 s17, s14, 10")
    a("s_add_u32 s17, s17, 4096")
    gather8(8, [k*128 for k in range(8)], 17)
    a("s_branch Lprep3")
    a("Lprep2:")
    assert APRE == 2
    a("s_mov_b32 s14, 0")
    a("Lprep4:")
    a("s_lshl_b32 s17, s14, 10")
    a("v_lshl_add_u32 v3, v2, 1, s17")
    gather8(6, [k*128 for k in range(8)], 17)
    a("s_lshl_b32 s15, s14, 6")
    a("v_and_b32 v3, 3, v2")
    a("v_lshl_add_u32 v3, v3, 1, s15")
    a("s_add_u32 s17, s17, 2048")
    gather8(4, [k*8 for k in range(8)], 17)
    a("s_add_u32 s14, s14, 1")
    a("s_cmp_lt_u32 s14, 2")
    a("s_cbranch_scc1 Lprep4")
    a("s_branch Lprep3")
    a("Lspare:")
    a("s_cmp_ge_u32 s14, 960")
    a("s_cbranch_scc1 Lw15")
    a("Lprep3:")
    a("s_waitcnt vmcnt(0)")
    a("s_barrier\ns_barrier\ns_barrier\ns_barrier")
    a("s_branch Ljoin")
    a("Lw15:")
    a("s_setprio 3")
    a("s_load_dwordx2 s[12:13], s[0:1], 80")
    a("s_load_dwordx2 s[4:5], s[0:1], 72")
    a("v_and_b32 v2, 63, v0")
    a("s_and_b32 s15, s2, 7\ns_lshl_b32 s15, s15, 5\ns_lshr_b32 s16, s2, 3\ns_add_u32 s15, s15, s16")
    TB = OPT["tb"]; PB = 128 // TB
    def colbase(sb, st):
        a(f"s_lshl_b32 s{st}, s{sb}, 2")
        if TB > 1:
            a(f"s_and_b32 s62, s{st}, {PB-1}")
            a(f"s_sub_u32 s{st}, s{st}, s62")
            a(f"s_mul_i32 s{st}, s{st}, {TB}")
            a(f"s_add_u32 s{st}, s{st}, s62")
    global COLBASE, COLOFF
    COLBASE = colbase
    COLOFF = [(j // TB) * TB * 1024 + (j % TB) * PB for j in range(4)]
    colbase(15, 15)
    a("v_lshl_add_u32 v14, v2, 12, s15")
    a(f"s_lshl_b32 s16, s2, {OPT['fsh']}")
    a(f"s_add_u32 s16, s16, {WS_FLAG}")
    a("v_mov_b32 v3, s16")
    for j in range(4): a(f"v_mov_b32 v{4+j}, -1")
    for j in range(4): a(f"v_mov_b32 v{24+j}, 0")
    a("s_and_b32 s16, s2, 3\ns_lshl_b32 s16, s16, 6")
    a("v_mov_b32 v9, s16\nv_mov_b32 v10, 1")
    a("v_lshlrev_b32 v11, 2, v2")
    a("v_lshlrev_b32 v12, 4, v2")
    a(f"s_and_b32 s16, s2, {TB-1}")
    a("s_sub_u32 s17, s2, s16")
    a("s_lshl_b32 s17, s17, 10")
    a(f"s_mul_i32 s16, s16, {PB}")
    a("s_add_u32 s17, s17, s16")
    a(f"v_and_b32 v1, {PB-1}, v12")
    a("v_sub_u32 v8, v12, v1")
    a(f"v_mad_u32_u24 v1, v8, {TB}, v1")
    a("v_add_u32 v1, s17, v1")
    a(f"v_mov_b32 v15, {TABOK}")
    a("ds_write_b128 v15, v[24:27]")
    a(f"ds_write_b128 v12, v[24:27] offset:{K1_HIST}")
    a(f"s_mov_b32 s10, {256*1024}\ns_mov_b32 s11, 0x20000")
    a("s_waitcnt lgkmcnt(0)")
    a("s_mov_b32 s8, s12\ns_mov_b32 s9, s13")
    a("global_store_dwordx4 v1, v[4:7], s[12:13] sc1")
    a("s_mov_b64 exec, 1")
    a("global_store_dword v3, v4, s[12:13] sc1")
    a(f"s_cmp_eq_u32 s2, {NCH-1}")
    a("s_cbranch_scc1 Lw15_1")
    a("s_barrier")
    a("Lw15_1:")
    a("s_waitcnt vmcnt(0)")
    a("global_atomic_add v9, v10, s[4:5] sc1")
    a("s_cbranch_scc0 Lw15_2")
    a("s_barrier")
    a("Lw15_2:")
    a("s_mov_b64 exec, -1")
    a(f"s_mov_b32 s17, {SPIN}")
    a("s_barrier")
    a(f"ds_read_b128 v[16:19], v12 offset:{K1_HIST}")
    a(f"s_mul_i32 s16, s2, {CH}")
    a("s_waitcnt lgkmcnt(0)")
    scan4(16, 20, 21, 22, 23)
    a("v_sub_u32 v22, v22, v23")
    a("v_add_u32 v22, s16, v22")
    a("v_add_u32 v25, v22, v16")
    a("v_add_u32 v26, v22, v20")
    a("v_add_u32 v27, v22, v21")
    a("v_lshl_or_b32 v24, v16, 20, v22")
    for j in range(1, 4): a(f"v_lshl_or_b32 v{24+j}, v{16+j}, 20, v{24+j}")
    if OPT["cpos"] >= 3: a("s_barrier")
    if OPT["cpos"] == 4:
        a("s_barrier")
        if OPT["nob"]:
            a("Lw15_s:")
            a("s_sleep 1")
            a("ds_read_b32 v22, v15 offset:12")
            a("s_waitcnt lgkmcnt(0)")
            a("v_readfirstlane_b32 s18, v22")
            a("s_cmp_lt_u32 s18, 10")
            a("s_cbranch_scc1 Lw15_s")
        a("global_store_dwordx4 v1, v[24:27], s[12:13] sc1")
    if OPT["cpos"] == 5:
        a("s_barrier")
        a("global_store_dwordx4 v1, v[24:27], s[12:13] sc1")
        a("Lw15_q:")
        a("s_sleep 2")
        a("ds_read_b32 v22, v15 offset:12")
        a("s_waitcnt lgkmcnt(0)")
        a("v_readfirstlane_b32 s18, v22")
        a("s_cmp_eq_u32 s18, 0")
        a("s_cbranch_scc1 Lw15_q")
    stamp(1)
    if OPT["scnt"]:
        for j in range(4): a(f"s_load_dword s{18+j}, s[4:5], {64*j} glc")
        a("s_waitcnt lgkmcnt(0)")
        a("s_branch Lw15_sum")
    a("s_branch Lw15_poll0")
    a("Lw15_poll:")
    a(f"s_sleep {OPT['tsleep']}")
    a("Lw15_poll0:")
    if OPT["nocnt"]: a("s_branch Lw15_cdone")
    a("global_load_dword v13, v11, s[4:5] sc1")
    a("s_sub_u32 s17, s17, 1")
    a("s_cbranch_scc1 Lend")
    a("s_waitcnt vmcnt(0)")
    for j in range(4): a(f"v_readlane_b32 s{18+j}, v13, {16*j}")
    a("Lw15_sum:")
    a("s_add_u32 s18, s18, s19\ns_add_u32 s20, s20, s21\ns_add_u32 s18, s18, s20")
    a("s_cmp_lt_u32 s18, 256")
    a("s_cbranch_scc1 Lw15_poll")
    a("Lw15_cdone:")
    stamp(2)
    a(f"s_cmp_eq_u32 s2, {NCH-1}")
    a("s_cbranch_scc1 Lw15_n")
    if OPT["cpos"] < 3: a("s_barrier")
    if OPT["cpos"] < 4:
        a("s_barrier")
        a("global_store_dwordx4 v1, v[24:27], s[12:13] sc1")
    if OPT["kwait"]:
        a("Lw15_k:")
        a("s_sleep 2")
        a(f"ds_read_b32 v22, v15 offset:{8 if OPT['pn'] else 4}")
        a("s_waitcnt lgkmcnt(0)")
        a("v_readfirstlane_b32 s18, v22")
        a(f"s_cmp_lt_u32 s18, {OPT['kwait']}")
        a("s_cbranch_scc1 Lw15_k")
    a("Lw15_c:")
    stamp(3)
    def column():
        for j in range(4):
            a(f"buffer_load_dword v{16+j}, v14, s[8:11], 0 offen offset:{COLOFF[j]} sc1")
    column()
    a("Lw15_col:")
    a("s_waitcnt vmcnt(0)")
    a("v_max_u32 v20, v16, v17")
    a("v_max3_u32 v20, v18, v19, v20")
    a("v_cmp_eq_u32 vcc, -1, v20")
    a("s_and_b64 exec, exec, vcc")
    a("s_cbranch_scc0 Lw15_e")
    a(f"s_sleep {OPT['csleep']}")
    column()
    a("s_sub_u32 s17, s17, 1")
    a("s_cbranch_scc0 Lw15_col")
    a("s_endpgm")
    if OPT["nbr"]:
        a("Lw15_n:")
        a(f"global_load_dword v13, v3, s[12:13] offset:{-(8 << OPT['fsh'])} sc1")
        a("s_sub_u32 s17, s17, 1")
        a("s_cbranch_scc1 Lend")
        a("s_waitcnt vmcnt(0)")
        a("v_cmp_eq_u32 vcc, 0, v13")
        a("s_cbranch_vccnz Lw15_c")
        a(f"s_sleep {OPT['tsleep']}")
        a("s_branch Lw15_n")
    a("Lw15_e:")
    a("s_mov_b64 exec, -1")
    a(f"v_add_u32 v12, {TABL}, v12")
    a("v_lshlrev_b32 v13, 3, v2")
    a("v_mov_b32 v20, 0\nv_mov_b32 v21, 0")
    a("ds_write_b128 v12, v[16:19]")
    a(f"ds_write_b64 v13, v[20:21] offset:{MAP}")
    a("ds_write_b32 v15, v10")
    if OPT["gate"]:
        a(f"s_cmp_ge_u32 s2, {NCH}")
        a("s_cbranch_scc1 Lw15_h")
        a("s_barrier")
        a("Lw15_h:")
    a("s_setprio 0")
    stamp(4)
    if OPT["stamps"] == 16:
        a("s_mov_b32 s14, 15")
        stamp_out(0, 5, 12, 14, "w")
    a("s_waitcnt lgkmcnt(0)")

def phase2():
    sched = dict((k, int(v)) for k, v in (x.split(":") for x in OPT["easched"].split(",")))
    assert sum(sched.values()) == 6
    STAGES = ["B1", "S2", "B2", "S3", "B3", "B4", "S4", "C", "X", "A4", "A8"]
    GP = OPT["gpos"]
    assert OPT["unsafe"] or all((k == "S1" and OPT["early"]) or STAGES.index(k) >= STAGES.index(GP) for k in sched), "no edge_attr load before the flags are checked"
    a("Ljoin:")
    a(f"s_load_dwordx2 s[{sWs}:{sWs+1}], s[0:1], 80")
    a(f"s_load_dwordx2 s[{sX}:{sX+1}], s[0:1], 0")
    a(f"s_load_dwordx2 s[{sOut}:{sOut+1}], s[0:1], 64")
    a(f"v_lshrrev_b32 v81, 6, v0")
    a(f"v_and_b32 v{vLane}, 63, v0")
    a(f"v_readfirstlane_b32 s{sWave}, v81")
    a(f"s_and_b32 s{sBin}, s2, 7")
    a(f"s_lshl_b32 s{sBin}, s{sBin}, 5")
    a(f"s_lshr_b32 s{sT0}, s2, 3")
    a(f"s_add_u32 s{sBin}, s{sBin}, s{sT0}")
    a(f"v_lshlrev_b32 v81, 4, v{vLane}")
    a(f"s_mov_b32 s{sTab+2}, {256*1024}")
    a(f"s_mov_b32 s{sTab+3}, 0x20000")
    a(f"s_mov_b32 s{sBase}, 0\ns_mov_b32 s{sL}, {CAP}\ns_mov_b32 s{sFirst}, 1\ns_mov_b32 s{sPoll}, 1\ns_mov_b32 s{sGoal}, 6")
    a(f"s_mov_b32 s{sEx}, 0x0f0f0f0f\ns_mov_b32 s{sEx+1}, 0xf0f0f0f0")
    a(f"s_mov_b32 s{sC0}, 0xc000")
    if OPT["late"]: a(f"s_and_b32 s{sLate}, s2, {OPT['lm']}")
    a(f"s_mul_i32 s{sReg}, s{sWave}, {REG}")
    a(f"s_lshl_b32 s{sEm}, s{sWave}, 11")
    a(f"s_add_u32 s{sEm}, s{sEm}, {EA0}")
    a(f"v_and_b32 v{vS16}, 1, v{vLane}")
    a(f"v_and_b32 v{vF}, 0x3c1, v0")
    a(f"v_bfe_u32 v82, v{vLane}, 1, 1")
    a(f"v_lshl_add_u32 v{vF}, v82, 5, v{vF}")
    a(f"v_lshrrev_b32 v82, 2, v{vLane}")
    a(f"v_lshl_add_u32 v{vF}, v82, 1, v{vF}")
    a(f"v_lshlrev_b32 v{vS16}, 4, v{vS16}")
    for i in range(32):
        a(f"v_mov_b32 v{ACC+i}, 0")
    a("s_waitcnt lgkmcnt(0)")
    a(f"s_mov_b32 s{sTab}, s{sWs}\ns_mov_b32 s{sTab+1}, s{sWs+1}")
    a(f"s_add_u32 s{sC}, s{sWs}, {WS_CONST}\ns_addc_u32 s{sC+1}, s{sWs+1}, 0")
    a(f"s_add_u32 s{sKS}, s{sWs}, {WS_KS}\ns_addc_u32 s{sKS+1}, s{sWs+1}, 0")
    a(f"s_add_u32 s{sEA}, s{sWs}, {WS_EA}\ns_addc_u32 s{sEA+1}, s{sWs+1}, 0")
    a(f"s_mov_b32 s{sOsrd}, s{sOut}\ns_mov_b32 s{sOsrd+1}, s{sOut+1}\ns_mov_b32 s{sOsrd+2}, {NN*512}\ns_mov_b32 s{sOsrd+3}, 0x20000")
    if OPT["spf"]:
        ns = NSP
        a(f"s_lshr_b32 s{sPf}, s{sWave}, 2")
        a(f"s_mul_i32 s{sT0}, s{sPf}, 1000")
        a(f"s_min_u32 s{sT1}, s2, 249")
        a(f"s_lshl_b32 s{sT1}, s{sT1}, 2")
        a(f"s_add_u32 s{sT0}, s{sT0}, s{sT1}")
        a(f"s_and_b32 s{sT1}, s{sWave}, 3")
        a(f"s_add_u32 s{sT0}, s{sT0}, s{sT1}")
        a(f"s_mul_i32 s{sT0}, s{sT0}, {ns*128}")
        a(f"s_add_u32 s{sT0}, s{sT0}, {NN*512 - NSP*512000}")
        a(f"s_add_u32 s{sPx}, s{sX}, s{sT0}\ns_addc_u32 s{sPx+1}, s{sX+1}, 0")
    def ldswait(tag, addr, cmp, areg=82, dreg=76):
        a(f"v_mov_b32 v{areg}, {addr}")
        a(f"s_mov_b32 s{sT1}, {SPIN*8}")
        a(f"Lw{tag}:")
        a(f"ds_read_b32 v{dreg}, v{areg}")
        a(f"s_sub_u32 s{sT1}, s{sT1}, 1")
        a("s_cbranch_scc1 Lend")
        a("s_waitcnt lgkmcnt(0)")
        a(f"v_readfirstlane_b32 s{sT0}, v{dreg}")
        a(cmp)
        a(f"s_cbranch_scc1 Lw{tag}d")
        a(f"s_sleep {OPT['gsleep']}")
        a(f"s_branch Lw{tag}")
        a(f"Lw{tag}d:")
    a(f"s_cmp_ge_u32 s{sWave}, 10")
    a("s_cbranch_scc1 Lhelper")
    a(f"v_mov_b32 v82, {KCNT}")
    a("v_mov_b32 v83, 1")
    a(f"s_lshl_b32 s{sT0}, s2, {OPT['fsh']}")
    a(f"s_add_u32 s{sT0}, s{sT0}, {WS_FLAG}")
    a(f"v_mov_b32 v84, s{sT0}")
    a("v_mov_b32 v85, 0")
    a("s_mov_b64 exec, 1")
    a("s_waitcnt vmcnt(0)")
    a("ds_add_rtn_u32 v83, v82, v83")
    a("s_waitcnt lgkmcnt(0)")
    a(f"v_readfirstlane_b32 s{sT0}, v83")
    a(f"s_cmp_lg_u32 s{sT0}, 9")
    a("s_cbranch_scc1 Lnoflag")
    a(f"global_store_dword v84, v85, s[{sWs}:{sWs+1}] sc1")
    a("Lnoflag:")
    a("s_mov_b64 exec, -1")
    if OPT["pfpos"] == "A" and OPT["rot"]:
        W, RN = OPT["rw"], OPT["rn"]
        a(f"s_sub_u32 s{sT0}, s{sT0}, {10-W}")
        a(f"s_cmp_ge_u32 s{sT0}, {W}")
        a("s_cbranch_scc1 Lgo")
        a(f"s_lshl_b32 s{sT0}, s{sT0}, 5")
        a(f"s_lshr_b32 s{sT1}, s2, 3")
        a(f"s_add_u32 s{sT0}, s{sT0}, s{sT1}")
        a(f"s_mul_i32 s{sT0}, s{sT0}, {RN*128}")
        a(f"s_getreg_b32 s{sT1}, hwreg(20, 0, 3)")
        a(f"s_mul_i32 s{sT1}, s{sT1}, 1600000")
        if OPT["ro"]: a(f"s_add_u32 s{sT1}, s{sT1}, {OPT['ro']*128}")
        a(f"s_add_u32 s{sT0}, s{sT0}, s{sT1}")
        a(f"v_min_u32 v{vAdr}, {RN-1}, v{vLane}")
        a(f"v_lshl_add_u32 v{vAdr}, v{vAdr}, 7, s{sT0}")
        a(f"v_min_u32 v{vAdr}, {NN*512-128}, v{vAdr}")
        a(f"global_load_dword v{vSink}, v{vAdr}, s[{sX}:{sX+1}]")
    elif OPT["pfpos"] == "A":
        a(f"s_sub_u32 s{sT0}, s{sT0}, {OPT['pa']}")
        a(f"s_cmp_ge_u32 s{sT0}, 4")
        a("s_cbranch_scc1 Lgo")
        a(f"s_min_u32 s{sT1}, s2, 249")
        a(f"s_lshl_b32 s{sT1}, s{sT1}, 2")
        a(f"s_add_u32 s{sT0}, s{sT0}, s{sT1}")
        a(f"s_mul_i32 s{sT0}, s{sT0}, {OPT['pfn']*512}")
        a(f"s_add_u32 s{sT0}, s{sT0}, {XT0}")
        a(f"v_min_u32 v{vAdr}, {4*OPT['pfn']-1}, v{vLane}")
        a(f"v_lshl_add_u32 v{vAdr}, v{vAdr}, 7, s{sT0}")
        a(f"global_load_dword v{vSink}, v{vAdr}, s[{sX}:{sX+1}]")
    a("s_branch Lgo")
    a("Lhelper:")
    a(f"s_cmp_lt_u32 s{sWave}, 15")
    a("s_cbranch_scc1 Lexpand")
    a(f"v_lshlrev_b32 v77, 1, v{vLane}")
    a("v_sub_u32 v78, 0x7f, v77")
    a("v_sub_u32 v79, 0x7e, v77")
    a("v_lshlrev_b32 v77, 2, v77")
    a("v_mov_b32 v82, 0x7f000000")
    a("v_mov_b32 v83, 0x7f000000")
    a(f"ds_write_b64 v77, v[78:79] offset:{DEG}")
    a(f"ds_write_b64 v77, v[82:83] offset:{INVM}")
    a("s_branch Lgo")
    a("Lexpand:")
    ldswait("tab", TABOK, f"s_cmp_lg_u32 s{sT0}, 0")
    a(f"v_add_u32 v82, {TABL}, v81")
    a("ds_read_b128 v[52:55], v82")
    a("s_waitcnt lgkmcnt(0)")
    a("Lhavetab:")
    a(f"s_sub_u32 s{sT2}, s{sWave}, 10")
    for j in range(4):
        a(f"v_lshrrev_b32 v{56+j}, 20, v{52+j}")
    scan4(56, 76, 77, 78, 79, [f"v_and_b32 v{60+j}, 0xfffff, v{52+j}" for j in range(4)])
    a("v_sub_u32 v64, v78, v79")
    a(f"v_readlane_b32 s{sTot}, v78, 63")
    a("v_add_u32 v65, v64, v56")
    a("v_add_u32 v66, v64, v76")
    a("v_add_u32 v67, v64, v77")
    a(f"s_sub_u32 s{sN}, s{sTot}, s{sBase}")
    a(f"s_min_u32 s{sN}, s{sN}, s{sL}")
    a(f"s_cmp_lg_u32 s{sN}, s{sTot}")
    a("s_cbranch_scc1 Lclip")
    a("Lnoclip:")
    a("v_max_u32 v80, v56, v57")
    a("v_max3_u32 v80, v58, v59, v80")
    for j in range(4):
        a(f"v_sub_u32 v{60+j}, v{60+j}, v{64+j}")
        a(f"v_add_lshl_u32 v{64+j}, v{64+j}, s{sT2}, 2")
    a("Lexp:")
    for it in range(3):
        for j in range(4):
            a(f"v_cmp_lt_u32 s[{sMk+2*j}:{sMk+2*j+1}], s{sT2}, v{56+j}")
        a(f"s_add_u32 s{sT2}, s{sT2}, 5")
        a(f"v_cmp_lt_u32 vcc, s{sT2}, v80")
        for j in range(4):
            a(f"s_mov_b64 exec, s[{sMk+2*j}:{sMk+2*j+1}]")
            a(f"ds_write_b32 v{64+j}, v{60+j} offset:{DD+20*it}")
        a("s_mov_b64 exec, -1")
        a("s_cbranch_vccz Lexpdone")
    a("s_waitcnt lgkmcnt(0)")
    for j in range(4):
        a(f"v_add_u32 v{64+j}, 60, v{64+j}")
    a("s_branch Lexp")
    a("Lexpdone:")
    a("v_mov_b32 v76, 0")
    a(f"v_mov_b32 v77, s{sTot}")
    a(f"ds_write_b32 v76, v77 offset:{TOT}")
    a("Lgo:")
    a(f"v_lshlrev_b32 v{vK}, 2, v{vF}")
    a(f"v_mov_b32 v{vP}, 0")
    for k in range(4):
        a(f"v_add_u32 v{vS+k}, {1024*k}, v{vF}")
    stamp(0)
    a("s_waitcnt lgkmcnt(0)")
    a("s_barrier")
    stamp(1)
    a(f"ds_read_b32 v{vP}, v{vP} offset:{TOT}")
    for k in KORD:
        a(f"ds_read_b32 v{vG+k}, v{vK} offset:{DD+4096*k}")
    a(f"s_sub_u32 s{sT2}, s{sWave}, {CW}")
    a(f"s_cmp_ge_u32 s{sT2}, 4")
    a("s_cbranch_scc1 Lnoc")
    a(f"s_mov_b32 m0, s{sReg}")
    a(f"s_lshl_b32 s{sT0}, s{sT2}, 10")
    a(f"v_add_u32 v82, s{sT0}, v81")
    a(f"global_load_lds_dwordx4 v82, s[{sC}:{sC+1}]{HLD}")
    a("Lnoc:")
    a("s_waitcnt lgkmcnt(4)")
    a(f"v_readfirstlane_b32 s{sTot}, v{vP}")
    a(f"s_sub_u32 s{sN}, s{sTot}, s{sBase}")
    a(f"s_min_u32 s{sN}, s{sN}, s{sL}")
    for k in KORD:
        a(f"v_cmp_gt_u32 s[{sMk+2*k}:{sMk+2*k+1}], s{sN}, v{vS+k}")
    def skip3(tag):
        a(f"s_cmp_eq_u64 s[{sMk+6}:{sMk+7}], 0")
        a(f"s_cbranch_scc1 Ls3{tag}")
    tagn = [0]
    def recs(fn):
        for k in range(3): fn(k)
        tagn[0] += 1
        skip3(f"r{tagn[0]}")
        fn(3)
        a(f"Ls3r{tagn[0]}:")
    for i, k in enumerate(KORD):
        a(f"s_waitcnt lgkmcnt({3-i})")
        a(f"v_add_u32 v{vG+k}, v{vG+k}, v{vS+k}")
        a(f"v_cndmask_b32 v{vG+k}, 0, v{vG+k}, s[{sMk+2*k}:{sMk+2*k+1}]")
        if OPT["safe"]: a(f"v_min_u32 v{vG+k}, {NE-1}, v{vG+k}")
        a(f"v_mul_u32_u24 v{vPos+k}, 12, v{vG+k}")
        if k == 3: skip3("a")
        a(f"global_load_dwordx3 v[{vKS+4*k}:{vKS+2+4*k}], v{vPos+k}, s[{sKS}:{sKS+1}]{HLD}")
        if k == 3: a("Ls3a:")
    for k in range(4):
        a(f"v_lshlrev_b32 v{vG+k}, 5, v{vG+k}")
    def eadma(n):
        k, h = n // 2, n % 2
        a(f"s_add_u32 m0, s{sEm}, {k*32768 + h*1024}")
        a(f"v_add_u32_dpp v{vAdr}, v{vG+k}, v{vS16} quad_perm:[{2*h},{2*h},{2*h+1},{2*h+1}] {DPPM}")
        a(f"global_load_lds_dwordx4 v{vAdr}, s[{sEA}:{sEA+1}]{HLD}")
    nxt, nxl = [0], [0]
    slate = dict((k, int(v)) for k, v in (x.split(":") for x in OPT["late"].split(","))) if OPT["late"] else None
    def ea_some(n, c, tag):
        for _ in range(n):
            eadma(c[0]); c[0] += 1
            if c[0] == 6:
                skip3(tag)
                eadma(6); eadma(7)
                a(f"Ls3{tag}:")
    def ea_stage(name):
        if slate is None:
            ea_some(sched.get(name, 0), nxt, "b"); return
        if sched.get(name, 0):
            a(f"s_cmp_lg_u32 s{sLate}, 0")
            a(f"s_cbranch_scc1 Lse{name}")
            ea_some(sched[name], nxt, "b")
            a(f"Lse{name}:")
        if slate.get(name, 0):
            assert STAGES.index(name) > STAGES.index("S2")
            a(f"s_cmp_eq_u32 s{sLate}, 0")
            a(f"s_cbranch_scc1 Lsl{name}")
            ea_some(slate[name], nxl, "c")
            a(f"Lsl{name}:")
    if sched.get("A2", 0) and OPT["a2b"]: a("s_barrier")
    ea_stage("A2")
    n0 = nxt[0]
    stamp(2)
    def xtouch(tag):
        a(f"s_cmp_lt_u32 s{sWave}, 12")
        a(f"s_cbranch_scc1 Lnotouch{tag}")
        a(f"s_min_u32 s{sT0}, s2, 249")
        a(f"s_lshl_b32 s{sT0}, s{sT0}, 2")
        a(f"s_add_u32 s{sT0}, s{sT0}, s{sWave}")
        a(f"s_sub_u32 s{sT0}, s{sT0}, 12")
        a(f"s_mul_i32 s{sT0}, s{sT0}, {OPT['pfn']*512}")
        a(f"s_add_u32 s{sT0}, s{sT0}, {XT0}")
        a(f"v_min_u32 v{vAdr}, {4*OPT['pfn']-1}, v{vLane}")
        a(f"v_lshl_add_u32 v{vAdr}, v{vAdr}, 7, s{sT0}")
        a(f"global_load_dword v{vSink}, v{vAdr}, s[{sX}:{sX+1}]")
        a(f"Lnotouch{tag}:")
    a(f"s_cmp_ge_u32 s{sWave}, 2")
    a("s_cbranch_scc1 Lnort")
    a("v_lshlrev_b32 v77, 2, v0")
    a(f"v_subrev_u32 v52, {BAND}, v0")
    a(f"v_cmp_le_u32 vcc, {BAND+14}, v0")
    a("v_cmp_gt_u32 s[58:59], 14, v52")
    a("v_subrev_u32 v79, 14, v0")
    a("v_lshrrev_b32 v80, 1, v52")
    a("v_cndmask_b32 v76, v0, v79, vcc")
    a("v_mul_u32_u24 v79, 147, v76")
    a("v_lshrrev_b32 v79, 11, v79")
    a("v_mad_i32_i24 v76, v79, -14, v76")
    a("v_and_b32 v53, 1, v79")
    a("v_cmp_eq_u32 vcc, 1, v53")
    a("v_sub_u32 v53, 13, v76")
    a("v_xor_b32 v52, v52, v80")
    a("v_and_or_b32 v52, v52, 1, 14")
    a("v_cndmask_b32 v76, v76, v53, vcc")
    a("v_cndmask_b32 v79, v79, v80, s[58:59]")
    a("v_cndmask_b32 v76, v76, v52, s[58:59]")
    a(f"v_mul_u32_u24 v52, {REG + (32 << 16)}, v76")
    a("v_lshl_or_b32 v52, v79, 2, v52")
    a("v_and_b32 v53, 1, v79")
    a("v_lshl_add_u32 v52, v53, 20, v52")
    a("v_lshrrev_b32 v79, 1, v79")
    a("v_lshl_add_u32 v52, v79, 18, v52")
    a(f"ds_write_b32 v77, v52 offset:{RT}")
    a("Lnort:")
    a("v_lshrrev_b32 v76, 3, v0")
    a("v_lshlrev_b32 v15, 2, v76")
    a("v_and_b32 v16, 7, v0")
    a("v_lshlrev_b32 v16, 6, v16")
    a("v_mov_b32 v17, 0x80")
    a(f"v_lshl_add_u32 v82, v{vLane}, 2, s{sReg}")
    a("v_mov_b32 v83, 0")
    a(f"s_waitcnt vmcnt({n0})")
    stamp(3)
    for k in range(4):
        a(f"v_and_b32 v{vKS+3+4*k}, 0x1fc, v{vKS+4*k}")
    def sync(name):
        if OPT["pfpos"] == name or GP == name:
            a(f"s_cmp_eq_u32 s{sPoll}, 0")
            a(f"s_cbranch_scc1 Lpolled{name}")
            if OPT["pfpos"] == name: xtouch(name)
        if GP == name:
            a(f"s_mov_b32 s{sPoll}, 0")
            a(f"s_cmp_ge_u32 s{sWave}, 4")
            a(f"s_cbranch_scc1 Lpolled{name}")
            a(f"v_min_u32 v{vK}, {NCH-1}, v0")
            a(f"v_lshlrev_b32 v{vK}, {OPT['fsh']}, v{vK}")
            a(f"v_add_u32 v{vK}, {WS_FLAG}, v{vK}")
            a(f"s_mov_b32 s{sT3}, {SPIN}")
            a("Lflagpoll:")
            if OPT["psleep"]: a(f"s_sleep {OPT['psleep']}")
            a(f"global_load_dword v{vP}, v{vK}, s[{sWs}:{sWs+1}] sc1")
            a(f"s_sub_u32 s{sT3}, s{sT3}, 1")
            a("s_cbranch_scc1 Lend")
            a("s_waitcnt vmcnt(0)")
            a(f"v_cmp_ne_u32 vcc, 0, v{vP}")
            a("s_and_b64 exec, exec, vcc")
            a("s_cbranch_scc1 Lflagpoll")
            if OPT["early"]:
                a("s_mov_b64 exec, 1")
                a(f"v_mov_b32 v{vK}, 0")
                a(f"v_mov_b32 v{vP}, 1")
                a(f"ds_add_u32 v{vK}, v{vP} offset:{GO}")
            a("s_mov_b64 exec, -1")
            if OPT["gst"]: stamp(3)
        if OPT["pfpos"] == name or GP == name: a(f"Lpolled{name}:")
        if GP == name and OPT["early"]:
            assert name == "B1" and not OPT["epi"]
            ldswait("g", GO, f"s_cmp_eq_u32 s{sT0}, 4", areg=vE, dreg=vI)
            ea_stage("S1")
        a("s_waitcnt lgkmcnt(0)")
        a("s_barrier")
    a(f"s_cmp_eq_u32 s{sFirst}, 0")
    a("s_cbranch_scc1 Llatermap")
    a(f"s_mov_b32 s{sFirst}, 0")
    if OPT["pfpos"] == "F": xtouch("F")
    def f(k):
        a(f"s_mov_b64 exec, s[{sMk+2*k}:{sMk+2*k+1}]")
        a(f"ds_add_u32 v{vKS+3+4*k}, v17 offset:{DEG}")
    recs(f)
    a("s_mov_b64 exec, -1")
    if not OPT["early"]: ea_stage("S1")
    sync("B1")
    stamp(4)
    a(f"ds_write_b32 v82, v83 offset:{HISTO}")
    ea_stage("B1")
    a(f"s_cmp_ge_u32 s{sWave}, 13")
    a("s_cbranch_scc1 Lnorank")
    a(f"ds_read_b32 v77, v15 offset:{DEG}")
    for i in range(4):
        a(f"ds_read_b128 v[{52+4*i}:{55+4*i}], v16 offset:{DEG+16*i}" if not (APRE and i == 3) else f"ds_read_b128 v[68:71], v16 offset:{DEG+48}")
    a("v_mov_b32 v78, 0")
    a(f"v_cmp_gt_u32 vcc, {NPB}, v76")
    a("v_lshlrev_b32 v76, 9, v76")
    for i in range(16):
        r = 52 + i + (4 if APRE and i >= 12 else 0)
        if i % 4 == 0: a(f"s_waitcnt lgkmcnt({3-i//4})")
        a(f"v_sub_u32 v{r}, v77, v{r}")
        a(f"v_alignbit_b32 v78, v78, v{r}, 31")
    a("v_bcnt_u32_b32 v78, v78, 0")
    a("v_lshlrev_b32 v78, 2, v78")
    for d in ("quad_perm:[1,0,3,2]", "quad_perm:[2,3,0,1]", "row_half_mirror"):
        nop(2)
        a(f"v_add_u32_dpp v78, v78, v78 {d} {DPPM}")
    a(f"ds_read_b32 v78, v78 offset:{RT}")
    a("s_mov_b64 exec, vcc")
    a("s_waitcnt lgkmcnt(0)")
    a("v_lshrrev_b32 v79, 16, v78")
    a("v_and_b32 v78, 0xffff, v78")
    a(f"ds_write_b32 v79, v76 offset:{INVM}")
    a(f"ds_write_b32 v15, v78 offset:{MAP}")
    a("s_mov_b64 exec, -1")
    a("Lnorank:")
    ea_stage("S2")
    later = list(range(n0, nxt[0]))
    assert nxt[0] < 6
    a("Lhavemap:")
    sync("B2")
    stamp(5)
    if OPT["rot"]:
        a(f"s_getreg_b32 s{sT2}, hwreg(20, 0, 3)")
        if OPT["rm"] != 7: a(f"s_and_b32 s{sT2}, s{sT2}, {OPT['rm']}")
        a(f"s_mul_i32 s{sT2}, s{sT2}, {3125 << 17}")
    def f(k):
        a(f"ds_read_b32 v{76+k}, v{vKS+3+4*k} offset:{MAP}")
        if OPT["rot"]:
            a(f"v_subrev_u32 v{52+k}, s{sT2}, v{vKS+4*k}")
            a(f"v_lshrrev_b32 v{52+k}, {17+PH-2}, v{52+k}")
        else:
            a(f"v_lshrrev_b32 v{52+k}, {17+PH-2}, v{vKS+4*k}")
        a(f"v_lshlrev_b32 v{vS+k}, 5, v{vS+k}")
    recs(f)
    ea_stage("B2")
    a("v_mov_b32 v83, 12")
    a(f"s_mov_b32 s{sT0}, {(0x3c, 0x7c, 0xfc)[11-PH]}")
    a(f"s_mov_b32 s{sT1}, 0xfffe0000")
    a("s_waitcnt lgkmcnt(0)")
    def f(k):
        a(f"s_mov_b64 exec, s[{sMk+2*k}:{sMk+2*k+1}]")
        a(f"v_bfi_b32 v{vKS+3+4*k}, s{sT0}, v{52+k}, v{76+k}")
        a(f"ds_add_rtn_u32 v{vPos+k}, v{vKS+3+4*k}, v83 offset:{HISTO}")
        a(f"v_bfi_b32 v{vS+k}, 28, v{76+k}, v{vS+k}")
        a(f"v_bfi_b32 v{vKS+4*k}, s{sT1}, v{vKS+4*k}, v{vS+k}")
    recs(f)
    a("s_mov_b64 exec, -1")
    ea_stage("S3")
    a(f"v_and_b32 v14, {63 if PH == 9 else 31}, v{vLane}")
    a(f"v_lshl_add_u32 v14, v14, 2, s{sReg}")
    a(f"v_mad_u32_u24 v17, v{vLane}, 12, s{sReg}")
    sync("B3")
    a(f"ds_read_b32 v52, v14 offset:{HISTO}")
    for i in range(2):
        a(f"ds_read_b128 v[{vWr+4*i}:{vWr+4*i+3}], v81 offset:{REG*(CW+i)}")
        a(f"ds_read_b128 v[{vCg+4*i}:{vCg+4*i+3}], v81 offset:{REG*(CW+2+i)}")
    ea_stage("B3")
    fill = [f"v_and_b32 v12, 3, v{vLane}", f"v_bfe_u32 v13, v{vLane}, 2, 1", "v_lshl_add_u32 v12, v13, 3, v12",
            f"v_bfe_u32 v13, v{vLane}, 3, 1", "v_lshl_add_u32 v12, v13, 2, v12", f"v_bfe_u32 v13, v{vLane}, 4, 1",
            "v_lshl_add_u32 v12, v12, 1, v13", f"v_mad_u32_u24 v12, v12, 12, s{sReg}",
            f"v_lshrrev_b32 v13, 2, v{vLane}", f"v_bfe_u32 v15, v{vLane}, 1, 1", "v_lshl_add_u32 v13, v15, 4, v13",
            f"v_mad_u32_u24 v13, v13, 12, s{sReg}", f"v_lshrrev_b32 v15, 2, v{vS16}", "v_add3_u32 v13, v13, v15, 4"]
    if APRE == 2:
        fill[8:] = [f"v_lshrrev_b32 v13, 2, v{vLane}", f"v_and_b32 v15, 3, v{vLane}", "v_lshl_add_u32 v13, v15, 4, v13",
                    f"v_mad_u32_u24 v13, v13, 12, s{sReg}", "v_add_u32 v16, 1536, v13", "s_nop 0"]
    for _ in range(6): a(fill.pop(0))
    a("v_mov_b32 v83, 28")
    a("v_mov_b32 v54, 0")
    a("s_waitcnt lgkmcnt(4)")
    a(f"v_sub_u32 v53, s{sReg}, v52")
    for d, rm in (("row_shr:1","0xf"), ("row_shr:2","0xf"), ("row_shr:4","0xf"), ("row_shr:8","0xf"), ("row_bcast:15","0xa")):
        a(f"v_add_u32_dpp v52, v52, v52 {d} row_mask:{rm} bank_mask:0xf")
        if fill: a(fill.pop(0)); a(fill.pop(0))
    if PH == 9:
        nop(2)
        a("v_add_u32_dpp v52, v52, v52 row_bcast:31 row_mask:0xc bank_mask:0xf")
    a("v_add_u32 v53, v53, v52")
    a(f"v_readlane_b32 s{sCnt}, v52, {63 if PH == 9 else 31}")
    a(f"ds_write_b32 v14, v53 offset:{HISTO}")
    a(f"s_cmp_gt_u32 s{sCnt}, {NB*32*12}")
    a("s_cbranch_scc1 Lover")
    a("Loverb:")
    a(f"v_add_u32 v17, s{sCnt}, v17")
    a(f"s_add_u32 s{sR}, s{sCnt}, 12")
    a(f"s_mul_i32 s{sR}, s{sR}, 2731")
    a(f"s_lshr_b32 s{sCnt}, s{sR}, 16")
    a(f"s_min_u32 s{sTail}, s{sCnt}, 3")
    a(f"s_sub_u32 s{sR}, s{sCnt}, s{sTail}")
    sync("B4")
    stamp(6)
    a(f"ds_read_b32 v54, v54 offset:{OVER}")
    recs(lambda k: a(f"ds_read_b32 v{vKS+3+4*k}, v{vKS+3+4*k} offset:{HISTO}"))
    ea_stage("B4")
    a("s_waitcnt lgkmcnt(0)")
    a("v_cmp_ne_u32 vcc, 0, v54")
    a("s_cbranch_vccnz Lslow")
    a("s_mov_b64 exec, 63")
    a("ds_write_b32 v17, v83")
    def f(k):
        a(f"s_mov_b64 exec, s[{sMk+2*k}:{sMk+2*k+1}]")
        a(f"v_add_u32 v{vPos+k}, v{vPos+k}, v{vKS+3+4*k}")
        a(f"ds_write_b32 v{vPos+k}, v{vKS+4*k}")
        a(f"ds_write2_b32 v{vPos+k}, v{vKS+1+4*k}, v{vKS+2+4*k} offset0:1 offset1:2")
    recs(f)
    a("s_mov_b64 exec, -1")
    ea_stage("S4")
    a(f"v_bfe_u32 v14, v{vLane}, 2, 2")
    a(f"v_and_b32 v15, 3, v{vLane}")
    a(f"v_lshrrev_b32 v{vE}, 5, v{vLane}")
    a(f"v_lshlrev_b32 v{vLs}, 7, v14")
    a(f"v_lshl_add_u32 v{vLs}, v15, 4, v{vLs}")
    a(f"v_lshrrev_b32 v{vT[0]}, 1, v{vLs}")
    a(f"v_lshl_add_u32 v{vLs}, v{vE}, 6, v{vLs}")
    a(f"v_lshl_add_u32 v{vT[0]}, v{vE}, 9, v{vT[0]}")
    a(f"v_bfe_u32 v14, v{vLane}, 4, 1")
    a(f"v_lshl_add_u32 v{vT[0]}, v14, 5, v{vT[0]}")
    a(f"v_add_u32 v{vT[0]}, s{sReg}, v{vT[0]}")
    sync("C")
    stamp(7)
    for b in range(NB):
        a(f"ds_read_b32 v{vPr+b}, v12 offset:{b*384}")
    if APRE == 2:
        for t in range(4):
            a(f"ds_read2_b32 v[{28+2*t}:{29+2*t}], v{13 if t < 2 else 16} offset0:{192*(t%2)+1} offset1:{192*(t%2)+2}")
    else:
        for b in range(NB):
            a(f"ds_read_b32 v{vSr+b}, v13 offset:{b*384}")
    ea_stage("C")
    a(f"v_add_u32 v{vT[1]}, 1024, v{vT[0]}")
    a(f"v_add_u32 v{vT[2]}, 2048, v{vT[0]}")
    a(f"v_mov_b32 v{vEm}, 0x1ffe0")
    a(f"s_mov_b32 s{sM0[0]}, s{sReg}")
    a(f"s_add_u32 s{sM0[1]}, s{sReg}, 1024")
    a(f"s_add_u32 s{sM0[2]}, s{sReg}, 2048")
    for i in range(0 if APRE == 2 else 8):
        a(f"v_mov_b32 v{vEaA+i}, 0")
    a(f"s_mov_b32 s{sBlk}, 0x1000")
    a(f"s_mov_b32 s{sGi}, 0x1000")
    a("s_waitcnt lgkmcnt(0)")
    def adr(n):
        a(f"v_add_u32_dpp v{vAdr}, v{vK}, v{vLs} row_newbcast:{LN(n)} {DPPM}")
    DMA = f"global_load_lds_dwordx4 v{vAdr}, s[{sX}:{sX+1}]{OPT['xfl']}"
    def rowoff():
        a(f"v_lshrrev_b32 v{vK}, 8, v{vP}")
        a(f"v_and_b32 v{vK}, 0xfffe00, v{vK}")
        a(f"v_min_u32 v{vK}, {(NN-1)*512}, v{vK}")
    def idx_pack_a():
        a(f"v_and_or_b32 v{vI}, v{vP}, 28, s{sC0}")
        a(f"v_lshlrev_b32 v{vI}, v{vS16}, v{vI}")
    def idx_pack_b():
        a(f"v_or_b32_dpp v{vI}, v{vI}, v{vI} quad_perm:[1,0,3,2] {DPPM}")
    def ea_adr(g, half):
        lo, hi = ("quad_perm:[0,1,2,3]", "row_shr:4") if g == 0 else ("row_shl:4", "quad_perm:[0,1,2,3]")
        if half == 0: a(f"v_and_b32_dpp v{vE}, v{vP}, v{vEm} {lo} row_mask:0x3 bank_mask:0xf")
        else:         a(f"v_and_b32_dpp v{vE}, v{vP}, v{vEm} {hi} row_mask:0xc bank_mask:0xf")
    def abuild(src, g, dst):
        q0, q1 = 2*g, 2*g+1
        a(f"v_mov_b32_dpp v{vD+4}, v{src} quad_perm:[{q0},{q0},{q0},{q0}] {DPPM}")
        a(f"v_mov_b32_dpp v{vD+5}, v{src} quad_perm:[{q1},{q1},{q1},{q1}] {DPPM}")
        for u in range(4):
            a(f"v_dot2_f32_bf16 v{vD+u}, v{vD+4}, v{vCg+u}, 0")
        for u in range(4):
            a(f"v_dot2_f32_bf16 v{vD+u}, v{vD+5}, v{vCg+4+u}, v{vD+u}")
        nop(1)
        a(f"v_cvt_pk_bf16_f32 v{dst}, v{vD}, v{vD+1}")
        nop(1)
        a(f"v_cvt_pk_bf16_f32 v{dst+1}, v{vD+2}, v{vD+3}")
    a(f"v_mov_b32 v{vP}, v{vPr}")
    rowoff()
    idx_pack_a()
    ea_adr(0, 0)
    nop(1)
    idx_pack_b()
    ea_adr(0, 1)
    for s in range(2): a(f"v_readlane_b32 s{sI+s}, v{vI}, {16*s + LN(0)}")
    ea_stage("X")
    def xfirst():
        for p in range(3):
            a(f"s_mov_b32 m0, s{sM0[p]}")
            adr(p)
            a(DMA)
    if OPT["xe"]: xfirst()
    if APRE == 2:
        TD = [36, 40, 52, 56]
        for t in range(4):
            for u in range(4):
                a(f"v_mfma_f32_4x4x4_16b_bf16 v[{TD[u]}:{TD[u]+3}], v[{28+2*t}:{29+2*t}], v[{vCg+2*u}:{vCg+2*u+1}], 0")
            a(f"v_mov_b32 v{28+2*t}, 0")
            a(f"v_mov_b32 v{29+2*t}, 0")
            nop(1)
            ng = 4 if t < 3 else 2
            for h in range(2):
                for k in range(ng):
                    a(f"v_cvt_pk_bf16_f32 v{vAr+8*t+2*k+h}, v{TD[2*h]+k}, v{TD[2*h+1]+k}")
    elif APRE:
        for gi in range(2*NB):
            if gi == 4: ea_stage("A4")
            if gi == 8: ea_stage("A8")
            if gi >= 2*NB-2:
                a(f"s_cmp_le_u32 s{sCnt}, {8*gi}")
                a("s_cbranch_scc1 Labuilt")
            abuild(vSr + gi//2, gi % 2, vAr + 2*gi)
        a("Labuilt:")
    else:
        a(f"v_mov_b32 v{vSH}, v{vSr}")
        abuild(vSr, 0, vA)
    assert nxt[0] == 6
    if not OPT["xe"]: xfirst()
    a("s_waitcnt vmcnt(3)")
    adr(3)
    a("s_barrier")
    stamp(8)
    if OPT["stamps"]: a("s_memtime s[94:95]")
    def ea_reads():
        a(f"s_mov_b64 exec, s[{sEx}:{sEx+1}]")
        a(f"ds_read_b128 v[{vEaA}:{vEaA+3}], v{vE} offset:{EA0}")
        a(f"ds_read_b128 v[{vEaA+4}:{vEaA+7}], v{vE} offset:{EA0+16}")
        a("s_mov_b64 exec, -1")
    def tr(sl):
        a(f"ds_read_b64_tr_b16 v[{vB}:{vB+1}], v{vT[sl]}")
        a(f"ds_read_b64_tr_b16 v[{vB+2}:{vB+3}], v{vT[sl]} offset:256")
    def afetch():
        a(f"s_mov_b32 m0, s{sGi}")
        a(f"v_mov_b32 v{vA}, v{vAr}")
        a(f"v_mov_b32 v{vA+1}, v{vAr+1}")
        a(f"s_add_u32 s{sGi}, s{sGi}, 2")
    if OPT["lprio"]: a("s_setprio 1")
    if OPT["lprio"] >= 2:
        a(f"s_cmp_ge_u32 s{sWave}, {OPT['ph1']}")
        a("s_cbranch_scc1 Lprd")
        a("s_setprio 2")
        if OPT["lprio"] == 3:
            a(f"s_cmp_ge_u32 s{sWave}, 4")
            a("s_cbranch_scc1 Lprd")
            a("s_setprio 3")
        a("Lprd:")
    ea_reads()
    a(f"s_set_gpr_idx_on s{sM0[0]}, 0")
    if APRE: afetch()
    a(f"s_mov_b32 m0, s{sM0[0]}")
    a("s_waitcnt vmcnt(2)")
    tr(0)
    a(".p2align 6")
    a("Lblk:")
    TA, TS = 84, 88
    for p in range(16):
        g, pp = p // 8, p % 8
        cur, nx = sI + 2*((p//2) % 2), sI + 2*((p//2+1) % 2)
        def cap(fn, *args):
            n = len(L); fn(*args); r = L[n:]; del L[n:]; return r
        F = []
        if p != 12: F += cap(adr, p+4)
        nxp = (p//2*2 + 2) % 16
        if p < 14: F.append(f"v_readlane_b32 s{nx + p%2}, v{vI}, {16*(p%2) + LN(nxp)}")
        if p == 15: F += [f"v_readlane_b32 s{nx+s}, v{vI}, {16*s + LN(0)}" for s in range(2)]
        if p == 13: F += cap(idx_pack_a)
        if p == 14: F += cap(idx_pack_b)
        if pp == 5: F += cap(ea_adr, 1-g, 0)
        if pp == 6: F += cap(ea_adr, 1-g, 1)
        q0, q1 = 2*(1-g), 2*(1-g)+1
        late = []
        if not APRE:
            if pp == 6:
                F = [f"v_mov_b32_dpp v{TS}, v{vSH} quad_perm:[{q0},{q0},{q0},{q0}] {DPPM}",
                     f"v_mov_b32_dpp v{TS+1}, v{vSH} quad_perm:[{q1},{q1},{q1},{q1}] {DPPM}"] + F
            if pp == 7: late = [f"v_cvt_pk_bf16_f32 v{vA}, v{TA}, v{TA+1}", f"v_cvt_pk_bf16_f32 v{vA+1}, v{TA+2}, v{TA+3}"]
        elif pp == 7: late = cap(afetch)
        if p == 12:
            F = cap(rowoff) + F + ["s_nop 0"] + cap(adr, p+4)
        a(f"s_sub_u32 s{sR}, s{sR}, 1")
        a("s_waitcnt lgkmcnt(0)")
        a(f"s_cbranch_scc1 Ltail{p}")
        a("s_nop 0" if OPT["nodma"] else DMA + " sc1" if OPT["alt"] and p % OPT["alt"] else DMA)
        a(f"Lback{p}:")
        if pp == 0:
            a(f"v_mfma_f32_32x32x16_bf16 v[{vRw}:{vRw+15}], v[{vEaA}:{vEaA+3}], v[{vWr}:{vWr+3}], 0")
            a(f"v_mfma_f32_32x32x16_bf16 v[{vRw}:{vRw+15}], v[{vEaA+4}:{vEaA+7}], v[{vWr+4}:{vWr+7}], v[{vRw}:{vRw+15}]")
        tpm = [f"v_mfma_f32_4x4x4_16b_bf16 v[{vD+4*s}:{vD+4*s+3}], v[{vA}:{vA+1}], v[{vB+2*s}:{vB+2*s+1}], 0 cbsz:4 abid:{2*pp+s}" for s in range(2)]
        a(tpm[0])
        n = len(F) + len(late)
        if OPT["mid"]: a(F.pop(0))
        a(tpm[1])
        def nexttr():
            a("s_waitcnt vmcnt(2)")
            tr((p+1) % 3)
            if pp == 7: ea_reads()
        for x in F + late: a(x)
        gap = (9 if pp == 0 else 3) - n
        if OPT["ord"] == 5:
            nexttr(); gap -= 3
        if gap > 0: nop(gap)
        for s in range(2):
            a(f"s_lshr_b32 m0, s{cur+s}, 16" if p % 2 else f"s_mov_b32 m0, s{cur+s}")
            sel = "op_sel_hi:[1,0,1]" if pp % 2 == 0 else "op_sel:[0,1,0] op_sel_hi:[1,1,1]"
            r = vRw + 8*s + (pp & ~1)
            for h in range(2):
                a(f"v_pk_fma_f32 v[{ACC+2*h}:{ACC+2*h+1}], v[{vD+4*s+2*h}:{vD+4*s+2*h+1}], v[{r}:{r+1}], v[{ACC+2*h}:{ACC+2*h+1}] {sel}")
        if OPT["ord"] == 4: nexttr()
        if p == 11:
            a(f"s_add_u32 s{sBlk}, s{sBlk}, 1")
            a(f"s_mov_b32 m0, s{sBlk}")
            a(f"v_mov_b32 v{vP}, v{vPr}")
            if not APRE: a(f"v_mov_b32 v{vSH}, v{vSr}")
        a(f"s_mov_b32 m0, s{sM0[(p+1)%3]}")
        if pp == 6 and not APRE:
            for u in range(4): a(f"v_dot2_f32_bf16 v{TA+u}, v{TS}, v{vCg+u}, 0")
            for u in range(4): a(f"v_dot2_f32_bf16 v{TA+u}, v{TS+1}, v{vCg+4+u}, v{TA+u}")
        if pp == 7 and OPT["spf"]:
            a(f"s_sub_u32 s{sPf}, s{sPf}, 1")
            a(f"s_cbranch_scc1 Lspf{g}")
            a(f"Lspfb{g}:")
    a(f"v_swap_b32 v{vT[0]}, v{vT[1]}")
    a(f"v_swap_b32 v{vT[1]}, v{vT[2]}")
    a(f"s_mov_b32 s{sT0}, s{sM0[0]}\ns_mov_b32 s{sM0[0]}, s{sM0[1]}\ns_mov_b32 s{sM0[1]}, s{sM0[2]}\ns_mov_b32 s{sM0[2]}, s{sT0}")
    a("s_branch Lblk")
    a("Lloopend:")
    for p in range(16):
        a(f"Ltail{p}:")
        a(f"s_mov_b32 s{sR}, 0")
        a(f"s_sub_u32 s{sTail}, s{sTail}, 1")
        a("s_cbranch_scc1 Lexit")
        a("s_waitcnt vmcnt(0)")
        a(f"s_branch Lback{p}")
    if OPT["spf"]:
        for g in range(2):
            a(f"Lspf{g}:")
            for i in range(NSP):
                a(f"s_load_dwordx2 s[62:63], s[{sPx}:{sPx+1}], {i*128+60}")
            a(f"s_branch Lspfb{g}")
    a("Lclip:")
    a(f"s_add_u32 s{sT0}, s{sBase}, s{sN}")
    for j in range(4):
        a(f"v_add_u32 v76, v{64+j}, v{56+j}")
        a(f"v_min_u32 v76, s{sT0}, v76")
        a(f"v_max_u32 v77, s{sBase}, v{64+j}")
        a(f"v_sub_u32 v76, v76, v77")
        a(f"v_max_i32 v{56+j}, 0, v76")
        a(f"v_sub_u32 v76, v77, v{64+j}")
        a(f"v_add_u32 v{60+j}, v{60+j}, v76")
        a(f"v_subrev_u32 v{64+j}, s{sBase}, v77")
    a("s_branch Lnoclip")
    a("Llatermap:")
    a("s_barrier")
    a(f"ds_write_b32 v82, v83 offset:{HISTO}")
    if slate is not None:
        assert nxl[0] == 6
        a(f"s_cmp_lg_u32 s{sLate}, 0")
        a("s_cbranch_scc1 Lhavemap")
    for n in later: eadma(n)
    a("s_branch Lhavemap")
    a("Lover:")
    a(f"ds_write_b32 v54, v83 offset:{OVER}")
    a("s_branch Loverb")
    a("Lslow:")
    a(f"s_mov_b32 s{sL}, {NB*32}")
    a("Lround:")
    a("s_waitcnt vmcnt(0) lgkmcnt(0)")
    a("s_barrier")
    a("v_mov_b32 v80, 0")
    a(f"ds_write_b32 v80, v80 offset:{OVER}")
    a(f"v_lshlrev_b32 v81, 4, v{vLane}")
    a("s_waitcnt lgkmcnt(0)")
    a(f"s_sub_u32 s{sT0}, s{sWave}, 10")
    a(f"s_cmp_ge_u32 s{sT0}, 5")
    a("s_cbranch_scc1 Lgo")
    COLBASE(sBin, sT0)
    a(f"v_lshl_add_u32 v82, v{vLane}, 12, s{sT0}")
    for j in range(4):
        a(f"buffer_load_dword v{52+j}, v82, s[{sTab}:{sTab+3}], 0 offen offset:{COLOFF[j]} sc1")
    a("s_waitcnt vmcnt(0)")
    a("s_branch Lhavetab")
    a("Lexit:")
    a("s_set_gpr_idx_off")
    if OPT["lprio"]: a("s_setprio 0")
    stamp(9)
    if OPT["stamps"]: a("s_memtime s[92:93]")
    a(f"s_add_u32 s{sBase}, s{sBase}, s{sN}")
    a(f"s_cmp_lt_u32 s{sBase}, s{sTot}")
    a("s_cbranch_scc1 Lround")
    def epi1():
        a(f"v_lshlrev_b32 v16, 4, v{vLane}")
        a("s_waitcnt vmcnt(0)")
        a(f"s_cmp_ge_u32 s{sWave}, 8")
        a("s_cbranch_scc1 Le_now")
        a(f"s_add_u32 m0, s{sReg}, 2048")
        a(f"s_lshl_b32 s{sT0}, s{sWave}, 10")
        a(f"s_add_u32 s{sT0}, s{sT0}, 4096")
        a(f"v_add_u32 v12, s{sT0}, v16")
        a(f"global_load_lds_dwordx4 v12, s[{sC}:{sC+1}]{HLD}")
        a("Le_now:")
        a(f"v_lshrrev_b32 v13, 5, v{vLane}")
        a(f"s_lshl_b32 s{sT1}, s{sWave}, 5")
        a(f"v_lshl_add_u32 v14, v13, 4, s{sT1}")
        a(f"ds_read_b128 v[84:87], v14 offset:{INVM}")
        a(f"v_and_b32 v15, 31, v{vLane}")
        a(f"v_mad_u32_u24 v12, v15, 56, s{sReg}")
        a(f"v_bfe_u32 v14, v{vLane}, 2, 2")
        a("v_lshl_add_u32 v13, v13, 3, v14")
        a(f"v_mad_u32_u24 v13, v13, 56, s{sReg}")
        a(f"v_bfe_u32 v14, v{vLane}, 4, 1")
        a("v_lshl_add_u32 v13, v14, 5, v13")
        a(f"v_and_b32 v14, 3, v{vLane}")
        a("v_lshl_add_u32 v13, v14, 3, v13")
        for i in range(14):
            a(f"v_cvt_pk_bf16_f32 v{68+i}, v{ACC+2*i}, v{ACC+2*i+1}")
        for h in range(2):
            a("s_mov_b32 exec_hi, 0" if h == 0 else "s_mov_b32 exec_lo, 0")
            if h: a("s_waitcnt lgkmcnt(4)")
            for i in range(7):
                a(f"ds_write_b64 v12, v[{68+2*i}:{69+2*i}] offset:{8*i}")
            a("s_mov_b64 exec, -1")
            for s in range(2):
                for m in range(2):
                    a(f"ds_read_b64_tr_b16 v[{20+8*h+4*s+2*m}:{21+8*h+4*s+2*m}], v13 offset:{(16*s+4*m)*56}")
        a(f"s_mul_i32 s{sT1}, s{sBin}, {NPB*512}")
        a(f"v_lshl_add_u32 v15, v15, 2, s{sT1}")
        for q in range(4):
            a(f"v_add_u32 v{84+q}, v{84+q}, v15")
        if False:
            a("s_waitcnt vmcnt(0) lgkmcnt(0)")
            a("s_barrier")
            for i in range(8):
                a(f"ds_read_b128 v[{36+4*i}:{39+4*i}], v16 offset:{REG*i+2048}")
        else:
            a("v_mov_b32 v14, 0")
            a(f"s_cmp_ge_u32 s{sWave}, 8")
            a("s_cbranch_scc1 Le_wpoll")
            a("v_mov_b32 v17, 1")
            a("s_waitcnt vmcnt(0) lgkmcnt(0)")
            a("s_mov_b64 exec, 1")
            a(f"ds_add_u32 v14, v17 offset:{GO}")
            a("s_mov_b64 exec, -1")
            a("Le_wpoll:")
            a("s_waitcnt lgkmcnt(0)")
            a(f"ds_read_b32 v17, v14 offset:{GO}")
            for i in range(8):
                a(f"ds_read_b128 v[{36+4*i}:{39+4*i}], v16 offset:{REG*i+2048}")
            a("s_waitcnt lgkmcnt(8)")
            a(f"v_readfirstlane_b32 s{sT0}, v17")
            a(f"s_cmp_eq_u32 s{sT0}, 8")
            a("s_cbranch_scc1 Le_wok")
            a("Le_wwait:")
            a("s_sleep 2")
            a(f"ds_read_b32 v17, v14 offset:{GO}")
            a("s_waitcnt lgkmcnt(0)")
            a(f"v_readfirstlane_b32 s{sT0}, v17")
            a(f"s_cmp_eq_u32 s{sT0}, 8")
            a("s_cbranch_scc0 Le_wwait")
            a("s_branch Le_wpoll")
            a("Le_wok:")
        for s in range(4):
            a(f"s_waitcnt lgkmcnt({6-2*s})")
            for t in range(2):
                c = "0" if s == 0 else f"v[{ACC+16*t}:{ACC+16*t+15}]"
                a(f"v_mfma_f32_32x32x16_bf16 v[{ACC+16*t}:{ACC+16*t+15}], v[{20+4*s}:{23+4*s}], v[{36+8*s+4*t}:{39+8*s+4*t}], {c}")
    def epi0():
        a(f"v_lshlrev_b32 v16, 4, v{vLane}")
        a(f"s_cmp_ge_u32 s{sWave}, 4")
        a("s_cbranch_scc1 Lnow")
        a("s_waitcnt vmcnt(0)")
        a(f"s_mov_b32 m0, s{sReg}")
        a(f"s_lshl_b32 s{sT0}, s{sWave}, 11")
        a(f"s_add_u32 s{sT0}, s{sT0}, 4096")
        a(f"v_add_u32 v12, s{sT0}, v16")
        a(f"global_load_lds_dwordx4 v12, s[{sC}:{sC+1}]{HLD}")
        a(f"global_load_lds_dwordx4 v12, s[{sC}:{sC+1}] offset:1024{HLD}")
        a("Lnow:")
        a(f"v_lshrrev_b32 v13, 5, v{vLane}")
        a(f"s_lshl_b32 s{sT1}, s{sWave}, 5")
        a(f"v_lshl_add_u32 v14, v13, 4, s{sT1}")
        a(f"ds_read_b128 v[84:87], v14 offset:{INVM}")
        for i in range(14):
            a(f"v_cvt_pk_bf16_f32 v{68+i}, v{ACC+2*i}, v{ACC+2*i+1}")
        a(f"s_mul_i32 s{sT0}, s{sWave}, 4608")
        a(f"s_add_u32 s{sT0}, s{sT0}, {EA0}")
        a(f"v_mul_u32_u24 v12, 72, v{vLane}")
        a(f"v_add_u32 v12, s{sT0}, v12")
        a(f"v_bfe_u32 v14, v{vLane}, 2, 2")
        a("v_lshl_add_u32 v13, v13, 3, v14")
        a("v_mul_u32_u24 v13, 72, v13")
        a(f"v_bfe_u32 v14, v{vLane}, 4, 1")
        a("v_lshl_add_u32 v13, v14, 5, v13")
        a(f"v_and_b32 v14, 3, v{vLane}")
        a("v_lshl_add_u32 v13, v14, 3, v13")
        a(f"v_add_u32 v13, s{sT0}, v13")
        a(f"s_mul_i32 s{sT1}, s{sBin}, {NPB*512}")
        a(f"v_and_b32 v15, 31, v{vLane}")
        a(f"v_lshl_add_u32 v15, v15, 2, s{sT1}")
        a("s_waitcnt vmcnt(0) lgkmcnt(0)")
        for q in range(4):
            a(f"v_add_u32 v{84+q}, v{84+q}, v15")
        if OPT["epi"]:
            a("v_mov_b32 v14, 0")
            a(f"s_cmp_ge_u32 s{sWave}, 4")
            a("s_cbranch_scc1 Lwpoll")
            a("v_mov_b32 v17, 1")
            a("s_mov_b64 exec, 1")
            a(f"ds_add_u32 v14, v17 offset:{GO}")
            a("s_mov_b64 exec, -1")
            a("s_waitcnt lgkmcnt(0)")
            a("Lwpoll:")
            a(f"ds_read_b32 v17, v14 offset:{GO}")
            for i in range(8):
                a(f"ds_read_b128 v[{36+4*i}:{39+4*i}], v16 offset:{REG*(i//2)+1024*(i%2)}")
            a("s_waitcnt lgkmcnt(8)")
            a(f"v_readfirstlane_b32 s{sT0}, v17")
            a(f"s_cmp_eq_u32 s{sT0}, 4")
            a("s_cbranch_scc1 Lwok")
            a("Lwwait:")
            a("s_sleep 2")
            a(f"ds_read_b32 v17, v14 offset:{GO}")
            a("s_waitcnt lgkmcnt(0)")
            a(f"v_readfirstlane_b32 s{sT0}, v17")
            a(f"s_cmp_eq_u32 s{sT0}, 4")
            a("s_cbranch_scc0 Lwwait")
            a("s_branch Lwpoll")
            a("Lwok:")
        a("s_barrier")
        a(f"s_cmp_lt_u32 s{sWave}, 14")
        a("s_cbranch_scc1 Lsix")
        a(f"ds_write_b64 v12, v[80:81] offset:48")
        a("Lsix:")
        for i in range(6):
            a(f"ds_write_b64 v12, v[{68+2*i}:{69+2*i}] offset:{8*i}")
        for s in range(4):
            if s == (0 if OPT["epi"] else 2): a("s_waitcnt lgkmcnt(7)")
            for m in range(2):
                a(f"ds_read_b64_tr_b16 v[{20+4*s+2*m}:{21+4*s+2*m}], v13 offset:{(16*s+4*m)*72}")
            for t in range(0 if OPT["epi"] else 2):
                a(f"ds_read_b128 v[{36+8*s+4*t}:{39+8*s+4*t}], v16 offset:{REG*s+1024*t}")
        for s in range(4):
            a(f"s_waitcnt lgkmcnt({6-2*s if OPT['epi'] else 12-4*s})")
            for t in range(2):
                c = "0" if s == 0 else f"v[{ACC+16*t}:{ACC+16*t+15}]"
                a(f"v_mfma_f32_32x32x16_bf16 v[{ACC+16*t}:{ACC+16*t+15}], v[{20+4*s}:{23+4*s}], v[{36+8*s+4*t}:{39+8*s+4*t}], {c}")
    epi1() if OPT["epi"] == 2 else epi0()
    nop(12)
    for r in range(16):
        q, t = r // 4, r % 4
        if r == 12:
            a(f"s_cmp_lt_u32 s{sWave}, 14")
            a("s_cbranch_scc1 Lfin")
        a(f"v_cvt_pk_bf16_f32 v{36+r}, v{ACC+r}, v{ACC+16+r}")
        if OPT["olim"] and r >= OPT["olim"]: a(f"s_waitcnt vmcnt({OPT['olim']-1})")
        a(f"buffer_store_dword v{36+r}, v{84+q}, s[{sOsrd}:{sOsrd+3}], 0 offen offset:{t*128}{OPT['outst']}")
    a("Lfin:")
    if OPT["stamps"]:
        a("s_waitcnt vmcnt(0)")
        stamp(10)
        a("s_waitcnt lgkmcnt(0)")
        a("s_sub_u32 s86, s92, s94")
        a("s_mul_hi_u32 s86, s86, 429496730")
        a("s_add_u32 s86, s86, s84")
        stamp_out(1, 12, sWs, sWave)
    a("Lend:")
    a("s_endpgm")

DOC = """;
;
;  1. Workgroup c reads chunk c (3136 edges), counting-sorts it in LDS by destination bin (98 nodes) and writes the records
;     (key + sh: 12 B, edge_attr: 32 B) to d_ws in that order, plus one table row (first record, count) per bin.
;  2. Workgroup b collects the records of its bin, deals the 98 nodes to the 16 waves by degree rank, sorts each wave's edges by
;     accumulators (M0-indexed registers).  The epilogue transposes the sums through LDS and applies w_out with MFMA.
;
"""
hdr = open("standalone__tensor_product_equiv_mace__graph.s.ref").read().split("; Override launch")[0]
out = hdr
out += f"; @launch {'kernel='+KN+' ' if OPT['lst'] else ''}grid=(256,1,1) block=(1024,1,1) lds={LDS}\n"
out += DOC + '.amdgcn_target "amdgcn-amd-amdhsa--gfx950"\n.text\n'
phase1(); phase2()
if OPT["drop"]:
    pats = {"tr":"ds_read_b64_tr", "pk":"v_pk_fma", "tp":"v_mfma_f32_4x4x4", "rw":"v_mfma_f32_32x32", "dot":"v_dot2", "rl":"v_readlane"}
    for t in OPT["drop"].split(","):
        i0, i1 = L.index("Lblk:"), L.index("Lloopend:")
        L[i0:i1] = [l for l in L[i0:i1] if pats[t] not in l]
for l in L:
    for t in getattr(l, "head", []): out += "    ; " + t.strip("- ") + "\n"
    t = ("    " + l if l and not l.endswith(":") and not l.startswith(".") else l)
    if getattr(l, "note", "") and not l.endswith(":"): t = t.ljust(72) + " ; " + l.note
    elif getattr(l, "note", ""): t += "\n    ; " + l.note
    out += t + "\n"
out += f""".section .rodata,"a"
.p2align 6
.amdhsa_kernel {KN}
  .amdhsa_next_free_vgpr 128
  .amdhsa_next_free_sgpr 96
  .amdhsa_accum_offset 128
  .amdhsa_group_segment_fixed_size 0
  .amdhsa_kernarg_size 88
  .amdhsa_user_sgpr_count 2
  .amdhsa_user_sgpr_kernarg_segment_ptr 1
  .amdhsa_system_sgpr_workgroup_id_x 1
  .amdhsa_float_denorm_mode_32 3
.end_amdhsa_kernel
"""
open(sys.argv[1], "w").write(out)
```
